```python
import torch

def _softmax(x, axis=-1):
    return torch.softmax(x, dim=axis)
def _gelu(x):
    return torch.nn.functional.gelu(x, approximate="tanh")
def _silu(x):
    return torch.nn.functional.silu(x)
def _sigmoid(x):
    return torch.sigmoid(x)
def _layernorm(x, axis=-1, eps=1e-5):
    m = x.mean(dim=axis, keepdim=True)
    v = x.var(dim=axis, keepdim=True, unbiased=False)
    return (x - m) / torch.sqrt(v + eps)
def _scatter_add(tgt, idx, src, axis=0):
    return tgt.clone().index_add_(axis, idx, src)
def _segment_sum(src, seg, n):
    out = torch.zeros((n,) + src.shape[1:], dtype=src.dtype)
    return out.index_add_(0, seg, src)
def _pad(x, pw):
    flat = tuple(v for pair in reversed(pw) for v in pair)
    return torch.nn.functional.pad(x, flat)

kernel_name = 'sequential_preLN__softmax_full_mha__swiglu_ffn__prompt'

def setup_inputs():

    _w = (lambda a: (lambda t: t.to(torch.bfloat16) if t.is_floating_point() else t)(torch.as_tensor(a)))
    def _A_setup():
        B, S, D = 1, 2048, 512
        return {
            "x": _w((lambda *s: torch.randn(*s, dtype=torch.bfloat16) * 0.05)(B, S, D)),
            "wqkv": _w((lambda *s: torch.randn(*s, dtype=torch.bfloat16) * 0.05)(D, 3 * D)),
            "wo": _w((lambda *s: torch.randn(*s, dtype=torch.bfloat16) * 0.05)(D, D)),
        }
    _A_in = _A_setup()

    def _B_setup():
        B, S, D, F = 1, 2048, 512, 1376
        return {
            "x": _w((lambda *s: torch.randn(*s, dtype=torch.bfloat16) * 0.05)(B, S, D)),
            "w_gate": _w((lambda *s: torch.randn(*s, dtype=torch.bfloat16) * 0.05)(D, F)),
            "w_up": _w((lambda *s: torch.randn(*s, dtype=torch.bfloat16) * 0.05)(D, F)),
            "w_down": _w((lambda *s: torch.randn(*s, dtype=torch.bfloat16) * 0.05)(F, D)),
        }
    _B_in = _B_setup()

    return {
        "A_x": _A_in["x"],
        "A_wqkv": _A_in["wqkv"],
        "A_wo": _A_in["wo"],
        "B_x": _B_in["x"],
        "B_w_gate": _B_in["w_gate"],
        "B_w_up": _B_in["w_up"],
        "B_w_down": _B_in["w_down"],
    }

def reference(A_x, A_wqkv, A_wo, B_x, B_w_gate, B_w_up, B_w_down):
    def _A_ref(x, wqkv, wo):
        B, S, D = x.shape
        H = 32; Dh = D // H
        qkv = (lambda x, *d: x.permute(*d))((x @ wqkv).reshape(B, S, 3, H, Dh), 2, 0, 3, 1, 4)
        q, k, v = qkv[0], qkv[1], qkv[2]
        scale = Dh ** -0.5
        scores = torch.einsum("bhqd,bhkd->bhqk", q, k) * scale
        p = _softmax(scores, axis=-1)
        o = torch.einsum("bhqk,bhkd->bhqd", p, v)
        return (lambda x, *d: x.permute(*d))(o, 0, 2, 1, 3).reshape(B, S, D) @ wo

    def _B_ref(x, w_gate, w_up, w_down):
        g = _silu(x @ w_gate)
        u = x @ w_up
        return (g * u) @ w_down

    x = A_x
    h = x + _A_ref(_layernorm(x, axis=-1), A_wqkv, A_wo)
    h2 = h + _B_ref(_layernorm(h, axis=-1), B_w_gate, B_w_up, B_w_down)
    return h2
```

```python
class Emit:
    def __init__(self):
        self.L = []

    def __call__(self, s):
        for line in s.split("\n"):
            line = line.strip()
            if line:
                self.L.append("  " + line)

    def label(self, name):
        self.L.append(name + ":")

    def comment(self, s):
        self.L.append("  ; " + s)

    def text(self):
        return "\n".join(self.L) + "\n"


class VAlloc:
    def __init__(self, n=256):
        self.n = n
        self.used = [None] * n
        self.high = 0

    def alloc(self, name, cnt=1, align=1):
        if cnt >= 2:
            align = max(align, 2)
        base = 0
        while base + cnt <= self.n:
            if base % align == 0 and all(self.used[base + i] is None for i in range(cnt)):
                for i in range(cnt):
                    self.used[base + i] = name
                self.high = max(self.high, base + cnt)
                return base
            base += 1
        raise RuntimeError("out of VGPRs allocating %s; in use: %s" % (name, sorted(set(u for u in self.used if u))))

    def free(self, *names):
        for name in names:
            hit = False
            for i in range(self.n):
                if self.used[i] == name:
                    self.used[i] = None
                    hit = True
            assert hit, "free of unknown register group " + name

    def free_prefix(self, prefix):
        for i in range(self.n):
            if self.used[i] is not None and self.used[i].startswith(prefix):
                self.used[i] = None


def v(base, cnt=1):
    return "v%d" % base if cnt == 1 else "v[%d:%d]" % (base, base + cnt - 1)


def s(base, cnt=1):
    return "s%d" % base if cnt == 1 else "s[%d:%d]" % (base, base + cnt - 1)


class Counter:
    def __init__(self, emit, name, maxv):
        self.e = emit
        self.name = name
        self.maxv = maxv
        self.q = []

    def issue(self, tag):
        self.q.append(tag)

    def pending(self, tag):
        return tag in self.q

    def count_for(self, tags):
        if not isinstance(tags, list):
            tags = [tags]
        idx = -1
        for i, t in enumerate(self.q):
            if t in tags:
                idx = i
        if idx < 0:
            return None
        return len(self.q) - idx - 1

    def wait(self, tags):
        n = self.count_for(tags)
        if n is None:
            return
        n = min(n, self.maxv)
        self.e("s_waitcnt %s(%d)" % (self.name, n))
        self.q = self.q[len(self.q) - n:] if n else []

    def wait_all(self, force=False):
        if self.q or force:
            self.e("s_waitcnt %s(0)" % self.name)
        self.q = []

    def clone(self, emit=None):
        c = Counter(emit or self.e, self.name, self.maxv)
        c.q = list(self.q)
        return c
```

```python
import re
import sys

TRANS = ("v_exp_", "v_log_", "v_rcp_", "v_rsq_", "v_sqrt_", "v_sin_", "v_cos_")
REG = re.compile(r"^(-|abs\(|\|)?([vsa])(\d+)\|?\)?$|^(-)?([vsa])\[(\d+):(\d+)\]$")


def regs_of(tok):
    tok = tok.strip()
    if tok in ("vcc",):
        return {"vcc"}
    if tok in ("vcc_lo", "vcc_hi"):
        return {"vcc"}
    if tok in ("exec", "exec_lo", "exec_hi"):
        return {"exec"}
    if tok == "m0":
        return {"m0"}
    m = REG.match(tok)
    if not m:
        return set()
    if m.group(2):
        return {m.group(2) + m.group(3)}
    return {m.group(5) + str(i) for i in range(int(m.group(6)), int(m.group(7)) + 1)}


class Ins:
    pass


def parse(text):
    ins, labels = [], {}
    for ln, raw in enumerate(text.split("\n"), 1):
        line = raw.split(";")[0].strip()
        if not line or line.startswith("."):
            continue
        if line.endswith(":"):
            labels[line[:-1]] = len(ins)
            continue
        parts = line.split(None, 1)
        op = parts[0]
        rest = parts[1] if len(parts) > 1 else ""
        toks = [t.strip() for t in rest.split(",")] if rest else []
        if toks:
            last = toks[-1].split()
            toks[-1] = last[0] if last else ""
            mods = last[1:]
        else:
            mods = []
        i = Ins()
        i.op, i.toks, i.mods, i.ln, i.raw = op, toks, mods, ln, line
        i.ws = 1
        i.kind = "other"
        i.w, i.r = set(), set()
        i.srcA = i.srcB = i.srcC = i.D = set()
        R = [regs_of(t) for t in toks]
        if op == "s_nop":
            i.ws = int(toks[0], 0) + 1
            i.kind = "salu"
        elif op.startswith("v_mfma") or op.startswith("v_smfmac"):
            i.kind = "mfma"
            i.D, i.srcA, i.srcB = R[0], R[1], R[2]
            i.srcC = R[3] if len(R) > 3 else set()
            i.passes = 8 if "32x32" in op else 4
            i.w = set(i.D)
            i.r = i.srcA | i.srcB | i.srcC
        elif op.startswith("v_"):
            i.kind = "valu"
            i.trans = op.startswith(TRANS)
            if op.startswith("v_permlane") and "swap" in op:
                i.w = R[0] | R[1]
                i.r = R[0] | R[1]
            elif op.startswith("v_cmp"):
                i.w = R[0]
                i.r = set().union(*R[1:])
                if op.startswith("v_cmpx"):
                    i.w |= {"exec"}
            elif re.match(r"v_(add|sub|subrev|addc|subb)_co", op):
                i.w = R[0] | R[1]
                i.r = set().union(*R[2:])
            else:
                i.w = R[0]
                i.r = set().union(*R[1:]) if len(R) > 1 else set()
                if op.startswith(("v_fmac", "v_dot2c", "v_writelane", "v_mac", "v_pk_fmac")):
                    i.r |= R[0]
                if op.startswith("v_cndmask") and len(R) == 3:
                    i.r |= {"vcc"}
            if any("dpp" in m or m.startswith(("row_", "quad_perm")) for m in mods) or op.endswith("_dpp"):
                i.dpp = True
        elif op.startswith("ds_"):
            i.kind = "ds"
            if op.startswith(("ds_read", "ds_bpermute", "ds_permute", "ds_swizzle")):
                i.w = R[0]
                i.r = set().union(*R[1:])
            else:
                i.r = set().union(*R)
        elif op.startswith(("buffer_", "global_")):
            i.kind = "vmem"
            i.lds = "lds" in mods or "_lds_" in op
            if op.startswith(("buffer_inv", "buffer_wbl2")):
                pass
            elif "load" in op and not i.lds:
                i.w = R[0]
                i.r = set().union(*R[1:])
            else:
                i.r = set().union(*R)
                if "store" in op:
                    data = R[0] if op.startswith("buffer") else R[1]
                    i.store = data if len(data) >= 3 else set()
            if i.lds:
                i.r |= {"m0"}
        elif op.startswith("s_"):
            i.kind = "salu"
            if op.startswith(("s_cmp", "s_cbranch", "s_branch", "s_waitcnt", "s_barrier", "s_endpgm", "s_setprio", "s_sleep")):
                i.r = set().union(*R) if R else set()
                if op in ("s_cbranch_vccz", "s_cbranch_vccnz"):
                    i.r |= {"vcc"}
            else:
                i.w = R[0] if R else set()
                i.r = set().union(*R[1:]) if len(R) > 1 else set()
                if "saveexec" in op:
                    i.w |= {"exec"}
        ins.append(i)
    for k, i in enumerate(ins):
        succ = []
        if i.op == "s_endpgm":
            pass
        elif i.op == "s_branch":
            succ = [labels[i.toks[0]]]
        elif i.op.startswith("s_cbranch"):
            succ = [labels[i.toks[0]], k + 1]
        else:
            succ = [k + 1]
        i.succ = [x for x in succ if x < len(ins)]
    return ins


def isv(r):
    return r[0] in "va" and r not in ("vcc",)


def need(p, c):
    n = 0
    why = ""

    def req(k, msg):
        nonlocal n, why
        if k > n:
            n, why = k, msg

    if p.kind == "valu":
        pv = {r for r in p.w if isv(r)}
        ps = p.w - pv
        if c.kind == "mfma" and pv & c.r:
            req(2, "VALU write -> MFMA read")
        if c.kind == "valu":
            if getattr(p, "trans", False) and not getattr(c, "trans", False) and pv & c.r:
                req(1, "trans -> VALU")
            if c.op.startswith(("v_readlane", "v_readfirstlane")) and pv & c.r:
                req(1, "VALU write -> readlane")
            if c.op.startswith("v_permlane") and pv & c.r:
                req(2, "VALU write -> permlane")
            if getattr(c, "dpp", False) and pv & c.r:
                req(2, "VALU write -> DPP")
            if ps & c.r:
                req(4 if c.op.startswith(("v_readlane", "v_writelane")) else 2, "VALU SGPR write -> VALU read")
            if "exec" in ps:
                req(4, "VALU exec write")
        if p.op.startswith("v_dot") and c.kind in ("valu", "mfma", "ds", "vmem") and pv & (c.r | c.w):
            if not (c.op == p.op and pv & c.w):
                req(3, "DLop result -> other use")
        if c.kind == "vmem" and ps & c.r:
            req(5, "VALU SGPR write -> VMEM read")
        if c.kind == "salu" and ps & c.r:
            req(1, "VALU SGPR write -> SALU read (padded)")
    if p.kind == "mfma":
        big = p.passes == 8
        if c.kind == "mfma":
            if p.D & (c.srcA | c.srcB):
                req(12 if big else 8, "MFMA D -> MFMA A/B")
            if p.D & c.srcC and not (p.D == c.srcC and p.passes == c.passes):
                req(10 if big else 6, "MFMA D -> MFMA C overlap")
            if p.D & c.D and p.D != c.srcC and not (p.D & c.srcC):
                req(10 if big else 6, "MFMA D WAW with another MFMA")
        elif c.kind in ("valu", "ds", "vmem"):
            if p.D & (c.r | c.w):
                req(12 if big else 8, "MFMA D -> VALU/DS/VMEM")
            if c.kind == "valu" and p.srcC & c.w:
                req(7 if big else 3, "MFMA srcC read -> VALU write")
    if p.kind == "salu" and "m0" in p.w and c.kind == "vmem" and getattr(c, "lds", False):
        req(1, "M0 write -> LDS DMA")
    if p.kind == "vmem" and getattr(p, "store", None):
        if c.kind == "valu" and p.store & c.w:
            req(2, "wide store data -> VALU overwrite")
        elif c.kind in ("ds", "vmem") and p.store & c.w:
            req(1, "wide store data -> overwrite")
    return n, why


def check(text, limit=60):
    ins = parse(text)
    bad = []
    for k, p in enumerate(ins):
        if p.kind not in ("valu", "mfma", "salu", "vmem"):
            continue
        if p.kind == "salu" and "m0" not in p.w:
            continue
        if p.kind == "vmem" and not getattr(p, "store", None):
            continue
        seen = {}
        stack = [(x, 0) for x in p.succ]
        while stack:
            j, d = stack.pop()
            if d > 13 or seen.get(j, 99) <= d:
                continue
            seen[j] = d
            c = ins[j]
            n, why = need(p, c)
            if d < n:
                bad.append((p, c, d, n, why))
            for x in c.succ:
                stack.append((x, d + c.ws))
    for p, c, d, n, why in bad[:limit]:
        print("HAZARD %s: need %d have %d\n   line %d: %s\n   line %d: %s" % (why, n, d, p.ln, p.raw, c.ln, c.raw))
    return len(bad)


if __name__ == "__main__":
    n = check(open(sys.argv[1]).read())
    print("hazards:", n)
```

```python
import os
import sys
from asmlib import Emit, VAlloc, Counter, v, s

NAME = "sequential_preLN__softmax_full_mha__swiglu_ffn__prompt"
KNAME = NAME + "_kernel"

WS_Z = 0
WS_XT = 4096
WS_FL = WS_XT + 32768
WS_K = 262144
WS_V = WS_K + (2 << 20)
WS_O = WS_V + (2 << 20)
WS_H = WS_O + (2 << 20)
WS_A = WS_H + (2 << 20)
WS_END = WS_A + 16 * 4 * 86 * 1024 + 4096
WS_TS = WS_END + 4096
WS_SIZE = WS_TS + 256 * 256

LDS_SIZE = 163840
MISC = 155776
M_RSTD, M_MR, M_CTRL, M_CSA, M_QB, M_CS2 = 0, 512, 1024, 1088, 2176, 6272
P1_SLOT = 28672
KV_SLOT = 16384
WO_LDS = 65536
GU_WSLOT = [131072, 0, 24608, 49216]
GU_UP = 12320
GU_HSLOT = [73856, 73856 + 16384, 73856 + 32768]
XCH_OP = 73856
DN_WSLOT = [16384 * i for i in range(5)]
DN_ASLOT = [81920 + 16384 * i for i in range(4)]
XCH_DN = 0

S_X, S_WQKV, S_WO, S_WGU, S_WD, S_OUT, S_WS = 4, 8, 12, 16, 20, 24, 28
S_PG, S_PU = 32, 34
SW, SG, SM, SFAST, SN, SREDO = 36, 37, 38, 39, 40, 42
ST = [44, 45, 46, 47, 48, 49, 50, 51, 52, 53]
SHALF = 54
SSAVE = 56
SA = list(range(58, 90))

LOG2E = 1.4426950408889634
ONES = 0x3F803F80
CTRL_WAVE = 7
POLL_LIMIT = 1 << 17


def fbits(x):
    import struct
    return struct.unpack("<I", struct.pack("<f", x))[0]


class Gen:
    def __init__(self, stop=None, ts=False, opts=None):
        self.e = Emit()
        self.va = VAlloc()
        self.stop = stop
        self.ts = ts
        self.opts = opts or {}
        self.vm = Counter(self.e, "vmcnt", 63)
        self.lg = Counter(self.e, "lgkmcnt", 15)
        self.nlab = 0

    def lab(self, base):
        self.nlab += 1
        return "L_%s_%d" % (base, self.nlab)

    def stamp(self, idx):
        if not self.ts:
            return
        e = self.e
        skip = self.lab("ts")
        e("s_cmp_lg_u32 %s, %d" % (s(SW), CTRL_WAVE))
        e("s_cbranch_scc1 %s" % skip)
        e("s_memtime %s" % s(90, 2))
        e("s_waitcnt lgkmcnt(0)")
        e("v_writelane_b32 %s, %s, %d" % (v(self.vTS), s(90), idx))
        e.label(skip)

    def dma(self, srd, voff, soff_expr, m0_expr, tag, flags="", imm=0, vm=None):
        e = self.e
        vm = vm or self.vm
        sb, c = m0_expr
        if sb is None:
            e("s_mov_b32 m0, %d" % c)
        elif c == 0:
            e("s_mov_b32 m0, %s" % s(sb))
        else:
            e("s_add_u32 m0, %s, %d" % (s(sb), c))
        sb, c = soff_expr
        if sb is None:
            e("s_mov_b32 %s, %d" % (s(ST[9]), c))
            so = s(ST[9])
        elif c == 0:
            e("s_nop 0")
            so = s(sb)
        else:
            e("s_add_u32 %s, %s, %d" % (s(ST[9]), s(sb), c))
            so = s(ST[9])
        e("buffer_load_dwordx4 %s, %s, %s offen %s%s lds" % (v(voff), s(srd, 4), so, ("offset:%d " % imm) if imm else "", flags))
        vm.issue(tag)

    def dma2(self, srd, voff, soff_expr, m0_expr, tag, flags="", vm=None):
        vm = vm or self.vm
        self.dma(srd, voff, soff_expr, m0_expr, tag, flags, vm=vm)
        sb, c = soff_expr
        so = s(sb) if (sb is not None and c == 0) else s(ST[9])
        self.e("buffer_load_dwordx4 %s, %s, %s offen offset:1024 %s lds" % (v(voff), s(srd, 4), so, flags))
        vm.issue(tag)

    def srd(self, dst, ptr, nbytes):
        e = self.e
        e("s_mov_b32 %s, %s" % (s(dst), s(ptr)))
        e("s_mov_b32 %s, %s" % (s(dst + 1), s(ptr + 1)))
        e("s_mov_b32 %s, %d" % (s(dst + 2), nbytes))
        e("s_mov_b32 %s, 0x20000" % s(dst + 3))

    def xhalf_sum(self, reg, tmp):
        e = self.e
        e("v_mov_b32 %s, %s" % (v(tmp), v(reg)))
        e("s_nop 1")
        e("v_permlane32_swap_b32 %s, %s" % (v(reg), v(tmp)))
        e("v_add_f32 %s, %s, %s" % (v(reg), v(reg), v(tmp)))

    def ln_stats(self, s1, s2, tmp, rstd, mr):
        e = self.e
        e("v_mul_f32 %s, 0x%x, %s" % (v(s1), fbits(1.0 / 512), v(s1)))
        e("v_mul_f32 %s, %s, %s" % (v(tmp), v(s1), v(s1)))
        e("v_mov_b32 %s, 0x%x" % (v(rstd), fbits(1.0 / 512)))
        e("v_fma_f32 %s, %s, %s, -%s" % (v(s2), v(s2), v(rstd), v(tmp)))
        e("v_max_f32 %s, 0, %s" % (v(s2), v(s2)))
        e("v_add_f32 %s, 0x%x, %s" % (v(s2), fbits(1e-5), v(s2)))
        e("v_rsq_f32 %s, %s" % (v(rstd), v(s2)))
        e("s_nop 0")
        e("v_mul_f32 %s, %s, %s" % (v(mr), v(s1), v(rstd)))

    def flag_off(self, sync, grp_sgpr, mem_sgpr, dst):
        e = self.e
        e("s_lshl_b32 %s, %s, 11" % (s(dst), s(grp_sgpr)))
        if mem_sgpr is not None:
            e("s_lshl_b32 %s, %s, 7" % (s(ST[8]), s(mem_sgpr)))
            e("s_add_u32 %s, %s, %s" % (s(dst), s(dst), s(ST[8])))
        e("s_add_u32 %s, %s, %d" % (s(dst), s(dst), WS_FL + sync * 32768))

    def sync(self, idx, post_grp, post_mem, poll_grp, fast_ok, after_poll=None, prefetch=None):
        e = self.e
        va = self.va
        skip = self.lab("sync_skip")
        poll = self.lab("poll")
        done = self.lab("poll_done")
        a = va.alloc("sy_a", 2, 2)
        b = va.alloc("sy_b", 2, 2)
        o = va.alloc("sy_o")
        e("s_cmp_lg_u32 %s, %d" % (s(SW), CTRL_WAVE))
        e("s_cbranch_scc1 %s" % skip)
        self.flag_off(idx, post_grp, post_mem, ST[0])
        self.flag_off(idx, poll_grp, None, ST[1])
        e("v_mov_b32 %s, %s" % (v(a), s(SN)))
        e("v_mov_b32 %s, %s" % (v(a + 1), s(SN + 1)))
        e("v_lshlrev_b32 %s, 3, %s" % (v(o), v(self.vL16)))
        e("s_mov_b64 exec, 1")
        if fast_ok:
            slow = self.lab("flag_slow")
            posted = self.lab("flag_posted")
            e("s_cmp_eq_u32 %s, 0" % s(SFAST))
            e("s_cbranch_scc1 %s" % slow)
            e("buffer_store_dwordx2 %s, off, %s, %s" % (v(a, 2), s(S_WS, 4), s(ST[0])))
            e("s_branch %s" % posted)
            e.label(slow)
            e("buffer_store_dwordx2 %s, off, %s, %s sc1" % (v(a, 2), s(S_WS, 4), s(ST[0])))
            e.label(posted)
        else:
            e("buffer_store_dwordx2 %s, off, %s, %s sc1" % (v(a, 2), s(S_WS, 4), s(ST[0])))
        e("s_mov_b64 exec, 0xffff")
        e("s_mov_b32 %s, 0" % s(ST[2]))
        e.label(poll)
        e("buffer_load_dwordx2 %s, %s, %s, %s offen sc1" % (v(b, 2), v(o), s(S_WS, 4), s(ST[1])))
        e("s_add_u32 %s, %s, 1" % (s(ST[2]), s(ST[2])))
        e("s_cmp_ge_u32 %s, %d" % (s(ST[2]), POLL_LIMIT))
        e("s_waitcnt vmcnt(0)")
        e("s_cbranch_scc1 %s" % done)
        e("v_cmp_ne_u32 vcc, %s, %s" % (s(SN), v(b)))
        e("v_cmp_ne_u32 %s, %s, %s" % (s(SSAVE, 2), s(SN + 1), v(b + 1)))
        e("s_nop 1")
        e("s_or_b64 vcc, vcc, %s" % s(SSAVE, 2))
        e("s_cbranch_vccnz %s" % poll)
        e.label(done)
        if after_poll:
            after_poll(a)
        e("s_mov_b64 exec, -1")
        if prefetch:
            join = self.lab("sync_join")
            q0 = list(self.vm.q)
            prefetch()
            e("s_branch %s" % join)
            e.label(skip)
            self.vm.q = q0
            prefetch()
            e.label(join)
        else:
            e.label(skip)
        va.free("sy_a", "sy_b", "sy_o")

    def stores_fast_slow(self, fn):
        e = self.e
        slow = self.lab("st_slow")
        done = self.lab("st_done")
        e("s_cmp_eq_u32 %s, 0" % s(SFAST))
        e("s_cbranch_scc1 %s" % slow)
        fn("")
        e("s_branch %s" % done)
        e.label(slow)
        fn("sc1")
        e.label(done)

    def prologue(self):
        e, va = self.e, self.va
        e("s_cmp_ge_u32 s2, 256")
        e("s_cbranch_scc1 L_end")
        e("s_load_dwordx2 %s, s[0:1], 0" % s(S_X, 2))
        e("s_load_dwordx2 %s, s[0:1], 8" % s(S_WQKV, 2))
        e("s_load_dwordx2 %s, s[0:1], 72" % s(S_WS, 2))
        e("s_load_dwordx2 %s, s[0:1], 16" % s(S_WO, 2))
        e("s_load_dwordx4 %s, s[0:1], 32" % s(S_PG, 4))
        e("s_load_dwordx2 %s, s[0:1], 48" % s(S_WD, 2))
        e("s_load_dwordx2 %s, s[0:1], 56" % s(S_OUT, 2))
        va.alloc("v0", 1)
        self.vL = va.alloc("L")
        self.vL16 = va.alloc("L16")
        self.vTS = va.alloc("TS")
        t = va.alloc("pro_t")
        e("v_lshrrev_b32 %s, 6, v0" % v(t))
        e("v_and_b32 %s, 63, v0" % v(self.vL))
        e("v_lshlrev_b32 %s, 4, %s" % (v(self.vL16), v(self.vL)))
        e("v_readfirstlane_b32 %s, %s" % (s(SW), v(t)))
        if self.ts:
            e("v_mov_b32 %s, 0" % v(self.vTS))
        e("s_and_b32 %s, s2, 7" % s(SG))
        e("s_lshl_b32 %s, %s, 1" % (s(SG), s(SG)))
        e("s_lshr_b32 %s, s2, 7" % s(SM))
        e("s_add_u32 %s, %s, %s" % (s(SG), s(SG), s(SM)))
        e("s_lshr_b32 %s, s2, 3" % s(SM))
        e("s_and_b32 %s, %s, 15" % (s(SM), s(SM)))
        e("s_mov_b32 %s, 0" % s(SREDO))
        e("s_mov_b32 %s, 0" % s(SFAST))
        va.free("pro_t")
        self.lane_patterns()
        for dst, nbytes in ((S_X, 2048 * 512 * 2), (S_WQKV, 512 * 1536 * 2), (S_WS, WS_SIZE if self.ts else WS_END),
                            (S_WO, 512 * 512 * 2), (S_WD, 1376 * 512 * 2), (S_OUT, 2048 * 512 * 2)):
            e("s_mov_b32 %s, %d" % (s(dst + 2), nbytes))
            e("s_mov_b32 %s, 0x20000" % s(dst + 3))
        e("s_mov_b32 %s, 0x0000ffff" % s(SHALF))
        e("s_mov_b32 %s, 0x0000ffff" % s(SHALF + 1))
        self.kernarg_waited = False

    def lane_patterns(self):
        e, va = self.e, self.va
        L = self.vL
        t0 = va.alloc("lp_t0")
        t1 = va.alloc("lp_t1")
        t2 = va.alloc("lp_t2")
        self.vTrC = va.alloc("TrC")
        e("v_bfe_u32 %s, %s, 2, 2" % (v(t0), v(L)))
        e("v_and_b32 %s, 3, %s" % (v(t1), v(L)))
        e("v_lshlrev_b32 %s, 6, %s" % (v(t0), v(t0)))
        e("v_lshl_add_u32 %s, %s, 3, %s" % (v(self.vTrC), v(t1), v(t0)))
        self.vW64 = va.alloc("W64")
        e("v_lshrrev_b32 %s, 2, %s" % (v(t2), v(L)))
        e("v_lshlrev_b32 %s, 10, %s" % (v(t2), v(t2)))
        e("v_lshl_add_u32 %s, %s, 4, %s" % (v(self.vW64), v(t1), v(t2)))
        va.free("lp_t0", "lp_t1", "lp_t2")

    def p1(self):
        e, va = self.e, self.va
        L = self.vL
        t0, t1, t2 = va.alloc("p1_t0"), va.alloc("p1_t1"), va.alloc("p1_t2")
        xd = [va.alloc("p1_xd0"), va.alloc("p1_xd1")]
        e("v_lshrrev_b32 %s, 3, %s" % (v(t0), v(L)))
        e("v_lshlrev_b32 %s, 10, %s" % (v(t0), v(t0)))
        e("v_lshrrev_b32 %s, 4, %s" % (v(t1), v(L)))
        e("v_and_b32 %s, 7, %s" % (v(t2), v(L)))
        e("v_xor_b32 %s, %s, %s" % (v(xd[0]), v(t1), v(t2)))
        e("v_xor_b32 %s, 4, %s" % (v(xd[1]), v(xd[0])))
        e("v_lshl_add_u32 %s, %s, 4, %s" % (v(xd[0]), v(xd[0]), v(t0)))
        e("v_lshl_add_u32 %s, %s, 4, %s" % (v(xd[1]), v(xd[1]), v(t0)))
        e("v_add_u32 %s, 8192, %s" % (v(xd[1]), v(xd[1])))
        wd = va.alloc("p1_wd")
        e("v_lshrrev_b32 %s, 2, %s" % (v(t0), v(L)))
        e("v_mul_u32_u24 %s, 3072, %s" % (v(t0), v(t0)))
        e("v_and_b32 %s, 3, %s" % (v(t1), v(L)))
        e("v_lshl_add_u32 %s, %s, 4, %s" % (v(wd), v(t1), v(t0)))
        sXg, sXl, sWg, sWl = SA[0], SA[1], SA[2], SA[3]
        e("s_lshl_b32 %s, %s, 17" % (s(sXg), s(SM)))
        e("s_lshl_b32 %s, %s, 14" % (s(ST[0]), s(SW)))
        e("s_add_u32 %s, %s, %s" % (s(sXg), s(sXg), s(ST[0])))
        e("s_lshl_b32 %s, %s, 11" % (s(sXl), s(SW)))
        e("s_lshr_b32 %s, %s, 1" % (s(ST[0]), s(SW)))
        e("s_and_b32 %s, %s, 1" % (s(ST[1]), s(SW)))
        e("s_lshl_b32 %s, %s, 1" % (s(ST[1]), s(ST[1])))
        e("s_sub_u32 %s, %s, 4" % (s(ST[2]), s(SW)))
        e("s_cmp_ge_u32 %s, 4" % s(SW))
        e("s_cselect_b32 %s, 2, %s" % (s(ST[0]), s(ST[0])))
        e("s_cselect_b32 %s, %s, %s" % (s(ST[1]), s(ST[2]), s(ST[1])))
        e("s_lshl_b32 %s, %s, 6" % (s(sWg), s(SG)))
        e("s_lshl_b32 %s, %s, 10" % (s(ST[2]), s(ST[0])))
        e("s_add_u32 %s, %s, %s" % (s(sWg), s(sWg), s(ST[2])))
        e("s_mul_i32 %s, %s, 49152" % (s(ST[2]), s(ST[1])))
        e("s_add_u32 %s, %s, %s" % (s(sWg), s(sWg), s(ST[2])))
        e("s_lshl_b32 %s, %s, 12" % (s(sWl), s(ST[0])))
        e("s_lshl_b32 %s, %s, 10" % (s(ST[2]), s(ST[1])))
        e("s_add_u32 %s, %s, %s" % (s(sWl), s(sWl), s(ST[2])))
        e("s_add_u32 %s, %s, 16384" % (s(sWl), s(sWl)))

        def issue(c, roleA, vm):
            slot = (c % 5) * P1_SLOT
            for i in range(2):
                self.dma(S_X, xd[i], (sXg, c * 128), (sXl, slot + i * 1024), ("c", c), vm=vm)
            for i in range(2 if roleA else 1):
                self.dma(S_WQKV, wd, (sWg, c * 196608 + i * 49152), (sWl, slot + i * 1024), ("c", c), vm=vm)

        xr = [[va.alloc("p1_xr%d%d" % (b, k)) for k in range(4)] for b in range(3)]
        tr = [va.alloc("p1_tr%d" % b) for b in range(3)]
        zz = va.alloc("p1_z", 2, 2)

        def read_patterns():
            e("v_and_b32 %s, 31, %s" % (v(t0), v(L)))
            e("v_lshlrev_b32 %s, 7, %s" % (v(t0), v(t0)))
            e("v_bfe_u32 %s, %s, 1, 3" % (v(t1), v(L)))
            e("v_lshrrev_b32 %s, 5, %s" % (v(t2), v(L)))
            e("v_xor_b32 %s, %s, %s" % (v(t1), v(t1), v(t2)))
            e("v_lshl_add_u32 %s, %s, 4, %s" % (v(t0), v(t1), v(t0)))
            e("s_and_b32 %s, %s, 3" % (s(ST[0]), s(SW)))
            e("s_lshl_b32 %s, %s, 12" % (s(ST[0]), s(ST[0])))
            e("v_add_u32 %s, %s, %s" % (v(xr[0][0]), s(ST[0]), v(t0)))
            for k in range(1, 4):
                e("v_xor_b32 %s, %d, %s" % (v(xr[0][k]), k << 5, v(xr[0][0])))
            for b in range(1, 3):
                for k in range(4):
                    e("v_add_u32 %s, %d, %s" % (v(xr[b][k]), b * 57344, v(xr[0][k])))
            e("v_lshlrev_b32 %s, 9, %s" % (v(t2), v(t2)))
            e("v_bfe_u32 %s, %s, 4, 1" % (v(t1), v(L)))
            e("v_lshl_add_u32 %s, %s, 5, %s" % (v(t1), v(t1), v(t2)))
            e("v_add_u32 %s, %s, %s" % (v(tr[0]), v(t1), v(self.vTrC)))
            for b in range(1, 3):
                e("v_add_u32 %s, %d, %s" % (v(tr[b]), b * 57344, v(tr[0])))

        ones = va.alloc("p1_ones")
        self.vQ = va.alloc("Q", 4, 4)

        e("s_waitcnt lgkmcnt(0)")
        e("s_cmp_ge_u32 %s, 4" % s(SW))
        e("s_cbranch_scc1 L_p1_roleB")

        def xread(dst, c, ks):
            slot = c % 5
            e("ds_read_b128 %s, %s offset:%d" % (v(dst, 4), v(xr[slot // 2][ks]), (slot % 2) * P1_SLOT))

        def wread(dst, c, ks, nt):
            slot = c % 5
            off = (slot % 2) * P1_SLOT + 16384 + nt * 4096 + ks * 1024
            e("ds_read_b64_tr_b16 %s, %s offset:%d" % (v(dst, 2), v(tr[slot // 2]), off))
            e("ds_read_b64_tr_b16 %s, %s offset:%d" % (v(dst + 2, 2), v(tr[slot // 2]), off + 256))

        def loop(roleA, vm, lg, reads, compute, hooks):
            S = 32
            for c in range(5):
                issue(c, roleA, vm)
            read_patterns()
            e("v_mov_b32 %s, 0x%x" % (v(ones), ONES))
            hooks("init")
            vm.wait(("c", 0))
            e("s_barrier")
            hooks("first")
            reads(0)
            for st in range(S):
                nxt = st + 1
                refill = None
                if nxt < S:
                    if nxt % 4 == 0:
                        c = nxt // 4
                        lg.wait_all()
                        vm.wait(("c", c))
                        e("s_barrier")
                        if c + 4 <= 7:
                            refill = c + 4
                        if c == 7:
                            hooks("last_chunk")
                    reads(nxt)
                    lg.wait(("r", st))
                else:
                    lg.wait_all()
                compute(st)
                if refill is not None:
                    issue(refill, roleA, vm)

        vmA, lgA = self.vm.clone(), self.lg.clone()
        accQ = va.alloc("p1a_accQ", 16, 4)
        accK = va.alloc("p1a_accK", 16, 4)
        xf = [va.alloc("p1a_xf%d" % i, 4, 4) for i in range(2)]
        wq = [va.alloc("p1a_wq%d" % i, 4, 4) for i in range(2)]
        wk = [va.alloc("p1a_wk%d" % i, 4, 4) for i in range(2)]
        csq, csk = va.alloc("p1a_csq"), va.alloc("p1a_csk")

        def readsA(st):
            c, ks, b = st // 4, st % 4, st % 2
            xread(xf[b], c, ks)
            wread(wq[b], c, ks, 0)
            wread(wk[b], c, ks, 1)
            for _ in range(5):
                lgA.issue(("r", st))

        def computeA(st):
            b = st % 2
            cq = "0" if st == 0 else v(accQ, 16)
            ck = "0" if st == 0 else v(accK, 16)
            e("v_mfma_f32_32x32x16_bf16 %s, %s, %s, %s" % (v(accQ, 16), v(wq[b], 4), v(xf[b], 4), cq))
            for i in range(4):
                e("v_dot2c_f32_bf16 %s, %s, %s" % (v(csq), v(wq[b] + i), v(ones)))
            e("v_mfma_f32_32x32x16_bf16 %s, %s, %s, %s" % (v(accK, 16), v(wk[b], 4), v(xf[b], 4), ck))
            for i in range(4):
                e("v_dot2c_f32_bf16 %s, %s, %s" % (v(csk), v(wk[b] + i), v(ones)))

        def hooksA(what):
            if what == "init":
                e("v_mov_b32 %s, 0" % v(csq))
                e("v_mov_b32 %s, 0" % v(csk))

        loop(True, vmA, lgA, readsA, computeA, hooksA)
        ta = va.alloc("p1a_t")
        adr = va.alloc("p1a_adr")
        e("v_and_b32 %s, 31, %s" % (v(adr), v(L)))
        e("s_lshl_b32 %s, %s, 8" % (s(ST[0]), s(SW)))
        e("s_add_u32 %s, %s, %d" % (s(ST[0]), s(ST[0]), MISC + M_CSA))
        e("v_lshlrev_b32 %s, 2, %s" % (v(adr), v(adr)))
        e("v_add_u32 %s, %s, %s" % (v(adr), s(ST[0]), v(adr)))
        self.xhalf_sum(csq, ta)
        self.xhalf_sum(csk, ta)
        e("ds_write_b32 %s, %s" % (v(adr), v(csq)))
        e("ds_write_b32 %s, %s offset:128" % (v(adr), v(csk)))
        cadr = va.alloc("p1a_cadr")
        e("v_lshrrev_b32 %s, 5, %s" % (v(cadr), v(L)))
        e("v_lshlrev_b32 %s, 4, %s" % (v(cadr), v(cadr)))
        e("v_add_u32 %s, %s, %s" % (v(cadr), s(ST[0]), v(cadr)))
        sadr = va.alloc("p1a_sadr")
        e("v_and_b32 %s, 31, %s" % (v(sadr), v(L)))
        e("s_lshl_b32 %s, %s, 7" % (s(ST[1]), s(SW)))
        e("s_add_u32 %s, %s, %d" % (s(ST[1]), s(ST[1]), MISC + M_RSTD))
        e("v_lshlrev_b32 %s, 2, %s" % (v(sadr), v(sadr)))
        e("v_add_u32 %s, %s, %s" % (v(sadr), s(ST[1]), v(sadr)))
        e("s_waitcnt lgkmcnt(0)")
        e("s_barrier")
        csQ = va.alloc("p1a_csQ", 16, 4)
        csK = va.alloc("p1a_csK", 16, 4)
        rs, mr, fa = va.alloc("p1a_rs"), va.alloc("p1a_mr"), va.alloc("p1a_fa")
        e("ds_read_b32 %s, %s" % (v(rs), v(sadr)))
        e("ds_read_b32 %s, %s offset:512" % (v(mr), v(sadr)))
        e("v_mov_b32 %s, %d" % (v(ta), MISC + M_CTRL))
        e("ds_read_b32 %s, %s" % (v(fa), v(ta)))
        for i in range(4):
            e("ds_read_b128 %s, %s offset:%d" % (v(csQ + 4 * i, 4), v(cadr), 32 * i))
        for i in range(4):
            e("ds_read_b128 %s, %s offset:%d" % (v(csK + 4 * i, 4), v(cadr), 128 + 32 * i))
        e("s_waitcnt lgkmcnt(8)")
        rq, mq = va.alloc("p1a_rq"), va.alloc("p1a_mq")
        e("v_readfirstlane_b32 %s, %s" % (s(SFAST), v(fa)))
        e("v_mul_f32 %s, 0x%x, %s" % (v(rq), fbits(0.25 * LOG2E), v(rs)))
        e("v_mul_f32 %s, 0x%x, %s" % (v(mq), fbits(0.25 * LOG2E), v(mr)))
        for r in range(16):
            e("v_mul_f32 %s, %s, %s" % (v(accK + r), v(accK + r), v(rs)))
        for r in range(16):
            e("v_mul_f32 %s, %s, %s" % (v(accQ + r), v(accQ + r), v(rq)))
        e("s_waitcnt lgkmcnt(0)")
        for r in range(16):
            e("v_fma_f32 %s, -%s, %s, %s" % (v(accK + r), v(mr), v(csK + r), v(accK + r)))
        ka, kb = va.alloc("p1a_ka", 4, 4), va.alloc("p1a_kb", 4, 4)
        for i in range(4):
            e("v_cvt_pk_bf16_f32 %s, %s, %s" % (v(ka + i), v(accK + 2 * i), v(accK + 2 * i + 1)))
        for i in range(4):
            e("v_cvt_pk_bf16_f32 %s, %s, %s" % (v(kb + i), v(accK + 8 + 2 * i), v(accK + 9 + 2 * i)))
        e("s_lshl_b32 %s, %s, 17" % (s(ST[0]), s(SG)))
        e("s_lshl_b32 %s, %s, 12" % (s(ST[1]), s(SM)))
        e("s_add_u32 %s, %s, %s" % (s(ST[0]), s(ST[0]), s(ST[1])))
        e("s_lshl_b32 %s, %s, 10" % (s(ST[1]), s(SW)))
        e("s_add_u32 %s, %s, %s" % (s(ST[0]), s(ST[0]), s(ST[1])))
        e("s_add_u32 %s, %s, %d" % (s(ST[0]), s(ST[0]), WS_K))
        e("s_add_u32 %s, %s, 65536" % (s(ST[1]), s(ST[0])))

        def kst(fl):
            e("buffer_store_dwordx4 %s, %s, %s, %s offen %s" % (v(ka, 4), v(self.vL16), s(S_WS, 4), s(ST[0]), fl))
            e("buffer_store_dwordx4 %s, %s, %s, %s offen %s" % (v(kb, 4), v(self.vL16), s(S_WS, 4), s(ST[1]), fl))
        self.stores_fast_slow(kst)
        for r in range(16):
            e("v_fma_f32 %s, -%s, %s, %s" % (v(accQ + r), v(mq), v(csQ + r), v(accQ + r)))
        qb = va.alloc("p1a_qb", 4, 4)
        for i in range(4):
            e("v_cvt_pk_bf16_f32 %s, %s, %s" % (v(qb + i), v(accQ + 8 + 2 * i), v(accQ + 9 + 2 * i)))
        for i in range(4):
            e("v_cvt_pk_bf16_f32 %s, %s, %s" % (v(self.vQ + i), v(accQ + 2 * i), v(accQ + 2 * i + 1)))
        e("s_lshl_b32 %s, %s, 10" % (s(ST[0]), s(SW)))
        e("s_add_u32 %s, %s, %d" % (s(ST[0]), s(ST[0]), MISC + M_QB))
        e("v_add_u32 %s, %s, %s" % (v(adr), s(ST[0]), v(self.vL16)))
        e("ds_write_b128 %s, %s" % (v(adr), v(qb, 4)))
        e("s_waitcnt vmcnt(0) lgkmcnt(0)")
        e("s_barrier")
        e("s_branch L_p1_join")
        va.free_prefix("p1a_")

        e.label("L_p1_roleB")
        vmB, lgB = self.vm.clone(), self.lg.clone()
        accV = va.alloc("p1b_accV", 16, 4)
        xfb = [va.alloc("p1b_xf%d" % i, 4, 4) for i in range(2)]
        wv = [va.alloc("p1b_wv%d" % i, 4, 4) for i in range(2)]
        s1, s2, csv = va.alloc("p1b_s1"), va.alloc("p1b_s2"), va.alloc("p1b_csv")
        xt = va.alloc("p1b_xt", 2, 2)
        xo = va.alloc("p1b_xo")

        def readsB(st):
            c, ks, b = st // 4, st % 4, st % 2
            xread(xfb[b], c, ks)
            wread(wv[b], c, ks, 2)
            for _ in range(3):
                lgB.issue(("r", st))

        def computeB(st):
            b = st % 2
            cv = "0" if st == 0 else v(accV, 16)
            e("v_mfma_f32_32x32x16_bf16 %s, %s, %s, %s" % (v(accV, 16), v(xfb[b], 4), v(wv[b], 4), cv))
            for i in range(4):
                e("v_dot2c_f32_bf16 %s, %s, %s" % (v(s1), v(xfb[b] + i), v(ones)))
                e("v_dot2c_f32_bf16 %s, %s, %s" % (v(s2), v(xfb[b] + i), v(xfb[b] + i)))
                e("v_dot2c_f32_bf16 %s, %s, %s" % (v(csv), v(wv[b] + i), v(ones)))

        def hooksB(what):
            if what == "init":
                e("v_mov_b32 %s, 0" % v(s1))
                e("v_mov_b32 %s, 0" % v(s2))
                e("v_mov_b32 %s, 0" % v(csv))
            elif what == "first":
                sk = self.lab("xcc_post")
                e("s_cmp_lg_u32 %s, %d" % (s(SW), CTRL_WAVE))
                e("s_cbranch_scc1 %s" % sk)
                e("v_readfirstlane_b32 %s, %s" % (s(SN), v(zz)))
                e("v_readfirstlane_b32 %s, %s" % (s(SN + 1), v(zz + 1)))
                e("s_getreg_b32 %s, hwreg(HW_REG_XCC_ID, 0, 4)" % s(ST[0]))
                e("s_add_u32 %s, %s, 1" % (s(SN), s(SN)))
                e("s_addc_u32 %s, %s, 0" % (s(SN + 1), s(SN + 1)))
                e("s_lshl_b32 %s, %s, 28" % (s(ST[0]), s(ST[0])))
                e("s_add_u32 %s, %s, %s" % (s(SA[4]), s(SN + 1), s(ST[0])))
                e("s_lshl_b32 %s, %s, 11" % (s(ST[1]), s(SG)))
                e("s_add_u32 %s, %s, %d" % (s(SA[5]), s(ST[1]), WS_XT))
                e("s_lshl_b32 %s, %s, 7" % (s(ST[1]), s(SM)))
                e("s_add_u32 %s, %s, %s" % (s(ST[1]), s(ST[1]), s(SA[5])))
                e("v_mov_b32 %s, %s" % (v(xt), s(SN)))
                e("v_mov_b32 %s, %s" % (v(xt + 1), s(SA[4])))
                e("s_mov_b64 exec, 1")
                e("buffer_store_dwordx2 %s, off, %s, %s sc1" % (v(xt, 2), s(S_WS, 4), s(ST[1])))
                e("s_mov_b64 exec, -1")
                e.label(sk)
            elif what == "last_chunk":
                sk = self.lab("xcc_read")
                e("s_cmp_lg_u32 %s, %d" % (s(SW), CTRL_WAVE))
                e("s_cbranch_scc1 %s" % sk)
                e("v_and_b32 %s, 15, %s" % (v(xo), v(L)))
                e("v_lshlrev_b32 %s, 7, %s" % (v(xo), v(xo)))
                e("buffer_load_dwordx2 %s, %s, %s, %s offen sc1" % (v(xt, 2), v(xo), s(S_WS, 4), s(SA[5])))
                e.label(sk)

        e("buffer_load_dwordx2 %s, off, %s, 0 sc1" % (v(zz, 2), s(S_WS, 4)))
        vmB.issue("z")
        loop(False, vmB, lgB, readsB, computeB, hooksB)
        tb = va.alloc("p1b_t")
        rs, mr = va.alloc("p1b_rs"), va.alloc("p1b_mr")
        adr = va.alloc("p1b_adr")
        e("s_nop 1")
        self.xhalf_sum(s1, tb)
        self.xhalf_sum(s2, tb)
        self.xhalf_sum(csv, tb)
        self.ln_stats(s1, s2, tb, rs, mr)
        e("v_and_b32 %s, 31, %s" % (v(adr), v(L)))
        e("s_and_b32 %s, %s, 3" % (s(ST[0]), s(SW)))
        e("s_lshl_b32 %s, %s, 7" % (s(ST[0]), s(ST[0])))
        e("s_add_u32 %s, %s, %d" % (s(ST[0]), s(ST[0]), MISC + M_RSTD))
        e("v_lshlrev_b32 %s, 2, %s" % (v(adr), v(adr)))
        e("v_add_u32 %s, %s, %s" % (v(adr), s(ST[0]), v(adr)))
        e("ds_write_b32 %s, %s" % (v(adr), v(rs)))
        e("ds_write_b32 %s, %s offset:512" % (v(adr), v(mr)))
        sk = self.lab("fast_decide")
        e("s_cmp_lg_u32 %s, %d" % (s(SW), CTRL_WAVE))
        e("s_cbranch_scc1 %s" % sk)
        e("s_waitcnt vmcnt(0)")
        e("v_cmp_ne_u32 vcc, %s, %s" % (s(SN), v(xt)))
        e("v_cmp_ne_u32 %s, %s, %s" % (s(SSAVE, 2), s(SA[4]), v(xt + 1)))
        e("s_nop 1")
        e("s_or_b64 vcc, vcc, %s" % s(SSAVE, 2))
        e("s_cmp_eq_u64 vcc, 0")
        e("s_cselect_b32 %s, %d, 0" % (s(ST[1]), 0 if self.opts.get("noslow_fast") else 1))
        if self.opts.get("force_slow"):
            e("s_mov_b32 %s, 0" % s(ST[1]))
        e("v_mov_b32 %s, %s" % (v(xt), s(ST[1])))
        e("v_mov_b32 %s, 0" % v(xt + 1))
        e("v_mov_b32 %s, %d" % (v(tb), MISC + M_CTRL))
        e("ds_write_b64 %s, %s" % (v(tb), v(xt, 2)))
        e.label(sk)
        cadr = va.alloc("p1b_cadr")
        e("v_lshrrev_b32 %s, 5, %s" % (v(cadr), v(L)))
        e("v_lshlrev_b32 %s, 4, %s" % (v(cadr), v(cadr)))
        e("v_add_u32 %s, %s, %s" % (v(cadr), s(ST[0]), v(cadr)))
        e("s_waitcnt lgkmcnt(0)")
        e("s_barrier")
        rsT = va.alloc("p1b_rsT", 16, 4)
        mrT = va.alloc("p1b_mrT", 16, 4)
        fa = va.alloc("p1b_fa")
        e("v_mov_b32 %s, %d" % (v(tb), MISC + M_CTRL))
        e("ds_read_b32 %s, %s" % (v(fa), v(tb)))
        for i in range(4):
            e("ds_read_b128 %s, %s offset:%d" % (v(rsT + 4 * i, 4), v(cadr), 32 * i))
        for i in range(4):
            e("ds_read_b128 %s, %s offset:%d" % (v(mrT + 4 * i, 4), v(cadr), 512 + 32 * i))
        e("s_waitcnt lgkmcnt(4)")
        e("v_readfirstlane_b32 %s, %s" % (s(SFAST), v(fa)))
        for r in range(16):
            e("v_mul_f32 %s, %s, %s" % (v(accV + r), v(accV + r), v(rsT + r)))
        e("s_waitcnt lgkmcnt(0)")
        for r in range(16):
            e("v_fma_f32 %s, -%s, %s, %s" % (v(accV + r), v(mrT + r), v(csv), v(accV + r)))
        vf = va.alloc("p1b_vf", 8, 4)
        for i in range(8):
            e("v_cvt_pk_bf16_f32 %s, %s, %s" % (v(vf + i), v(accV + 2 * i), v(accV + 2 * i + 1)))
        vo = va.alloc("p1b_vo")
        e("v_bfe_u32 %s, %s, 4, 1" % (v(tb), v(L)))
        e("v_lshlrev_b32 %s, 16, %s" % (v(tb), v(tb)))
        e("v_lshrrev_b32 %s, 5, %s" % (v(vo), v(L)))
        e("v_lshlrev_b32 %s, 8, %s" % (v(vo), v(vo)))
        e("v_add_u32 %s, %s, %s" % (v(vo), v(vo), v(tb)))
        e("v_and_b32 %s, 15, %s" % (v(tb), v(L)))
        e("v_lshl_add_u32 %s, %s, 4, %s" % (v(vo), v(tb), v(vo)))
        e("s_lshl_b32 %s, %s, 17" % (s(ST[0]), s(SG)))
        e("s_lshl_b32 %s, %s, 12" % (s(ST[1]), s(SM)))
        e("s_add_u32 %s, %s, %s" % (s(ST[0]), s(ST[0]), s(ST[1])))
        e("s_and_b32 %s, %s, 3" % (s(ST[1]), s(SW)))
        e("s_lshl_b32 %s, %s, 10" % (s(ST[1]), s(ST[1])))
        e("s_add_u32 %s, %s, %s" % (s(ST[0]), s(ST[0]), s(ST[1])))
        e("s_add_u32 %s, %s, %d" % (s(ST[0]), s(ST[0]), WS_V))

        def vst(fl):
            e("buffer_store_dwordx4 %s, %s, %s, %s offen %s" % (v(vf, 4), v(vo), s(S_WS, 4), s(ST[0]), fl))
            e("buffer_store_dwordx4 %s, %s, %s, %s offen offset:512 %s" % (v(vf + 4, 4), v(vo), s(S_WS, 4), s(ST[0]), fl))
        self.stores_fast_slow(vst)
        e("s_waitcnt vmcnt(0) lgkmcnt(0)")
        e("s_barrier")
        e("s_and_b32 %s, %s, 3" % (s(ST[0]), s(SW)))
        e("s_lshl_b32 %s, %s, 10" % (s(ST[0]), s(ST[0])))
        e("s_add_u32 %s, %s, %d" % (s(ST[0]), s(ST[0]), MISC + M_QB))
        e("v_add_u32 %s, %s, %s" % (v(adr), s(ST[0]), v(self.vL16)))
        e("ds_read_b128 %s, %s" % (v(self.vQ, 4), v(adr)))
        e("s_waitcnt lgkmcnt(0)")
        va.free_prefix("p1b_")
        e.label("L_p1_join")
        va.free_prefix("p1_")
        self.vm.q, self.lg.q = [], []
        self.stamp(1)
        self.sync(0, SG, SM, SG, True)
        e("s_barrier")
        self.stamp(2)

    def attn(self):
        e, va, vm, lg = self.e, self.va, self.vm, self.lg
        L = self.vL
        Q = self.vQ
        S = [va.alloc("at_S0", 16, 4), va.alloc("at_S1", 16, 4)]
        negM = va.alloc("at_negM", 16, 4)
        O = va.alloc("at_O", 16, 4)
        P = va.alloc("at_P", 8, 4)
        Kf = [va.alloc("at_K%d" % i, 4, 4) for i in range(2)]
        Vf = [va.alloc("at_V%d" % i, 8, 4) for i in range(2)]
        ka, vaa = va.alloc("at_ka"), va.alloc("at_va")
        t0, t1 = va.alloc("at_t0"), va.alloc("at_t1")
        sKVg, sKVl, sWOg, sWOl, sHead = SA[0], SA[1], SA[2], SA[3], SA[6]
        wod = va.alloc("at_wod")

        self.gu_setup()
        e("s_lshr_b32 %s, %s, 2" % (s(ST[0]), s(SW)))
        e("s_lshl_b32 %s, %s, 1" % (s(sHead), s(SG)))
        e("s_add_u32 %s, %s, %s" % (s(sHead), s(sHead), s(ST[0])))
        e("s_lshl_b32 %s, %s, 16" % (s(sKVg), s(sHead)))
        e("s_bfe_u32 %s, %s, 0x10001" % (s(ST[1]), s(SW)))
        e("s_mul_i32 %s, %s, %d" % (s(ST[2]), s(ST[1]), WS_V - WS_K))
        e("s_add_u32 %s, %s, %s" % (s(sKVg), s(sKVg), s(ST[2])))
        e("s_and_b32 %s, %s, 1" % (s(ST[2]), s(SW)))
        e("s_lshl_b32 %s, %s, 11" % (s(ST[2]), s(ST[2])))
        e("s_add_u32 %s, %s, %s" % (s(sKVg), s(sKVg), s(ST[2])))
        e("s_add_u32 %s, %s, %d" % (s(sKVg), s(sKVg), WS_K))
        e("s_lshl_b32 %s, %s, 13" % (s(sKVl), s(ST[0])))
        e("s_lshl_b32 %s, %s, 12" % (s(ST[1]), s(ST[1])))
        e("s_add_u32 %s, %s, %s" % (s(sKVl), s(sKVl), s(ST[1])))
        e("s_add_u32 %s, %s, %s" % (s(sKVl), s(sKVl), s(ST[2])))
        e("s_and_b32 %s, %s, 7" % (s(ST[1]), s(SM)))
        e("s_lshl_b32 %s, %s, 7" % (s(ST[1]), s(ST[1])))
        e("s_lshl_b32 %s, %s, 6" % (s(ST[2]), s(ST[0])))
        e("s_add_u32 %s, %s, %s" % (s(ST[1]), s(ST[1]), s(ST[2])))
        e("s_and_b32 %s, %s, 3" % (s(ST[2]), s(SW)))
        e("s_lshl_b32 %s, %s, 17" % (s(sWOg), s(ST[2])))
        e("s_add_u32 %s, %s, %s" % (s(sWOg), s(sWOg), s(ST[1])))
        e("s_lshl_b32 %s, %s, 15" % (s(sWOl), s(ST[0])))
        e("s_lshl_b32 %s, %s, 13" % (s(ST[2]), s(ST[2])))
        e("s_add_u32 %s, %s, %s" % (s(sWOl), s(sWOl), s(ST[2])))
        e("s_add_u32 %s, %s, %d" % (s(sWOl), s(sWOl), WO_LDS))
        e("s_lshl_b32 %s, %s, 13" % (s(ST[0]), s(ST[0])))
        e("v_add_u32 %s, %s, %s" % (v(ka), s(ST[0]), v(self.vL16)))
        e("v_lshrrev_b32 %s, 5, %s" % (v(t0), v(L)))
        e("v_lshlrev_b32 %s, 8, %s" % (v(t0), v(t0)))
        e("v_and_b32 %s, 15, %s" % (v(t1), v(L)))
        e("v_lshl_add_u32 %s, %s, 4, %s" % (v(t0), v(t1), v(t0)))
        e("s_add_u32 %s, %s, 4096" % (s(ST[0]), s(ST[0])))
        e("v_add_u32 %s, %s, %s" % (v(vaa), s(ST[0]), v(t0)))

        def kv_issue(c):
            self.dma2(S_WS, self.vL16, (sKVg, c * 4096), (sKVl, (c % 4) * KV_SLOT), ("kv", c), flags="sc1")

        e.label("L_attn_begin")
        for c in range(4):
            kv_issue(c)
        for i in range(8):
            self.dma(S_WO, self.vW64, (sWOg, i * 16384), (sWOl, i * 1024), "wo")
        self.gu_prefetch_first()
        for b in range(2):
            for i in range(8):
                e("v_mov_b32 %s, 0x%x" % (v(Vf[b] + i), ONES))

        def kread(t):
            c, i = t // 4, t % 4
            e("ds_read_b128 %s, %s offset:%d" % (v(Kf[t % 2], 4), v(ka), (c % 4) * KV_SLOT + i * 1024))
            lg.issue(("k", t))

        def vread(t):
            c, i = t // 4, t % 4
            e("s_mov_b64 exec, %s" % s(SHALF, 2))
            for f in range(2):
                e("ds_read_b128 %s, %s offset:%d" % (v(Vf[t % 2] + 4 * f, 4), v(vaa), (c % 4) * KV_SLOT + i * 1024 + f * 512))
                lg.issue(("v", t))
            e("s_mov_b64 exec, -1")

        vm.wait(("kv", 0))
        e("s_barrier")
        kread(0)
        kread(1)
        vread(0)
        lg.wait(("k", 0))
        skipm = self.lab("skip_max")
        e("s_cmp_lg_u32 %s, 0" % s(SREDO))
        e("s_cbranch_scc1 %s" % skipm)
        e("v_mfma_f32_32x32x16_bf16 %s, %s, %s, 0" % (v(S[0], 16), v(Kf[0], 4), v(Q, 4)))
        e("s_nop 11")
        e("v_max3_f32 %s, %s, %s, %s" % (v(t0), v(S[0]), v(S[0] + 1), v(S[0] + 2)))
        for i in range(3, 15, 2):
            e("v_max3_f32 %s, %s, %s, %s" % (v(t0), v(t0), v(S[0] + i), v(S[0] + i + 1)))
        e("v_max_f32 %s, %s, %s" % (v(t0), v(t0), v(S[0] + 15)))
        e("v_mov_b32 %s, %s" % (v(t1), v(t0)))
        e("s_nop 1")
        e("v_permlane32_swap_b32 %s, %s" % (v(t0), v(t1)))
        e("v_max_f32 %s, %s, %s" % (v(t0), v(t0), v(t1)))
        for i in range(16):
            e("v_sub_f32 %s, 0, %s" % (v(negM + i), v(t0)))
        e.label(skipm)
        e("s_nop 1")
        e("v_mfma_f32_32x32x16_bf16 %s, %s, %s, %s" % (v(S[0], 16), v(Kf[0], 4), v(Q, 4), v(negM, 16)))
        e("s_nop 7")

        def pv(t, f):
            first = (t == 0 and f == 0)
            e("v_mfma_f32_32x32x16_bf16 %s, %s, %s, %s" % (v(O, 16), v(Vf[t % 2] + 4 * f, 4), v(P + 4 * f, 4), "0" if first else v(O, 16)))

        NT = 64
        prio = self.opts.get("prio", 1)
        for t in range(NT):
            cur = S[t % 2]
            ex = lambda i: e("v_exp_f32 %s, %s" % (v(cur + i), v(cur + i)))
            cv = lambda i: e("v_cvt_pk_bf16_f32 %s, %s, %s" % (v(P + i), v(cur + 2 * i), v(cur + 2 * i + 1)))
            if prio:
                e("s_setprio %d" % (3 - ((t - 2) % 4)))
            lg.wait_all()
            if t + 1 < NT:
                e("v_mfma_f32_32x32x16_bf16 %s, %s, %s, %s" % (v(S[(t + 1) % 2], 16), v(Kf[(t + 1) % 2], 4), v(Q, 4), v(negM, 16)))
            refill = None
            if t % 4 == 2 and t // 4 + 1 <= 15:
                c = t // 4
                vm.wait(("kv", c + 1))
                e("s_barrier")
                if c >= 1 and c + 3 <= 15:
                    refill = c + 3
            if t + 2 < NT:
                kread(t + 2)
            for i in range(4):
                ex(i)
            if t > 0:
                pv(t - 1, 1)
            if t + 1 < NT:
                vread(t + 1)
            cv(0); ex(4); ex(5); cv(1); ex(6); ex(7); cv(2); ex(8); cv(3); ex(9); ex(10)
            pv(t, 0)
            if refill is not None:
                kv_issue(refill)
            ex(11); cv(4); ex(12); ex(13); cv(5); ex(14); ex(15); cv(6)
            cv(7)
        e("s_setprio 0")
        e("s_nop 0")
        pv(NT - 1, 1)
        self.stamp(3)
        e("s_nop 11")
        chk = self.lab("chk_done")
        e("v_rcp_f32 %s, %s" % (v(t1), v(O + 8)))
        e("s_cmp_lg_u32 %s, 0" % s(SREDO))
        e("s_cbranch_scc1 %s" % chk)
        e("s_mov_b32 %s, 0x%x" % (s(ST[0]), fbits(2.0 ** 64)))
        e("v_cmp_nge_f32 vcc, %s, %s" % (s(ST[0]), v(O + 8)))
        e("s_nop 1")
        e("s_cbranch_vccz %s" % chk)
        e("v_mov_b32 %s, %d" % (v(t0), MISC + M_CTRL + 4))
        e("v_mov_b32 %s, 1" % v(S[0]))
        e("ds_write_b32 %s, %s" % (v(t0), v(S[0])))
        e.label(chk)
        for i in range(8):
            e("v_mul_f32 %s, %s, %s" % (v(O + i), v(O + i), v(t1)))
        for i in range(4):
            e("v_cvt_pk_bf16_f32 %s, %s, %s" % (v(P + i), v(O + 2 * i), v(O + 2 * i + 1)))
        e("s_lshl_b32 %s, %s, 2" % (s(ST[0]), s(SM)))
        e("s_and_b32 %s, %s, 3" % (s(ST[1]), s(SW)))
        e("s_add_u32 %s, %s, %s" % (s(ST[0]), s(ST[0]), s(ST[1])))
        e("s_lshl_b32 %s, %s, 5" % (s(ST[0]), s(ST[0])))
        e("s_add_u32 %s, %s, %s" % (s(ST[0]), s(ST[0]), s(sHead)))
        e("s_lshl_b32 %s, %s, 10" % (s(ST[0]), s(ST[0])))
        e("s_add_u32 %s, %s, %d" % (s(ST[0]), s(ST[0]), WS_O))
        e("buffer_store_dwordx4 %s, %s, %s, %s offen sc1" % (v(P, 4), v(self.vL16), s(S_WS, 4), s(ST[0])))
        e("s_waitcnt vmcnt(0) lgkmcnt(0)")
        vm.q, lg.q = [], []
        e("s_barrier")
        e("v_mov_b32 %s, %d" % (v(t0), MISC + M_CTRL + 4))
        e("ds_read_b32 %s, %s" % (v(t1), v(t0)))
        e("s_waitcnt lgkmcnt(0)")
        e("v_readfirstlane_b32 %s, %s" % (s(ST[0]), v(t1)))
        e("s_nop 1")
        e("s_cmp_eq_u32 %s, 0" % s(ST[0]))
        e("s_cbranch_scc1 L_attn_ok")
        e("s_cmp_lg_u32 %s, 0" % s(SREDO))
        e("s_cbranch_scc1 L_attn_ok")
        e("s_mov_b32 %s, 1" % s(SREDO))
        e("s_lshl_b32 %s, %s, 16" % (s(ST[0]), s(sHead)))
        e("s_add_u32 %s, %s, %d" % (s(ST[0]), s(ST[0]), WS_K))
        e("s_mov_b32 %s, 64" % s(ST[1]))
        e("v_mov_b32 %s, 0xff800000" % v(t0))
        e.label("L_exact_max")
        e("buffer_load_dwordx4 %s, %s, %s, %s offen sc1" % (v(Kf[0], 4), v(self.vL16), s(S_WS, 4), s(ST[0])))
        e("s_add_u32 %s, %s, 1024" % (s(ST[0]), s(ST[0])))
        e("s_waitcnt vmcnt(0)")
        e("v_mfma_f32_32x32x16_bf16 %s, %s, %s, 0" % (v(S[0], 16), v(Kf[0], 4), v(Q, 4)))
        e("s_nop 11")
        for i in range(0, 16, 2):
            e("v_max3_f32 %s, %s, %s, %s" % (v(t0), v(t0), v(S[0] + i), v(S[0] + i + 1)))
        e("s_sub_u32 %s, %s, 1" % (s(ST[1]), s(ST[1])))
        e("s_cmp_lg_u32 %s, 0" % s(ST[1]))
        e("s_cbranch_scc1 L_exact_max")
        e("v_mov_b32 %s, %s" % (v(t1), v(t0)))
        e("s_nop 1")
        e("v_permlane32_swap_b32 %s, %s" % (v(t0), v(t1)))
        e("v_max_f32 %s, %s, %s" % (v(t0), v(t0), v(t1)))
        for i in range(16):
            e("v_sub_f32 %s, 0, %s" % (v(negM + i), v(t0)))
        e("s_branch L_attn_begin")
        e.label("L_attn_ok")
        va.free_prefix("at_")
        va.free("Q")

    def gu_setup(self):
        e, va = self.e, self.va
        L = self.vL
        self.sGUg, self.sGUl, self.sFs = SA[8], SA[9], SA[10]
        e("s_min_u32 %s, %s, 6" % (s(ST[0]), s(SM)))
        e("s_mul_i32 %s, %s, 5" % (s(self.sFs), s(SM)))
        e("s_add_u32 %s, %s, %s" % (s(self.sFs), s(self.sFs), s(ST[0])))
        e("s_and_b32 %s, %s, 3" % (s(ST[0]), s(SW)))
        e("s_mul_i32 %s, %s, %d" % (s(self.sGUg), s(ST[0]), 16 * 2752))
        e("s_lshl_b32 %s, %s, 5" % (s(ST[1]), s(self.sFs)))
        e("s_add_u32 %s, %s, %s" % (s(self.sGUg), s(self.sGUg), s(ST[1])))
        e("s_mul_i32 %s, %s, 3072" % (s(self.sGUl), s(ST[0])))
        e("s_cmp_ge_u32 %s, 4" % s(SW))
        e("s_cselect_b32 %s, %d, 0" % (s(ST[1]), GU_UP))
        e("s_cselect_b32 %s, %s, %s" % (s(S_WGU), s(S_PU), s(S_PG)))
        e("s_cselect_b32 %s, %s, %s" % (s(S_WGU + 1), s(S_PU + 1), s(S_PG + 1)))
        e("s_add_u32 %s, %s, %s" % (s(self.sGUl), s(self.sGUl), s(ST[1])))
        e("s_mov_b32 %s, %d" % (s(S_WGU + 2), 512 * 1376 * 2))
        e("s_mov_b32 %s, 0x20000" % s(S_WGU + 3))
        self.gud = [va.alloc("gud%d" % q) for q in range(3)]
        a, b = va.alloc("gu_ta"), va.alloc("gu_tb")
        for q in range(3):
            e("v_add_u32 %s, %d, %s" % (v(a), 64 * q, v(L)))
            e("v_mul_u32_u24 %s, 171, %s" % (v(b), v(a)))
            e("v_lshrrev_b32 %s, 11, %s" % (v(b), v(b)))
            e("v_mul_u32_u24 %s, 12, %s" % (v(self.gud[q]), v(b)))
            e("v_sub_u32 %s, %s, %s" % (v(a), v(a), v(self.gud[q])))
            e("v_mul_u32_u24 %s, 2752, %s" % (v(b), v(b)))
            e("v_lshl_add_u32 %s, %s, 4, %s" % (v(self.gud[q]), v(a), v(b)))
        va.free("gu_ta", "gu_tb")

    def gu_w_issue(self, c):
        for q in range(3):
            self.dma(S_WGU, self.gud[q], (self.sGUg, c * 64 * 2752), (self.sGUl, GU_WSLOT[c % 4] + q * 1024), ("gw", c))

    def gu_prefetch_first(self):
        self.gu_w_issue(0)

    def tile64_roles(self):
        e, va = self.e, self.va
        L = self.vL
        self.sTT, self.sCB = SA[12], SA[13]
        e("s_lshl_b32 %s, %s, 2" % (s(self.sTT), s(SG)))
        e("s_lshr_b32 %s, %s, 3" % (s(ST[0]), s(SM)))
        e("s_lshl_b32 %s, %s, 1" % (s(ST[0]), s(ST[0])))
        e("s_add_u32 %s, %s, %s" % (s(self.sTT), s(self.sTT), s(ST[0])))
        e("s_and_b32 %s, %s, 1" % (s(ST[0]), s(SW)))
        e("s_add_u32 %s, %s, %s" % (s(self.sTT), s(self.sTT), s(ST[0])))
        e("s_and_b32 %s, %s, 7" % (s(self.sCB), s(SM)))
        e("s_lshl_b32 %s, %s, 6" % (s(self.sCB), s(self.sCB)))
        e("s_bfe_u32 %s, %s, 0x10001" % (s(ST[0]), s(SW)))
        e("s_lshl_b32 %s, %s, 5" % (s(ST[0]), s(ST[0])))
        e("s_add_u32 %s, %s, %s" % (s(self.sCB), s(self.sCB), s(ST[0])))
        e("s_lshr_b32 %s, %s, 2" % (s(ST[0]), s(SW)))
        e("s_lshl_b32 %s, %s, 4" % (s(ST[0]), s(ST[0])))
        e("s_add_u32 %s, %s, %s" % (s(self.sCB), s(self.sCB), s(ST[0])))
        self.vTrP = va.alloc("TrP")
        a = va.alloc("t64_a")
        e("v_lshrrev_b32 %s, 5, %s" % (v(a), v(L)))
        e("v_lshlrev_b32 %s, 8, %s" % (v(a), v(a)))
        e("v_add_u32 %s, %s, %s" % (v(self.vTrP), v(a), v(self.vTrC)))
        e("s_lshr_b32 %s, %s, 2" % (s(ST[0]), s(SW)))
        e("v_bfe_u32 %s, %s, 4, 1" % (v(a), v(L)))
        e("v_xor_b32 %s, %s, %s" % (v(a), s(ST[0]), v(a)))
        e("v_lshl_add_u32 %s, %s, 5, %s" % (v(self.vTrP), v(a), v(self.vTrP)))
        self.vRow = va.alloc("Row")
        e("v_and_b32 %s, 31, %s" % (v(a), v(L)))
        e("v_lshlrev_b32 %s, 10, %s" % (v(self.vRow), v(a)))
        e("v_lshrrev_b32 %s, 5, %s" % (v(a), v(L)))
        e("v_lshl_add_u32 %s, %s, 4, %s" % (v(self.vRow), v(a), v(self.vRow)))
        self.sRow = SA[14]
        e("s_lshl_b32 %s, %s, 15" % (s(self.sRow), s(self.sTT)))
        e("s_lshl_b32 %s, %s, 1" % (s(ST[0]), s(self.sCB)))
        e("s_add_u32 %s, %s, %s" % (s(self.sRow), s(self.sRow), s(ST[0])))
        va.free("t64_a")

    def exchange_halves(self, acc, base):
        e, va = self.e, self.va
        a, b = va.alloc("xc_a"), va.alloc("xc_b")
        r = va.alloc("xc_r", 8, 4)
        e("s_lshl_b32 %s, %s, 11" % (s(ST[0]), s(SW)))
        e("s_add_u32 %s, %s, %d" % (s(ST[1]), s(ST[0]), base))
        e("s_xor_b32 %s, %s, %d" % (s(ST[0]), s(ST[0]), 4 << 11))
        e("s_add_u32 %s, %s, %d" % (s(ST[0]), s(ST[0]), base))
        e("v_add_u32 %s, %s, %s" % (v(a), s(ST[1]), v(self.vL16)))
        e("v_add_u32 %s, %s, %s" % (v(b), s(ST[0]), v(self.vL16)))
        e("s_nop 7")
        e("ds_write_b128 %s, %s" % (v(a), v(acc + 8, 4)))
        e("ds_write_b128 %s, %s offset:1024" % (v(a), v(acc + 12, 4)))
        e("s_waitcnt lgkmcnt(0)")
        e("s_barrier")
        e("ds_read_b128 %s, %s" % (v(r, 4), v(b)))
        e("ds_read_b128 %s, %s offset:1024" % (v(r + 4, 4), v(b)))
        e("s_waitcnt lgkmcnt(0)")
        for i in range(8):
            e("v_add_f32 %s, %s, %s" % (v(acc + i), v(acc + i), v(r + i)))
        va.free("xc_a", "xc_b", "xc_r")

    def add_packed(self, acc, pk):
        e, va = self.e, self.va
        a = va.alloc("ap_a")
        for i in range(4):
            e("v_lshlrev_b32 %s, 16, %s" % (v(a), v(pk + i)))
            e("v_add_f32 %s, %s, %s" % (v(acc + 2 * i), v(acc + 2 * i), v(a)))
            e("v_and_b32 %s, 0xffff0000, %s" % (v(a), v(pk + i)))
            e("v_add_f32 %s, %s, %s" % (v(acc + 2 * i + 1), v(acc + 2 * i + 1), v(a)))
        va.free("ap_a")

    def oproj(self):
        e, va, vm, lg = self.e, self.va, self.vm, self.lg
        self.tile64_roles()
        xres = va.alloc("op_x", 4, 4)

        def zupdate(a):
            sk = self.lab("zupd")
            e("s_cmp_lg_u32 s2, 0")
            e("s_cbranch_scc1 %s" % sk)
            e("s_mov_b64 exec, 1")
            e("buffer_store_dwordx2 %s, off, %s, 0 sc1" % (v(a, 2), s(S_WS, 4)))
            e.label(sk)
        self.sync(1, SM, SG, SG, False, after_poll=zupdate)
        e("s_barrier")
        self.stamp(4)
        sOg, sOl = SA[0], SA[1]
        e("s_lshl_b32 %s, %s, 2" % (s(ST[0]), s(SG)))
        e("s_lshr_b32 %s, %s, 3" % (s(ST[1]), s(SM)))
        e("s_lshl_b32 %s, %s, 1" % (s(ST[1]), s(ST[1])))
        e("s_add_u32 %s, %s, %s" % (s(ST[0]), s(ST[0]), s(ST[1])))
        e("s_and_b32 %s, %s, 1" % (s(ST[1]), s(SW)))
        e("s_add_u32 %s, %s, %s" % (s(ST[0]), s(ST[0]), s(ST[1])))
        e("s_lshl_b32 %s, %s, 15" % (s(sOg), s(ST[0])))
        e("s_lshl_b32 %s, %s, 15" % (s(sOl), s(ST[1])))
        e("s_bfe_u32 %s, %s, 0x10001" % (s(ST[1]), s(SW)))
        e("s_lshl_b32 %s, %s, 14" % (s(ST[1]), s(ST[1])))
        e("s_lshr_b32 %s, %s, 2" % (s(ST[2]), s(SW)))
        e("s_lshl_b32 %s, %s, 11" % (s(ST[2]), s(ST[2])))
        e("s_add_u32 %s, %s, %s" % (s(ST[1]), s(ST[1]), s(ST[2])))
        e("s_add_u32 %s, %s, %s" % (s(sOl), s(sOl), s(ST[1])))
        e("s_add_u32 %s, %s, %s" % (s(sOg), s(sOg), s(ST[1])))
        e("s_add_u32 %s, %s, %d" % (s(sOg), s(sOg), WS_O))
        for cc in range(4):
            self.dma2(S_WS, self.vL16, (sOg, cc * 4096), (sOl, cc * 4096), ("o", cc), flags="sc1")
        e("buffer_load_dwordx4 %s, %s, %s, %s offen" % (v(xres, 4), v(self.vRow), s(S_X, 4), s(self.sRow)))
        vm.issue("xres")
        oa, wa = va.alloc("op_oa"), va.alloc("op_wa")
        e("s_and_b32 %s, %s, 1" % (s(ST[0]), s(SW)))
        e("s_lshl_b32 %s, %s, 15" % (s(ST[0]), s(ST[0])))
        e("s_lshr_b32 %s, %s, 2" % (s(ST[1]), s(SW)))
        e("s_lshl_b32 %s, %s, 14" % (s(ST[1]), s(ST[1])))
        e("s_add_u32 %s, %s, %s" % (s(ST[0]), s(ST[0]), s(ST[1])))
        e("v_add_u32 %s, %s, %s" % (v(oa), s(ST[0]), v(self.vL16)))
        e("s_bfe_u32 %s, %s, 0x10001" % (s(ST[0]), s(SW)))
        e("s_lshl_b32 %s, %s, 15" % (s(ST[0]), s(ST[0])))
        e("s_add_u32 %s, %s, %s" % (s(ST[0]), s(ST[0]), s(ST[1])))
        e("s_add_u32 %s, %s, %d" % (s(ST[0]), s(ST[0]), WO_LDS))
        e("v_add_u32 %s, %s, %s" % (v(wa), s(ST[0]), v(self.vTrP)))
        acc = va.alloc("op_acc", 16, 4)
        of = [va.alloc("op_of%d" % i, 4, 4) for i in range(2)]
        wf = [va.alloc("op_wf%d" % i, 4, 4) for i in range(2)]

        def reads(st):
            b = st % 2
            e("ds_read_b128 %s, %s offset:%d" % (v(of[b], 4), v(oa), st * 1024))
            e("ds_read_b64_tr_b16 %s, %s offset:%d" % (v(wf[b], 2), v(wa), st * 1024))
            e("ds_read_b64_tr_b16 %s, %s offset:%d" % (v(wf[b] + 2, 2), v(wa), st * 1024 + 512))
            for _ in range(3):
                lg.issue(("r", st))

        vm.wait(("o", 0))
        e("s_barrier")
        reads(0)
        for st in range(16):
            nxt = st + 1
            if nxt < 16:
                if nxt % 4 == 0:
                    vm.wait(("o", nxt // 4))
                    e("s_barrier")
                reads(nxt)
                lg.wait(("r", st))
            else:
                lg.wait_all()
            b = st % 2
            e("v_mfma_f32_32x32x16_bf16 %s, %s, %s, %s" % (v(acc, 16), v(wf[b], 4), v(of[b], 4), "0" if st == 0 else v(acc, 16)))
        vm.wait("xres")
        e("s_barrier")
        e("v_permlane32_swap_b32 %s, %s" % (v(xres), v(xres + 2)))
        e("v_permlane32_swap_b32 %s, %s" % (v(xres + 1), v(xres + 3)))
        self.exchange_halves(acc, XCH_OP)
        self.add_packed(acc, xres)
        self.vHF = va.alloc("HF", 4, 4)
        for i in range(4):
            e("v_cvt_pk_bf16_f32 %s, %s, %s" % (v(self.vHF + i), v(acc + 2 * i), v(acc + 2 * i + 1)))
        e("s_lshl_b32 %s, %s, 15" % (s(ST[0]), s(self.sTT)))
        e("s_lshl_b32 %s, %s, 6" % (s(ST[1]), s(self.sCB)))
        e("s_add_u32 %s, %s, %s" % (s(ST[0]), s(ST[0]), s(ST[1])))
        e("s_add_u32 %s, %s, %d" % (s(ST[0]), s(ST[0]), WS_H))

        def hst(fl):
            e("buffer_store_dwordx4 %s, %s, %s, %s offen %s" % (v(self.vHF, 4), v(self.vL16), s(S_WS, 4), s(ST[0]), fl))
        self.stores_fast_slow(hst)
        e("s_waitcnt vmcnt(0)")
        vm.q = []
        e("s_barrier")
        va.free_prefix("op_")
        self.stamp(5)

        def pre3():
            for c in range(1, 4):
                self.gu_w_issue(c)
        self.sync(2, SG, SM, SG, True, prefetch=pre3)
        e("s_barrier")
        self.stamp(6)

    def gateup(self):
        e, va, vm, lg = self.e, self.va, self.vm, self.lg
        L = self.vL
        sHg, sHl = SA[0], SA[1]
        e("s_lshl_b32 %s, %s, 2" % (s(ST[0]), s(SG)))
        e("s_lshr_b32 %s, %s, 1" % (s(ST[1]), s(SW)))
        e("s_add_u32 %s, %s, %s" % (s(ST[0]), s(ST[0]), s(ST[1])))
        e("s_lshl_b32 %s, %s, 15" % (s(sHg), s(ST[0])))
        e("s_and_b32 %s, %s, 1" % (s(ST[2]), s(SW)))
        e("s_lshl_b32 %s, %s, 11" % (s(ST[2]), s(ST[2])))
        e("s_add_u32 %s, %s, %s" % (s(sHg), s(sHg), s(ST[2])))
        e("s_add_u32 %s, %s, %d" % (s(sHg), s(sHg), WS_H))
        e("s_lshl_b32 %s, %s, 12" % (s(sHl), s(ST[1])))
        e("s_add_u32 %s, %s, %s" % (s(sHl), s(sHl), s(ST[2])))

        def h_issue(c):
            self.dma2(S_WS, self.vL16, (sHg, c * 4096), (sHl, GU_HSLOT[c % 3]), ("gh", c), flags="sc1")
        for c in range(3):
            h_issue(c)
        sF = [SA[2], SA[3], SA[4]]
        e("s_and_b32 %s, %s, 3" % (s(ST[0]), s(SW)))
        e("s_lshr_b32 %s, %s, 2" % (s(ST[1]), s(SW)))
        e("s_mul_i32 %s, %s, 3" % (s(ST[1]), s(ST[1])))
        for j in range(3):
            e("s_add_u32 %s, %s, %d" % (s(ST[2]), s(ST[0]), j))
            e("s_cmp_ge_u32 %s, 3" % s(ST[2]))
            e("s_cselect_b32 %s, 3, 0" % s(ST[3]))
            e("s_sub_u32 %s, %s, %s" % (s(ST[2]), s(ST[2]), s(ST[3])))
            e("s_cmp_ge_u32 %s, 3" % s(ST[2]))
            e("s_cselect_b32 %s, 3, 0" % s(ST[3]))
            e("s_sub_u32 %s, %s, %s" % (s(ST[2]), s(ST[2]), s(ST[3])))
            e("s_add_u32 %s, %s, %s" % (s(sF[j]), s(ST[2]), s(ST[1])))
        t0, t1 = va.alloc("gu_t0"), va.alloc("gu_t1")
        wa = [[va.alloc("gu_wa%d%d" % (b, j)) for j in range(3)] for b in range(2)]
        e("v_lshrrev_b32 %s, 5, %s" % (v(t0), v(L)))
        e("v_lshlrev_b32 %s, 2, %s" % (v(t0), v(t0)))
        e("v_bfe_u32 %s, %s, 2, 2" % (v(t1), v(L)))
        e("v_add_u32 %s, %s, %s" % (v(t0), v(t0), v(t1)))
        e("v_mul_u32_u24 %s, 192, %s" % (v(t0), v(t0)))
        e("v_and_b32 %s, 3, %s" % (v(t1), v(L)))
        e("v_lshl_add_u32 %s, %s, 3, %s" % (v(t0), v(t1), v(t0)))
        e("v_bfe_u32 %s, %s, 4, 1" % (v(t1), v(L)))
        e("v_mul_u32_u24 %s, %d, %s" % (v(t1), GU_UP, v(t1)))
        e("v_add_u32 %s, %s, %s" % (v(t0), v(t0), v(t1)))
        for j in range(3):
            e("s_lshl_b32 %s, %s, 5" % (s(ST[2]), s(sF[j])))
            e("v_add_u32 %s, %s, %s" % (v(wa[0][j]), s(ST[2]), v(t0)))
            e("v_add_u32 %s, %d, %s" % (v(wa[1][j]), GU_WSLOT[0], v(wa[0][j])))
        ha = [va.alloc("gu_ha0"), va.alloc("gu_ha1")]
        e("s_lshl_b32 %s, %s, 12" % (s(ST[2]), s(ST[0])))
        e("s_add_u32 %s, %s, %d" % (s(ST[2]), s(ST[2]), GU_HSLOT[0]))
        e("v_add_u32 %s, %s, %s" % (v(ha[0]), s(ST[2]), v(self.vL16)))
        acc = [va.alloc("gu_acc%d" % j, 16, 4) for j in range(3)]
        hf = [va.alloc("gu_hf%d" % i, 4, 4) for i in range(2)]
        wf = [[va.alloc("gu_wf%d%d" % (i, j), 4, 4) for j in range(3)] for i in range(2)]
        ones, s1, s2, cs = va.alloc("gu_ones"), va.alloc("gu_s1"), va.alloc("gu_s2"), va.alloc("gu_cs")
        e("v_mov_b32 %s, 0x%x" % (v(ones), ONES))
        for r in (s1, s2, cs):
            e("v_mov_b32 %s, 0" % v(r))

        def reads(st):
            c, ks, b = st // 4, st % 4, st % 2
            e("ds_read_b128 %s, %s offset:%d" % (v(hf[b], 4), v(ha[0]), (c % 3) * 16384 + ks * 1024))
            slot = c % 4
            base, off = (1, 0) if slot == 0 else (0, GU_WSLOT[slot])
            for j in range(3):
                o = off + ks * 3072
                e("ds_read_b64_tr_b16 %s, %s offset:%d" % (v(wf[b][j], 2), v(wa[base][j]), o))
                e("ds_read_b64_tr_b16 %s, %s offset:%d" % (v(wf[b][j] + 2, 2), v(wa[base][j]), o + 1536))
            for _ in range(7):
                lg.issue(("r", st))

        def compute(st):
            b = st % 2
            for j in range(3):
                e("v_mfma_f32_32x32x16_bf16 %s, %s, %s, %s" % (v(acc[j], 16), v(wf[b][j], 4), v(hf[b], 4), "0" if st == 0 else v(acc[j], 16)))
                if j == 0:
                    for i in range(4):
                        e("v_dot2c_f32_bf16 %s, %s, %s" % (v(cs), v(wf[b][0] + i), v(ones)))
                elif j == 1:
                    for i in range(4):
                        e("v_dot2c_f32_bf16 %s, %s, %s" % (v(s1), v(hf[b] + i), v(ones)))
                else:
                    for i in range(4):
                        e("v_dot2c_f32_bf16 %s, %s, %s" % (v(s2), v(hf[b] + i), v(hf[b] + i)))

        vm.wait([("gw", 0), ("gh", 0)])
        e("s_barrier")
        reads(0)
        for st in range(32):
            nxt = st + 1
            refill = None
            if nxt < 32:
                if nxt % 4 == 0:
                    c = nxt // 4
                    lg.wait_all()
                    vm.wait([("gw", c), ("gh", c)])
                    e("s_barrier")
                    refill = c
                reads(nxt)
                lg.wait(("r", st))
            else:
                lg.wait_all()
            compute(st)
            if refill is not None:
                if refill + 2 <= 7:
                    h_issue(refill + 2)
                if refill + 3 <= 7:
                    self.gu_w_issue(refill + 3)
        self.xhalf_sum(cs, t0)
        e("v_and_b32 %s, 31, %s" % (v(t1), v(L)))
        e("v_lshlrev_b32 %s, 2, %s" % (v(t1), v(t1)))
        e("s_lshl_b32 %s, %s, 7" % (s(ST[2]), s(sF[0])))
        e("s_add_u32 %s, %s, %d" % (s(ST[2]), s(ST[2]), MISC + M_CS2))
        e("v_add_u32 %s, %s, %s" % (v(t1), s(ST[2]), v(t1)))
        e("ds_write_b32 %s, %s" % (v(t1), v(cs)))
        self.xhalf_sum(s1, t0)
        self.xhalf_sum(s2, t0)
        rs, mr = va.alloc("gu_rs"), va.alloc("gu_mr")
        self.ln_stats(s1, s2, t0, rs, mr)
        e("s_waitcnt lgkmcnt(0)")
        e("s_barrier")
        self.stamp(7)
        self.dn_setup()
        for c in range(2):
            self.dn_w_issue(c)
        csr = va.alloc("gu_csr", 16, 4)
        ca = va.alloc("gu_ca")
        tg, tu, te = va.alloc("gu_tg", 8, 4), va.alloc("gu_tu", 8, 4), va.alloc("gu_te", 8, 4)
        pk = va.alloc("gu_pk", 4, 4)
        e("v_lshrrev_b32 %s, 5, %s" % (v(t0), v(L)))
        e("v_lshlrev_b32 %s, 4, %s" % (v(t0), v(t0)))
        sAo, sCnt = SA[5], SA[7]
        e("s_lshl_b32 %s, %s, 2" % (s(ST[0]), s(SG)))
        e("s_and_b32 %s, %s, 3" % (s(ST[1]), s(SW)))
        e("s_add_u32 %s, %s, %s" % (s(ST[0]), s(ST[0]), s(ST[1])))
        e("s_mul_i32 %s, %s, 86" % (s(ST[0]), s(ST[0])))
        e("s_add_u32 %s, %s, %s" % (s(ST[0]), s(ST[0]), s(self.sFs)))
        e("s_lshl_b32 %s, %s, 10" % (s(sAo), s(ST[0])))
        e("s_add_u32 %s, %s, %d" % (s(sAo), s(sAo), WS_A))
        e("s_cmp_lt_u32 %s, 6" % s(SM))
        e("s_cselect_b32 %s, 6, 5" % s(sCnt))
        for j in range(3):
            e("s_lshl_b32 %s, %s, 7" % (s(ST[2]), s(sF[j])))
            e("s_add_u32 %s, %s, %d" % (s(ST[2]), s(ST[2]), MISC + M_CS2))
            e("v_add_u32 %s, %s, %s" % (v(ca), s(ST[2]), v(t0)))
            for i in range(4):
                e("ds_read_b128 %s, %s offset:%d" % (v(csr + 4 * i, 4), v(ca), 32 * i))
            for r in range(8):
                e("v_mul_f32 %s, %s, %s" % (v(tg + r), v(acc[j] + r), v(rs)))
            for r in range(8):
                e("v_mul_f32 %s, %s, %s" % (v(tu + r), v(acc[j] + 8 + r), v(rs)))
            e("s_waitcnt lgkmcnt(2)")
            for r in range(8):
                e("v_fma_f32 %s, -%s, %s, %s" % (v(tg + r), v(mr), v(csr + r), v(tg + r)))
            for r in range(8):
                e("v_mul_f32 %s, 0x%x, %s" % (v(te + r), fbits(-LOG2E), v(tg + r)))
            for r in range(8):
                e("v_exp_f32 %s, %s" % (v(te + r), v(te + r)))
            e("s_waitcnt lgkmcnt(0)")
            for r in range(8):
                e("v_fma_f32 %s, -%s, %s, %s" % (v(tu + r), v(mr), v(csr + 8 + r), v(tu + r)))
            for r in range(8):
                e("v_add_f32 %s, 1.0, %s" % (v(te + r), v(te + r)))
            for r in range(8):
                e("v_rcp_f32 %s, %s" % (v(te + r), v(te + r)))
            for r in range(8):
                e("v_mul_f32 %s, %s, %s" % (v(tg + r), v(tg + r), v(tu + r)))
            for r in range(8):
                e("v_mul_f32 %s, %s, %s" % (v(tg + r), v(tg + r), v(te + r)))
            for i in range(4):
                e("v_cvt_pk_bf16_f32 %s, %s, %s" % (v(pk + i), v(tg + 2 * i), v(tg + 2 * i + 1)))
            sk = self.lab("act_skip")
            e("s_cmp_ge_u32 %s, %s" % (s(sF[j]), s(sCnt)))
            e("s_cbranch_scc1 %s" % sk)
            e("s_lshl_b32 %s, %s, 10" % (s(ST[0]), s(sF[j])))
            e("s_add_u32 %s, %s, %s" % (s(ST[0]), s(ST[0]), s(sAo)))

            def ast(fl):
                e("buffer_store_dwordx4 %s, %s, %s, %s offen %s" % (v(pk, 4), v(self.vL16), s(S_WS, 4), s(ST[0]), fl))
            self.stores_fast_slow(ast)
            e.label(sk)
            e("s_nop 1")
        e("s_waitcnt vmcnt(0)")
        vm.q = []
        e("s_barrier")
        va.free_prefix("gu_")
        va.free("gud0", "gud1", "gud2")
        self.stamp(8)

        def pre4():
            for c in range(2, 5):
                self.dn_w_issue(c)
        self.sync(3, SG, SM, SG, True, prefetch=pre4)
        e("s_barrier")
        self.stamp(9)

    def dn_setup(self):
        e = self.e
        self.sDg, self.sDl = SA[16], SA[17]
        e("s_lshr_b32 %s, %s, 2" % (s(ST[0]), s(SW)))
        e("s_mul_i32 %s, %s, %d" % (s(self.sDg), s(ST[0]), 43 * 16384))
        e("s_and_b32 %s, %s, 1" % (s(ST[1]), s(SW)))
        e("s_lshl_b32 %s, %s, 15" % (s(ST[2]), s(ST[1])))
        e("s_add_u32 %s, %s, %s" % (s(self.sDg), s(self.sDg), s(ST[2])))
        e("s_and_b32 %s, %s, 7" % (s(ST[2]), s(SM)))
        e("s_lshl_b32 %s, %s, 7" % (s(ST[2]), s(ST[2])))
        e("s_add_u32 %s, %s, %s" % (s(self.sDg), s(self.sDg), s(ST[2])))
        e("s_bfe_u32 %s, %s, 0x10001" % (s(ST[2]), s(SW)))
        e("s_lshl_b32 %s, %s, 6" % (s(ST[3]), s(ST[2])))
        e("s_add_u32 %s, %s, %s" % (s(self.sDg), s(self.sDg), s(ST[3])))
        e("s_lshl_b32 %s, %s, 13" % (s(self.sDl), s(ST[0])))
        e("s_lshl_b32 %s, %s, 12" % (s(ST[2]), s(ST[2])))
        e("s_add_u32 %s, %s, %s" % (s(self.sDl), s(self.sDl), s(ST[2])))
        e("s_lshl_b32 %s, %s, 11" % (s(ST[1]), s(ST[1])))
        e("s_add_u32 %s, %s, %s" % (s(self.sDl), s(self.sDl), s(ST[1])))

    def dn_w_issue(self, c):
        for i in range(2):
            self.dma(S_WD, self.vW64, (self.sDg, (4 * c + i) * 16384), (self.sDl, DN_WSLOT[c % 5] + i * 1024), ("dw", c))

    def down(self):
        e, va, vm, lg = self.e, self.va, self.vm, self.lg
        sAg, sAl = SA[0], SA[1]
        e("s_lshl_b32 %s, %s, 2" % (s(ST[0]), s(SG)))
        e("s_lshr_b32 %s, %s, 3" % (s(ST[1]), s(SM)))
        e("s_lshl_b32 %s, %s, 1" % (s(ST[1]), s(ST[1])))
        e("s_add_u32 %s, %s, %s" % (s(ST[0]), s(ST[0]), s(ST[1])))
        e("s_bfe_u32 %s, %s, 0x10001" % (s(ST[1]), s(SW)))
        e("s_add_u32 %s, %s, %s" % (s(ST[0]), s(ST[0]), s(ST[1])))
        e("s_mul_i32 %s, %s, 86" % (s(ST[0]), s(ST[0])))
        e("s_lshr_b32 %s, %s, 2" % (s(ST[2]), s(SW)))
        e("s_mul_i32 %s, %s, 43" % (s(ST[3]), s(ST[2])))
        e("s_add_u32 %s, %s, %s" % (s(ST[0]), s(ST[0]), s(ST[3])))
        e("s_and_b32 %s, %s, 1" % (s(ST[3]), s(SW)))
        e("s_lshl_b32 %s, %s, 1" % (s(ST[3]), s(ST[3])))
        e("s_add_u32 %s, %s, %s" % (s(ST[0]), s(ST[0]), s(ST[3])))
        e("s_lshl_b32 %s, %s, 10" % (s(sAg), s(ST[0])))
        e("s_add_u32 %s, %s, %d" % (s(sAg), s(sAg), WS_A))
        e("s_lshl_b32 %s, %s, 13" % (s(sAl), s(ST[2])))
        e("s_lshl_b32 %s, %s, 12" % (s(ST[1]), s(ST[1])))
        e("s_add_u32 %s, %s, %s" % (s(sAl), s(sAl), s(ST[1])))
        e("s_lshl_b32 %s, %s, 10" % (s(ST[3]), s(ST[3])))
        e("s_add_u32 %s, %s, %s" % (s(sAl), s(sAl), s(ST[3])))

        def a_issue(c):
            self.dma2(S_WS, self.vL16, (sAg, c * 4096), (sAl, DN_ASLOT[c % 4]), ("da", c), flags="sc1")
        for c in range(4):
            a_issue(c)
        aa = va.alloc("dn_aa")
        wa = [va.alloc("dn_wa0"), va.alloc("dn_wa1")]
        e("s_lshr_b32 %s, %s, 2" % (s(ST[0]), s(SW)))
        e("s_lshl_b32 %s, %s, 13" % (s(ST[0]), s(ST[0])))
        e("s_and_b32 %s, %s, 1" % (s(ST[1]), s(SW)))
        e("s_lshl_b32 %s, %s, 12" % (s(ST[1]), s(ST[1])))
        e("s_add_u32 %s, %s, %s" % (s(ST[1]), s(ST[1]), s(ST[0])))
        e("s_add_u32 %s, %s, %d" % (s(ST[1]), s(ST[1]), DN_ASLOT[0]))
        e("v_add_u32 %s, %s, %s" % (v(aa), s(ST[1]), v(self.vL16)))
        e("s_bfe_u32 %s, %s, 0x10001" % (s(ST[1]), s(SW)))
        e("s_lshl_b32 %s, %s, 12" % (s(ST[1]), s(ST[1])))
        e("s_add_u32 %s, %s, %s" % (s(ST[1]), s(ST[1]), s(ST[0])))
        e("v_add_u32 %s, %s, %s" % (v(wa[0]), s(ST[1]), v(self.vTrP)))
        e("v_add_u32 %s, 65536, %s" % (v(wa[1]), v(wa[0])))
        acc = va.alloc("dn_acc", 16, 4)
        af = [va.alloc("dn_af%d" % i, 4, 4) for i in range(2)]
        wf = [va.alloc("dn_wf%d" % i, 4, 4) for i in range(2)]
        NS = 43

        def reads(st):
            c, i, b = st // 4, st % 4, st % 2
            e("ds_read_b128 %s, %s offset:%d" % (v(af[b], 4), v(aa), (c % 4) * 16384 + i * 1024))
            off = DN_WSLOT[c % 5] + i * 1024
            base = off // 65536
            off -= base * 65536
            e("ds_read_b64_tr_b16 %s, %s offset:%d" % (v(wf[b], 2), v(wa[base]), off))
            e("ds_read_b64_tr_b16 %s, %s offset:%d" % (v(wf[b] + 2, 2), v(wa[base]), off + 512))
            for _ in range(3):
                lg.issue(("r", st))

        vm.wait([("dw", 0), ("da", 0)])
        e("s_barrier")
        reads(0)
        for st in range(NS):
            nxt = st + 1
            refill = None
            if nxt < NS:
                if nxt % 4 == 0:
                    c = nxt // 4
                    lg.wait_all()
                    vm.wait([("dw", c), ("da", c)])
                    e("s_barrier")
                    refill = c
                reads(nxt)
                lg.wait(("r", st))
            else:
                lg.wait_all()
            b = st % 2
            e("v_mfma_f32_32x32x16_bf16 %s, %s, %s, %s" % (v(acc, 16), v(wf[b], 4), v(af[b], 4), "0" if st == 0 else v(acc, 16)))
            if refill is not None:
                if refill + 3 <= 10:
                    a_issue(refill + 3)
                if refill + 4 <= 10:
                    self.dn_w_issue(refill + 4)
        vm.wait_all()
        e("s_barrier")
        self.exchange_halves(acc, XCH_DN)
        self.add_packed(acc, self.vHF)
        pk = va.alloc("dn_pk", 4, 4)
        for i in range(4):
            e("v_cvt_pk_bf16_f32 %s, %s, %s" % (v(pk + i), v(acc + 2 * i), v(acc + 2 * i + 1)))
        e("s_nop 1")
        e("v_permlane32_swap_b32 %s, %s" % (v(pk), v(pk + 2)))
        e("v_permlane32_swap_b32 %s, %s" % (v(pk + 1), v(pk + 3)))
        e("buffer_store_dwordx4 %s, %s, %s, %s offen" % (v(pk, 4), v(self.vRow), s(S_OUT, 4), s(self.sRow)))
        self.stamp(10)
        va.free_prefix("dn_")

    def finish(self):
        e = self.e
        e.label("L_finish")
        if self.ts:
            sk = self.lab("ts_out")
            e("s_cmp_lg_u32 %s, %d" % (s(SW), CTRL_WAVE))
            e("s_cbranch_scc1 %s" % sk)
            e("s_lshl_b32 %s, s2, 8" % s(ST[0]))
            e("s_add_u32 %s, %s, %d" % (s(ST[0]), s(ST[0]), WS_TS))
            e("v_lshlrev_b32 %s, 2, %s" % (v(self.vL), v(self.vL)))
            e("s_nop 1")
            e("buffer_store_dword %s, %s, %s, %s offen" % (v(self.vTS), v(self.vL), s(S_WS, 4), s(ST[0])))
            e.label(sk)
        e("s_waitcnt vmcnt(0)")
        e.label("L_end")
        e("s_endpgm")

    def build(self):
        e = self.e
        self.prologue()
        self.stamp(0)
        phases = [("p1", self.p1), ("attn", self.attn), ("oproj", self.oproj), ("gateup", self.gateup), ("down", self.down)]
        for name, fn in phases:
            e.comment("==================== " + name)
            fn()
            if self.stop == name:
                break
        self.finish()
        hdr = open(os.path.join(os.path.dirname(os.path.abspath(__file__)), "header.txt")).read()
        body = self.e.text()
        tail = """.section .rodata,"a"
.p2align 6
.amdhsa_kernel %s
  .amdhsa_next_free_vgpr 256
  .amdhsa_next_free_sgpr 102
  .amdhsa_accum_offset 256
  .amdhsa_group_segment_fixed_size 0
  .amdhsa_kernarg_size 80
  .amdhsa_user_sgpr_count 2
  .amdhsa_user_sgpr_kernarg_segment_ptr 1
  .amdhsa_system_sgpr_workgroup_id_x 1
.end_amdhsa_kernel
""" % KNAME
        return hdr + (".amdgcn_target \"amdgcn-amd-amdhsa--gfx950\"\n.text\n.globl %s\n.p2align 8\n.type %s,@function\n%s:\n" % (KNAME, KNAME, KNAME)) + body + tail


def generate(stop=None, ts=False, **opts):
    g = Gen(stop=stop, ts=ts, opts=opts)
    text = g.build()
    return text, g


if __name__ == "__main__":
    import hazcheck
    text, g = generate()
    n = hazcheck.check(text)
    print("hazards:", n, "vgpr high:", g.va.high, "lines:", text.count("\n"))
    out = sys.argv[1] if len(sys.argv) > 1 else "cdna_kernels/%s.s" % NAME
    open(out, "w").write(text)
```

```python
import os
import sys
from asmlib import Emit, VAlloc, Counter, v, s

NAME = "sequential_preLN__softmax_full_mha__swiglu_ffn__prompt"
KNAME = NAME + "_kernel"

WS_Z = 0
WS_XT = 4096
WS_FL = WS_XT + 32768
WS_K = 262144
WS_V = WS_K + (2 << 20)
WS_O = WS_V + (2 << 20)
WS_H = WS_O + (2 << 20)
WS_A = WS_H + (2 << 20)
WS_ST = WS_A + 16 * 4 * 86 * 1024 + 4096
WS_END = WS_ST + 64 * 8 * 256
WS_TS = WS_END + 4096
WS_SIZE = WS_TS + 2 * 256 * 256

LDS_SIZE = 163840
MISC = 155776
M_CTRL = 1024
P1M = 143360
P_STAT, P_CSA, P_CSF, P_CSB, P_RSB, P_QB = 0, 2048, 3072, 4096, 4608, 5632
P1_SLOT = 28672
KV_SLOT = 16384
WO_LDS = 65536
GU_WSLOT = [131072, 0, 24608, 49216]
GU_UP = 12320
GU_HSLOT = [73856, 73856 + 16384, 73856 + 32768]
GU_T = 73856 + 32768
GU_CSP, GU_STP, GU_CSF = 0, 3072, 5120
XCH_OP = 73856
OP_STP = 73856 + 16384
DN_WSLOT = [16384 * i for i in range(5)]
DN_ASLOT = [81920 + 16384 * i for i in range(4)]
XCH_DN = 0

S_X, S_WQKV, S_WO, S_WG, S_WD, S_OUT, S_WS = 4, 8, 12, 16, 20, 24, 28
S_WU = 92
S_PG, S_PU = 32, 34
SW, SG, SM, SFAST, SN, SREDO = 36, 37, 38, 39, 40, 42
ST = [44, 45, 46, 47, 48, 49, 50, 51, 52, 53]
SHALF = 54
SSAVE = 56
SA = list(range(58, 90))
S_PF = 96

LOG2E = 1.4426950408889634
ONES = 0x3F803F80
TS_WAVE = 7
CTRL_WAVE = 8
NWAVES = 12
POLL_LIMIT = 1 << 17


def fbits(x):
    import struct
    return struct.unpack("<I", struct.pack("<f", x))[0]


class Prog:
    def __init__(self, gen, name):
        self.g = gen
        self.name = name
        self.e = Emit()
        self.va = VAlloc(168)
        self.vm = Counter(self.e, "vmcnt", 63)
        self.lg = Counter(self.e, "lgkmcnt", 15)
        self.bars = []

    def barrier(self, tag):
        self.e("s_barrier")
        self.bars.append(tag)

    def lab(self, base):
        self.g.nlab += 1
        return "L_%s_%d" % (base, self.g.nlab)

    def _stamp(self, instr, idx, wave):
        e = self.e
        skip = self.lab("ts")
        e("s_cmp_lg_u32 %s, %d" % (s(SW), wave))
        e("s_cbranch_scc1 %s" % skip)
        e("%s %s" % (instr, s(90, 2)))
        e("s_waitcnt lgkmcnt(0)")
        e("v_writelane_b32 %s, %s, %d" % (v(self.vTS), s(90), idx))
        e.label(skip)

    def stamp(self, idx):
        if self.g.ts:
            self._stamp("s_memrealtime" if self.g.opts.get("rt") else "s_memtime", idx, TS_WAVE)

    def stamp_rt(self, idx):
        if self.g.ts:
            self._stamp("s_memrealtime", idx, TS_WAVE)

    def fine(self, phase):
        if not self.g.ts or self.g.opts.get("fine") != phase:
            return
        self.nfine = getattr(self, "nfine", 16)
        if self.nfine > 63:
            return
        self._stamp("s_memtime", self.nfine, TS_WAVE if self.name == "c" else CTRL_WAVE)
        self.nfine += 1

    def dma(self, srd, voff, soff_expr, m0_expr, tag, flags="", n=1):
        e = self.e
        sb, c = m0_expr
        if c == 0:
            e("s_mov_b32 m0, %s" % s(sb))
        else:
            e("s_add_u32 m0, %s, %d" % (s(sb), c))
        sb, c = soff_expr
        if c == 0:
            e("s_nop 0")
            so = s(sb)
        else:
            e("s_add_u32 %s, %s, %d" % (s(ST[9]), s(sb), c))
            so = s(ST[9])
        for i in range(n):
            e("buffer_load_dwordx4 %s, %s, %s offen %s%s lds" % (v(voff), s(srd, 4), so, ("offset:%d " % (i * 1024)) if i else "", flags))
            self.vm.issue(tag)

    def xhalf_sum(self, reg, tmp):
        e = self.e
        e("v_mov_b32 %s, %s" % (v(tmp), v(reg)))
        e("s_nop 1")
        e("v_permlane32_swap_b32 %s, %s" % (v(reg), v(tmp)))
        e("v_add_f32 %s, %s, %s" % (v(reg), v(reg), v(tmp)))

    def pair_total(self, pair, tmp):
        self.e("v_add_f32 %s, %s, %s" % (v(pair), v(pair), v(pair + 1)))
        self.xhalf_sum(pair, tmp)

    def ln_stats(self, s1, s2, tmp, rstd, mr):
        e = self.e
        e("v_mul_f32 %s, 0x%x, %s" % (v(s1), fbits(1.0 / 512), v(s1)))
        e("v_mul_f32 %s, %s, %s" % (v(tmp), v(s1), v(s1)))
        e("v_mov_b32 %s, 0x%x" % (v(rstd), fbits(1.0 / 512)))
        e("v_fma_f32 %s, %s, %s, -%s" % (v(s2), v(s2), v(rstd), v(tmp)))
        e("v_max_f32 %s, 0, %s" % (v(s2), v(s2)))
        e("v_add_f32 %s, 0x%x, %s" % (v(s2), fbits(1e-5), v(s2)))
        e("v_rsq_f32 %s, %s" % (v(rstd), v(s2)))
        e("s_nop 0")
        e("v_mul_f32 %s, %s, %s" % (v(mr), v(s1), v(rstd)))

    def frag_ops(self, kind, frag, tmps, accs, mask):
        out = []
        if self.g.opts.get("noops"):
            return out
        for i in range(4):
            t = tmps[i % 2]
            out.append("v_lshlrev_b32 %s, 16, %s" % (v(t), v(frag + i)))
            out.append("v_and_b32 %s, %s, %s" % (v(t + 1), v(mask), v(frag + i)))
            if not self.g.opts.get("pk"):
                out.append("v_add_f32 %s, %s, %s" % (v(accs[0]), v(accs[0]), v(t)))
                out.append("v_add_f32 %s, %s, %s" % (v(accs[0] + 1), v(accs[0] + 1), v(t + 1)))
                if kind == "st":
                    out.append("v_fmac_f32 %s, %s, %s" % (v(accs[1]), v(t), v(t)))
                    out.append("v_fmac_f32 %s, %s, %s" % (v(accs[1] + 1), v(t + 1), v(t + 1)))
                continue
            out.append("v_pk_add_f32 %s, %s, %s" % (v(accs[0], 2), v(accs[0], 2), v(t, 2)))
            if kind == "st":
                out.append("v_pk_fma_f32 %s, %s, %s, %s" % (v(accs[1], 2), v(t, 2), v(t, 2), v(accs[1], 2)))
        return out

    def stores_fast_slow(self, fn):
        e = self.e
        slow = self.lab("st_slow")
        done = self.lab("st_done")
        e("s_cmp_eq_u32 %s, 0" % s(SFAST))
        e("s_cbranch_scc1 %s" % slow)
        fn("")
        e("s_branch %s" % done)
        e.label(slow)
        fn("sc1")
        e.label(done)

    def flag_off(self, sync, grp_sgpr, mem_sgpr, dst):
        e = self.e
        e("s_lshl_b32 %s, %s, 11" % (s(dst), s(grp_sgpr)))
        if mem_sgpr is not None:
            e("s_lshl_b32 %s, %s, 7" % (s(ST[8]), s(mem_sgpr)))
            e("s_add_u32 %s, %s, %s" % (s(dst), s(dst), s(ST[8])))
        e("s_add_u32 %s, %s, %d" % (s(dst), s(dst), WS_FL + sync * 32768))

    def sync(self, idx, post_grp, post_mem, poll_grp, fast_ok, after_poll=None):
        e, va = self.e, self.va
        skip = self.lab("sync_skip")
        poll = self.lab("poll")
        done = self.lab("poll_done")
        a = va.alloc("sy_a", 2, 2)
        b = va.alloc("sy_b", 2, 2)
        o = va.alloc("sy_o")
        e("s_cmp_lg_u32 %s, %d" % (s(SW), CTRL_WAVE))
        e("s_cbranch_scc1 %s" % skip)
        e("s_waitcnt vmcnt(0)")
        self.flag_off(idx, post_grp, post_mem, ST[0])
        self.flag_off(idx, poll_grp, None, ST[1])
        e("v_mov_b32 %s, %s" % (v(a), s(SN)))
        e("v_mov_b32 %s, %s" % (v(a + 1), s(SN + 1)))
        e("v_lshlrev_b32 %s, 3, %s" % (v(o), v(self.vL16)))
        e("s_mov_b64 exec, 1")
        if fast_ok:
            slow = self.lab("flag_slow")
            posted = self.lab("flag_posted")
            e("s_cmp_eq_u32 %s, 0" % s(SFAST))
            e("s_cbranch_scc1 %s" % slow)
            e("buffer_store_dwordx2 %s, off, %s, %s" % (v(a, 2), s(S_WS, 4), s(ST[0])))
            e("s_branch %s" % posted)
            e.label(slow)
            e("buffer_store_dwordx2 %s, off, %s, %s sc1" % (v(a, 2), s(S_WS, 4), s(ST[0])))
            e.label(posted)
        else:
            e("buffer_store_dwordx2 %s, off, %s, %s sc1" % (v(a, 2), s(S_WS, 4), s(ST[0])))
        e("s_mov_b64 exec, 0xffff")
        e("s_mov_b32 %s, 0" % s(ST[2]))
        e.label(poll)
        e("buffer_load_dwordx2 %s, %s, %s, %s offen sc1" % (v(b, 2), v(o), s(S_WS, 4), s(ST[1])))
        e("s_add_u32 %s, %s, 1" % (s(ST[2]), s(ST[2])))
        e("s_cmp_ge_u32 %s, %d" % (s(ST[2]), POLL_LIMIT))
        e("s_waitcnt vmcnt(0)")
        e("s_cbranch_scc1 %s" % done)
        e("v_cmp_ne_u32 vcc, %s, %s" % (s(SN), v(b)))
        e("v_cmp_ne_u32 %s, %s, %s" % (s(SSAVE, 2), s(SN + 1), v(b + 1)))
        e("s_nop 1")
        e("s_or_b64 vcc, vcc, %s" % s(SSAVE, 2))
        e("s_cbranch_vccnz %s" % poll)
        e.label(done)
        if after_poll:
            after_poll(a)
        e("s_mov_b64 exec, -1")
        e.label(skip)
        va.free("sy_a", "sy_b", "sy_o")


class Gen:
    def __init__(self, stop=None, ts=False, opts=None):
        self.stop = stop
        self.ts = ts
        self.opts = opts or {}
        self.nlab = 0
        self.pre = Emit()
        self.c = Prog(self, "c")
        self.l = Prog(self, "l")

    def prologue(self):
        e = self.pre
        e("s_cmp_ge_u32 s2, 256")
        e("s_cbranch_scc1 L_end")
        e("s_load_dwordx2 %s, s[0:1], 0" % s(S_X, 2))
        e("s_load_dwordx2 %s, s[0:1], 8" % s(S_WQKV, 2))
        e("s_load_dwordx2 %s, s[0:1], 72" % s(S_WS, 2))
        e("s_load_dwordx2 %s, s[0:1], 16" % s(S_WO, 2))
        e("s_load_dwordx4 %s, s[0:1], 32" % s(S_PG, 4))
        e("s_load_dwordx2 %s, s[0:1], 48" % s(S_WD, 2))
        e("s_load_dwordx2 %s, s[0:1], 56" % s(S_OUT, 2))
        for p in (self.c, self.l):
            p.va.alloc("v0", 1)
            p.vL = p.va.alloc("L")
            p.vL16 = p.va.alloc("L16")
            p.vTS = p.va.alloc("TS")
        p = self.c
        t = 4
        e("v_lshrrev_b32 %s, 6, v0" % v(t))
        e("v_and_b32 %s, 63, v0" % v(p.vL))
        e("v_lshlrev_b32 %s, 4, %s" % (v(p.vL16), v(p.vL)))
        e("v_readfirstlane_b32 %s, %s" % (s(SW), v(t)))
        if self.ts:
            e("v_mov_b32 %s, 0" % v(p.vTS))
        e("s_and_b32 %s, s2, 7" % s(SG))
        e("s_lshl_b32 %s, %s, 1" % (s(SG), s(SG)))
        e("s_lshr_b32 %s, s2, 7" % s(SM))
        e("s_add_u32 %s, %s, %s" % (s(SG), s(SG), s(SM)))
        e("s_lshr_b32 %s, s2, 3" % s(SM))
        e("s_and_b32 %s, %s, 15" % (s(SM), s(SM)))
        e("s_mov_b32 %s, 0" % s(SREDO))
        e("s_mov_b32 %s, 0" % s(SFAST))
        for dst, nbytes in ((S_X, 2048 * 512 * 2), (S_WQKV, 512 * 1536 * 2), (S_WS, WS_SIZE if self.ts else WS_END),
                            (S_WO, 512 * 512 * 2), (S_WD, 1376 * 512 * 2), (S_OUT, 2048 * 512 * 2)):
            e("s_mov_b32 %s, %d" % (s(dst + 2), nbytes))
            e("s_mov_b32 %s, 0x20000" % s(dst + 3))
        e("s_cmp_ge_u32 %s, 8" % s(SW))
        e("s_cbranch_scc1 L_loader")

    def p1_loader(self):
        p = self.l
        e, va, vm = p.e, p.va, p.vm
        L = p.vL
        sLW = SA[20]
        self.sLW = sLW
        e("s_setprio 3")
        e("s_sub_u32 %s, %s, 8" % (s(sLW), s(SW)))
        t0, t1, t2 = va.alloc("p1_t0"), va.alloc("p1_t1"), va.alloc("p1_t2")
        xd = [va.alloc("p1_xd0"), va.alloc("p1_xd1")]
        e("v_lshrrev_b32 %s, 3, %s" % (v(t0), v(L)))
        e("v_lshlrev_b32 %s, 10, %s" % (v(t0), v(t0)))
        e("v_lshrrev_b32 %s, 4, %s" % (v(t1), v(L)))
        e("v_and_b32 %s, 7, %s" % (v(t2), v(L)))
        e("v_xor_b32 %s, %s, %s" % (v(xd[0]), v(t1), v(t2)))
        e("v_xor_b32 %s, 4, %s" % (v(xd[1]), v(xd[0])))
        e("v_lshl_add_u32 %s, %s, 4, %s" % (v(xd[0]), v(xd[0]), v(t0)))
        e("v_lshl_add_u32 %s, %s, 4, %s" % (v(xd[1]), v(xd[1]), v(t0)))
        wd = va.alloc("p1_wd")
        e("v_lshrrev_b32 %s, 2, %s" % (v(t0), v(L)))
        e("v_mul_u32_u24 %s, 3072, %s" % (v(t0), v(t0)))
        e("v_and_b32 %s, 3, %s" % (v(t1), v(L)))
        e("v_lshl_add_u32 %s, %s, 4, %s" % (v(wd), v(t1), v(t0)))
        sXg, sXl, sWg, sWl, sRot = SA[0], SA[1], SA[2], SA[3], SA[7]
        e("s_lshl_b32 %s, %s, 17" % (s(sXg), s(SM)))
        e("s_lshl_b32 %s, %s, 15" % (s(ST[0]), s(sLW)))
        e("s_add_u32 %s, %s, %s" % (s(sXg), s(sXg), s(ST[0])))
        e("s_lshl_b32 %s, %s, 12" % (s(sXl), s(sLW)))
        e("s_lshl_b32 %s, %s, 6" % (s(sWg), s(SG)))
        e("s_mul_i32 %s, %s, 49152" % (s(ST[0]), s(sLW)))
        e("s_add_u32 %s, %s, %s" % (s(sWg), s(sWg), s(ST[0])))
        e("s_lshl_b32 %s, %s, 10" % (s(sWl), s(sLW)))
        e("s_add_u32 %s, %s, 16384" % (s(sWl), s(sWl)))
        e("s_lshr_b32 %s, %s, 1" % (s(sRot), s(SG)))
        e("s_and_b32 %s, %s, 1" % (s(ST[0]), s(SG)))
        e("s_lshl_b32 %s, %s, 2" % (s(ST[0]), s(ST[0])))
        e("s_add_u32 %s, %s, %s" % (s(sRot), s(sRot), s(ST[0])))
        e("s_add_u32 %s, %s, %s" % (s(sRot), s(sRot), s(SM)))
        if self.opts.get("norot"):
            e("s_mov_b32 %s, 0" % s(sRot))
        zz = va.alloc("p1_z", 2, 2)
        xt = va.alloc("p1_xt", 2, 2)
        xr2 = va.alloc("p1_xr2", 2, 2)
        xo = va.alloc("p1_xo")
        p.fine(1)
        e("s_waitcnt lgkmcnt(0)")
        p.fine(1)

        def issue(c):
            slot = (c % 5) * P1_SLOT
            e("s_add_u32 %s, %s, %d" % (s(ST[0]), s(sRot), c))
            e("s_and_b32 %s, %s, 7" % (s(ST[0]), s(ST[0])))
            e("s_lshl_b32 %s, %s, 7" % (s(ST[1]), s(ST[0])))
            e("s_add_u32 %s, %s, %s" % (s(ST[1]), s(ST[1]), s(sXg)))
            e("s_mul_i32 %s, %s, 196608" % (s(ST[2]), s(ST[0])))
            e("s_add_u32 %s, %s, %s" % (s(ST[2]), s(ST[2]), s(sWg)))
            for i in range(4):
                p.dma(S_X, xd[i & 1], (ST[1], i * 8192), (sXl, slot + i * 1024), ("c", c))
            for nt in range(3):
                p.dma(S_WQKV, wd, (ST[2], nt * 1024), (sWl, slot + nt * 4096), ("c", c))

        issue(0)
        e("buffer_load_dwordx2 %s, off, %s, 0 sc1" % (v(zz, 2), s(S_WS, 4)))
        vm.issue("z")
        issue(1)

        def kv_touch():
            e("v_lshlrev_b32 %s, 7, %s" % (v(t0), v(L)))
            e("s_lshl_b32 %s, %s, 1" % (s(ST[0]), s(SG)))
            e("s_lshr_b32 %s, %s, 1" % (s(ST[1]), s(sLW)))
            e("s_add_u32 %s, %s, %s" % (s(ST[0]), s(ST[0]), s(ST[1])))
            e("s_lshl_b32 %s, %s, 16" % (s(ST[0]), s(ST[0])))
            e("s_lshl_b32 %s, %s, 12" % (s(ST[1]), s(SM)))
            e("s_add_u32 %s, %s, %s" % (s(ST[0]), s(ST[0]), s(ST[1])))
            e("s_and_b32 %s, %s, 1" % (s(ST[1]), s(sLW)))
            e("s_mul_i32 %s, %s, %d" % (s(ST[1]), s(ST[1]), WS_V - WS_K))
            e("s_add_u32 %s, %s, %s" % (s(ST[0]), s(ST[0]), s(ST[1])))
            e("s_add_u32 %s, %s, %d" % (s(ST[0]), s(ST[0]), WS_K))
            e("s_mov_b32 exec_hi, 0")
            e("buffer_load_dword %s, %s, %s, %s offen" % (v(t2), v(t0), s(S_WS, 4), s(ST[0])))
            e("s_mov_b32 exec_hi, -1")
            vm.issue("kvt")

        sched = {0: [2, 3], 1: [4], 2: [5], 3: [6], 4: [7]} if self.opts.get("p1lead", 2) == 3 else {c: [c + 2] for c in range(6)}
        for dst, ptr in ((S_WG, S_PG), (S_WU, S_PU)):
            e("s_mov_b32 %s, %s" % (s(dst), s(ptr)))
            e("s_mov_b32 %s, %s" % (s(dst + 1), s(ptr + 1)))
            e("s_mov_b32 %s, %d" % (s(dst + 2), 512 * 1376 * 2))
            e("s_mov_b32 %s, 0x20000" % s(dst + 3))
        xcc_at = max(c for c in sched if 7 in sched[c])
        for c in range(8):
            p.fine(1)
            vm.wait(("c", c))
            p.fine(1)
            p.barrier("p1c%d" % c)
            if c == 1:
                vm.wait("z")
                sk = p.lab("xcc_post")
                e("s_cmp_lg_u32 %s, %d" % (s(SW), CTRL_WAVE))
                e("s_cbranch_scc1 %s" % sk)
                e("v_readfirstlane_b32 %s, %s" % (s(SN), v(zz)))
                e("v_readfirstlane_b32 %s, %s" % (s(SN + 1), v(zz + 1)))
                e("s_getreg_b32 %s, hwreg(HW_REG_XCC_ID, 0, 4)" % s(ST[0]))
                e("s_add_u32 %s, %s, 1" % (s(SN), s(SN)))
                e("s_addc_u32 %s, %s, 0" % (s(SN + 1), s(SN + 1)))
                e("s_lshl_b32 %s, %s, 28" % (s(ST[0]), s(ST[0])))
                e("s_add_u32 %s, %s, %s" % (s(SA[4]), s(SN + 1), s(ST[0])))
                e("s_lshl_b32 %s, %s, 11" % (s(ST[1]), s(SG)))
                e("s_add_u32 %s, %s, %d" % (s(SA[5]), s(ST[1]), WS_XT))
                e("s_lshl_b32 %s, %s, 7" % (s(ST[1]), s(SM)))
                e("s_add_u32 %s, %s, %s" % (s(ST[1]), s(ST[1]), s(SA[5])))
                e("v_mov_b32 %s, %s" % (v(xt), s(SN)))
                e("v_mov_b32 %s, %s" % (v(xt + 1), s(SA[4])))
                e("s_mov_b64 exec, 1")
                e("buffer_store_dwordx2 %s, off, %s, %s sc1" % (v(xt, 2), s(S_WS, 4), s(ST[1])))
                e("s_mov_b64 exec, -1")
                e.label(sk)
            if c == xcc_at:
                e("s_lshl_b32 %s, %s, 11" % (s(ST[1]), s(SG)))
                e("s_add_u32 %s, %s, %d" % (s(ST[1]), s(ST[1]), WS_XT))
                e("v_and_b32 %s, 15, %s" % (v(xo), v(L)))
                e("v_lshlrev_b32 %s, 7, %s" % (v(xo), v(xo)))
                e("buffer_load_dwordx2 %s, %s, %s, %s offen sc1" % (v(xr2, 2), v(xo), s(S_WS, 4), s(ST[1])))
                vm.issue("xcc")
            for cc in sched.get(c, []):
                issue(cc)
                if cc == 7 and not self.opts.get("notouch"):
                    kv_touch()
        sk = p.lab("fast_decide")
        e("s_cmp_lg_u32 %s, %d" % (s(SW), CTRL_WAVE))
        e("s_cbranch_scc1 %s" % sk)
        e("v_cmp_ne_u32 vcc, %s, %s" % (s(SN), v(xr2)))
        e("v_cmp_ne_u32 %s, %s, %s" % (s(SSAVE, 2), s(SA[4]), v(xr2 + 1)))
        e("s_nop 1")
        e("s_or_b64 vcc, vcc, %s" % s(SSAVE, 2))
        e("s_cmp_eq_u64 vcc, 0")
        e("s_cselect_b32 %s, 1, 0" % s(SFAST))
        if self.opts.get("force_slow"):
            e("s_mov_b32 %s, 0" % s(SFAST))
        e("v_mov_b32 %s, %s" % (v(xt), s(SFAST)))
        e("v_mov_b32 %s, 0" % v(xt + 1))
        e("v_mov_b32 %s, %d" % (v(t0), MISC + M_CTRL))
        e("ds_write_b64 %s, %s" % (v(t0), v(xt, 2)))
        e("s_waitcnt lgkmcnt(0)")
        e.label(sk)
        p.barrier("E1")
        self.loader_patterns()
        p.barrier("E2")
        va.free_prefix("p1_")
        p.sync(0, SG, SM, SG, True)
        p.barrier("E3")

    def loader_patterns(self):
        p = self.l
        e, va = p.e, p.va
        L, sLW = p.vL, self.sLW
        a, b = va.alloc("lp_a"), va.alloc("lp_b")
        p.vWF = va.alloc("WF")
        e("v_lshrrev_b32 %s, 3, %s" % (v(a), v(L)))
        e("v_lshlrev_b32 %s, 10, %s" % (v(a), v(a)))
        e("v_bfe_u32 %s, %s, 4, 1" % (v(b), v(L)))
        e("v_lshlrev_b32 %s, 2, %s" % (v(b), v(b)))
        e("v_and_b32 %s, 7, %s" % (v(p.vWF), v(L)))
        e("v_xor_b32 %s, %s, %s" % (v(p.vWF), v(p.vWF), v(b)))
        e("v_lshl_add_u32 %s, %s, 4, %s" % (v(p.vWF), v(p.vWF), v(a)))
        self.sGUg, self.sGUl, self.sFs = SA[8], SA[9], SA[10]
        e("s_mul_i32 %s, %s, 6" % (s(self.sFs), s(SM)))
        e("s_lshl_b32 %s, %s, 2" % (s(ST[0]), s(SM)))
        e("s_add_u32 %s, %s, 22" % (s(ST[0]), s(ST[0])))
        e("s_min_u32 %s, %s, %s" % (s(self.sFs), s(self.sFs), s(ST[0])))
        e("s_mul_i32 %s, %s, %d" % (s(self.sGUg), s(sLW), 16 * 2752))
        e("s_lshl_b32 %s, %s, 5" % (s(ST[1]), s(self.sFs)))
        e("s_add_u32 %s, %s, %s" % (s(self.sGUg), s(self.sGUg), s(ST[1])))
        e("s_mul_i32 %s, %s, 3072" % (s(self.sGUl), s(sLW)))
        p.gud = [va.alloc("gud%d" % q) for q in range(3)]
        for q in range(3):
            e("v_add_u32 %s, %d, %s" % (v(a), 64 * q, v(L)))
            e("v_mul_u32_u24 %s, 171, %s" % (v(b), v(a)))
            e("v_lshrrev_b32 %s, 11, %s" % (v(b), v(b)))
            e("v_mul_u32_u24 %s, 12, %s" % (v(p.gud[q]), v(b)))
            e("v_sub_u32 %s, %s, %s" % (v(a), v(a), v(p.gud[q])))
            e("v_mul_u32_u24 %s, 2752, %s" % (v(b), v(b)))
            e("v_lshl_add_u32 %s, %s, 4, %s" % (v(p.gud[q]), v(a), v(b)))
        p.pfo, p.pfd, p.pfr = va.alloc("pfo"), va.alloc("pfd"), va.alloc("pfr")
        e("v_lshlrev_b32 %s, 10, %s" % (v(p.pfr), v(L)))
        e("v_lshrrev_b32 %s, 1, %s" % (v(p.pfo), v(L)))
        e("v_mul_u32_u24 %s, 2752, %s" % (v(p.pfo), v(p.pfo)))
        e("v_and_b32 %s, 1, %s" % (v(a), v(L)))
        e("v_lshl_add_u32 %s, %s, 7, %s" % (v(p.pfo), v(a), v(p.pfo)))
        e("s_and_b32 %s, %s, 1" % (s(ST[1]), s(SG)))
        e("s_cmp_eq_u32 %s, 1" % s(ST[1]))
        e("s_cselect_b32 %s, %s, %s" % (s(S_PF), s(S_PU), s(S_PG)))
        e("s_cselect_b32 %s, %s, %s" % (s(S_PF + 1), s(S_PU + 1), s(S_PG + 1)))
        e("s_mov_b32 %s, %d" % (s(S_PF + 2), 512 * 1376 * 2))
        e("s_mov_b32 %s, 0x20000" % s(S_PF + 3))
        self.sKVg, self.sKVl = SA[0], SA[1]
        e("s_lshr_b32 %s, %s, 1" % (s(ST[0]), s(sLW)))
        e("s_lshl_b32 %s, %s, 1" % (s(ST[1]), s(SG)))
        e("s_add_u32 %s, %s, %s" % (s(ST[1]), s(ST[1]), s(ST[0])))
        e("s_lshl_b32 %s, %s, 16" % (s(self.sKVg), s(ST[1])))
        e("s_and_b32 %s, %s, 1" % (s(ST[1]), s(sLW)))
        e("s_mul_i32 %s, %s, %d" % (s(ST[2]), s(ST[1]), WS_V - WS_K))
        e("s_add_u32 %s, %s, %s" % (s(self.sKVg), s(self.sKVg), s(ST[2])))
        e("s_add_u32 %s, %s, %d" % (s(self.sKVg), s(self.sKVg), WS_K))
        e("s_lshl_b32 %s, %s, 12" % (s(self.sKVl), s(sLW)))
        self.sWOg, self.sWOl, self.sWOs, self.sRotO = SA[2], SA[3], SA[15], SA[19]
        e("s_and_b32 %s, %s, 7" % (s(ST[2]), s(SM)))
        e("s_lshl_b32 %s, %s, 1" % (s(self.sRotO), s(ST[2])))
        if self.opts.get("norot"):
            e("s_mov_b32 %s, 0" % s(self.sRotO))
        e("s_lshl_b32 %s, %s, 7" % (s(self.sWOg), s(ST[2])))
        e("s_lshl_b32 %s, %s, 18" % (s(ST[2]), s(ST[0])))
        e("s_add_u32 %s, %s, %s" % (s(self.sWOg), s(self.sWOg), s(ST[2])))
        e("s_lshl_b32 %s, %s, 3" % (s(self.sWOs), s(ST[1])))
        e("s_add_u32 %s, %s, %s" % (s(self.sWOs), s(self.sWOs), s(self.sRotO)))
        e("s_lshl_b32 %s, %s, 14" % (s(self.sWOl), s(sLW)))
        e("s_add_u32 %s, %s, %d" % (s(self.sWOl), s(self.sWOl), WO_LDS))
        self.sDg, self.sDl = SA[16], SA[17]
        e("s_mul_i32 %s, %s, 43" % (s(self.sDg), s(ST[0])))
        e("s_lshl_b32 %s, %s, 1" % (s(ST[2]), s(ST[1])))
        e("s_add_u32 %s, %s, %s" % (s(self.sDg), s(self.sDg), s(ST[2])))
        e("s_lshl_b32 %s, %s, 14" % (s(self.sDg), s(self.sDg)))
        e("s_and_b32 %s, %s, 7" % (s(ST[2]), s(SM)))
        e("s_lshl_b32 %s, %s, 7" % (s(ST[2]), s(ST[2])))
        e("s_add_u32 %s, %s, %s" % (s(self.sDg), s(self.sDg), s(ST[2])))
        e("s_lshl_b32 %s, %s, 12" % (s(self.sDl), s(sLW)))
        va.free("lp_a", "lp_b")

    def gu_w_half(self, c, which):
        p = self.l
        for q in range(3):
            p.dma(S_WU if which else S_WG, p.gud[q], (self.sGUg, c * 64 * 2752),
                  (self.sGUl, GU_WSLOT[c % 4] + which * GU_UP + q * 1024), ("gw", c))

    def gu_w_issue(self, c):
        self.gu_w_half(c, 0)
        self.gu_w_half(c, 1)

    def dn_pf_issue(self, k):
        p = self.l
        e = p.e
        e("s_and_b32 %s, %s, 1" % (s(ST[0]), s(SG)))
        e("s_lshl_b32 %s, %s, 1" % (s(ST[0]), s(ST[0])))
        e("s_lshr_b32 %s, %s, 3" % (s(ST[1]), s(SM)))
        e("s_add_u32 %s, %s, %s" % (s(ST[0]), s(ST[0]), s(ST[1])))
        e("s_lshl_b32 %s, %s, 2" % (s(ST[0]), s(ST[0])))
        e("s_add_u32 %s, %s, %s" % (s(ST[0]), s(ST[0]), s(self.sLW)))
        e("s_mul_i32 %s, %s, 86" % (s(ST[0]), s(ST[0])))
        e("s_add_u32 %s, %s, %d" % (s(ST[0]), s(ST[0]), 64 * k))
        e("s_lshl_b32 %s, %s, 10" % (s(ST[0]), s(ST[0])))
        e("s_and_b32 %s, %s, 7" % (s(ST[1]), s(SM)))
        e("s_lshl_b32 %s, %s, 7" % (s(ST[1]), s(ST[1])))
        e("s_add_u32 %s, %s, %s" % (s(ST[0]), s(ST[0]), s(ST[1])))
        if k == 1:
            e("s_mov_b64 exec, 0x3fffff")
        e("buffer_load_dword %s, %s, %s, %s offen" % (v(p.pfd), v(p.pfr), s(S_WD, 4), s(ST[0])))
        if k == 1:
            e("s_mov_b64 exec, -1")
        p.vm.issue("pf")

    def dest_touch(self):
        p = self.l
        e, va = p.e, p.va
        a = va.alloc("dt_a")
        e("s_lshl_b32 %s, %s, 2" % (s(ST[0]), s(SG)))
        e("s_add_u32 %s, %s, %s" % (s(ST[0]), s(ST[0]), s(self.sLW)))
        e("s_mul_i32 %s, %s, 86" % (s(ST[0]), s(ST[0])))
        e("s_add_u32 %s, %s, %s" % (s(ST[0]), s(ST[0]), s(self.sFs)))
        e("s_lshl_b32 %s, %s, 10" % (s(ST[0]), s(ST[0])))
        e("s_add_u32 %s, %s, %d" % (s(ST[0]), s(ST[0]), WS_A))
        e("v_lshlrev_b32 %s, 3, %s" % (v(a), v(p.vL16)))
        e("s_mov_b32 exec_lo, -1")
        e("s_mov_b32 exec_hi, 0xffff")
        e("buffer_load_dword %s, %s, %s, %s offen" % (v(p.pfd), v(a), s(S_WS, 4), s(ST[0])))
        p.vm.issue("pf")
        e("s_lshl_b32 %s, %s, 2" % (s(ST[0]), s(SG)))
        e("s_lshr_b32 %s, %s, 3" % (s(ST[1]), s(SM)))
        e("s_lshl_b32 %s, %s, 1" % (s(ST[1]), s(ST[1])))
        e("s_add_u32 %s, %s, %s" % (s(ST[0]), s(ST[0]), s(ST[1])))
        e("s_and_b32 %s, %s, 1" % (s(ST[1]), s(self.sLW)))
        e("s_add_u32 %s, %s, %s" % (s(ST[0]), s(ST[0]), s(ST[1])))
        e("s_and_b32 %s, %s, 7" % (s(ST[1]), s(SM)))
        e("s_lshl_b32 %s, %s, 15" % (s(ST[2]), s(ST[0])))
        e("s_lshl_b32 %s, %s, 12" % (s(ST[3]), s(ST[1])))
        e("s_add_u32 %s, %s, %s" % (s(ST[2]), s(ST[2]), s(ST[3])))
        e("s_add_u32 %s, %s, %d" % (s(ST[2]), s(ST[2]), WS_H))
        e("s_lshl_b32 %s, %s, 3" % (s(ST[0]), s(ST[0])))
        e("s_add_u32 %s, %s, %s" % (s(ST[0]), s(ST[0]), s(ST[1])))
        e("s_lshl_b32 %s, %s, 8" % (s(ST[0]), s(ST[0])))
        e("s_add_u32 %s, %s, %d" % (s(ST[0]), s(ST[0]), WS_ST))
        e("s_cmp_ge_u32 %s, 2" % s(self.sLW))
        e("s_cselect_b32 %s, %s, %s" % (s(ST[0]), s(ST[0]), s(ST[2])))
        e("s_cselect_b32 %s, 3, -1" % s(ST[1]))
        e("s_mov_b32 exec_lo, %s" % s(ST[1]))
        e("s_mov_b32 exec_hi, 0")
        e("buffer_load_dword %s, %s, %s, %s offen" % (v(p.pfd), v(a), s(S_WS, 4), s(ST[0])))
        p.vm.issue("pf")
        e("s_mov_b64 exec, -1")
        va.free("dt_a")

    def dn_w_issue(self, c):
        p = self.l
        for q in range(4):
            p.dma(S_WD, p.vWF, (self.sDg, c * 65536 + q * 8192), (self.sDl, DN_WSLOT[c % 5] + q * 1024), ("dw", c))

    def p1_compute(self):
        p = self.c
        e, va = p.e, p.va
        L = p.vL
        t0, t1, t2 = va.alloc("p1_t0"), va.alloc("p1_t1"), va.alloc("p1_t2")
        sR = SA[11]
        e("s_lshr_b32 %s, %s, 2" % (s(sR), s(SW)))
        e("s_lshl_b32 %s, %s, 1" % (s(sR), s(sR)))
        e("s_add_u32 %s, %s, %s" % (s(sR), s(sR), s(SW)))
        xr = [va.alloc("p1_xr%d" % k) for k in range(4)]
        tr = [va.alloc("p1_tr%d" % k) for k in range(4)]
        e("v_and_b32 %s, 31, %s" % (v(t0), v(L)))
        e("v_lshlrev_b32 %s, 7, %s" % (v(t0), v(t0)))
        e("v_bfe_u32 %s, %s, 1, 3" % (v(t1), v(L)))
        e("v_lshrrev_b32 %s, 5, %s" % (v(t2), v(L)))
        e("v_xor_b32 %s, %s, %s" % (v(t1), v(t1), v(t2)))
        e("v_lshl_add_u32 %s, %s, 4, %s" % (v(t0), v(t1), v(t0)))
        e("s_and_b32 %s, %s, 3" % (s(ST[0]), s(SW)))
        e("s_lshl_b32 %s, %s, 12" % (s(ST[0]), s(ST[0])))
        e("v_add_u32 %s, %s, %s" % (v(t0), s(ST[0]), v(t0)))
        e("v_lshlrev_b32 %s, 3, %s" % (v(t2), v(t2)))
        e("v_bfe_u32 %s, %s, 2, 2" % (v(t1), v(L)))
        e("v_add_u32 %s, %s, %s" % (v(t2), v(t2), v(t1)))
        e("v_lshlrev_b32 %s, 6, %s" % (v(t2), v(t2)))
        e("v_bfe_u32 %s, %s, 4, 1" % (v(t1), v(L)))
        e("v_lshl_add_u32 %s, %s, 5, %s" % (v(t2), v(t1), v(t2)))
        e("v_and_b32 %s, 3, %s" % (v(t1), v(L)))
        e("v_lshl_add_u32 %s, %s, 3, %s" % (v(t1), v(t1), v(t2)))
        for k in range(4):
            e("s_add_u32 %s, %s, %d" % (s(ST[0]), s(sR), k))
            e("s_and_b32 %s, %s, 3" % (s(ST[0]), s(ST[0])))
            e("s_lshl_b32 %s, %s, 5" % (s(ST[1]), s(ST[0])))
            e("s_lshl_b32 %s, %s, 10" % (s(ST[0]), s(ST[0])))
            e("v_xor_b32 %s, %s, %s" % (v(xr[k]), s(ST[1]), v(t0)))
            e("v_add_u32 %s, %s, %s" % (v(tr[k]), s(ST[0]), v(t1)))
        mask = va.alloc("p1_mask")
        tmps = [va.alloc("p1_tp0", 2, 2), va.alloc("p1_tp1", 2, 2)]
        s1, s2 = va.alloc("p1_s1", 2, 2), va.alloc("p1_s2", 2, 2)
        self.vQ = va.alloc("Q", 4, 4)
        e("v_mov_b32 %s, 0xffff0000" % v(mask))
        for r in (s1, s1 + 1, s2, s2 + 1):
            e("v_mov_b32 %s, 0" % v(r))
        e("s_mov_b32 %s, 0x0000ffff" % s(SHALF))
        e("s_mov_b32 %s, 0x0000ffff" % s(SHALF + 1))
        e("s_waitcnt lgkmcnt(0)")
        e("s_cmp_ge_u32 %s, 4" % s(SW))
        e("s_cbranch_scc1 L_p1_roleB")

        state = {"base": 0}

        def rebase(slot):
            want = (slot // 2) * 57344
            d = want - state["base"]
            if d:
                for r in xr + tr:
                    if d > 0:
                        e("v_add_u32 %s, %d, %s" % (v(r), d, v(r)))
                    else:
                        e("v_subrev_u32 %s, %d, %s" % (v(r), -d, v(r)))
                state["base"] = want

        def xread(dst, c, j):
            e("ds_read_b128 %s, %s offset:%d" % (v(dst, 4), v(xr[j]), ((c % 5) % 2) * P1_SLOT))

        def wread(dst, c, j, nt):
            off = ((c % 5) % 2) * P1_SLOT + 16384 + nt * 4096
            e("ds_read_b64_tr_b16 %s, %s offset:%d" % (v(dst, 2), v(tr[j]), off))
            e("ds_read_b64_tr_b16 %s, %s offset:%d" % (v(dst + 2, 2), v(tr[j]), off + 256))

        def loop(lg, reads, compute, bars):
            S = 32
            state["base"] = 0
            e("s_barrier")
            bars.append("p1c0")
            reads(0)
            for st in range(S):
                nxt = st + 1
                if nxt < S:
                    if nxt % 4 == 0:
                        c = nxt // 4
                        lg.wait_all()
                        rebase(c % 5)
                        e("s_barrier")
                        bars.append("p1c%d" % c)
                    reads(nxt)
                    lg.wait(("r", st))
                else:
                    lg.wait_all()
                compute(st)

        def write_stat_partial(role, tmp, adr):
            p.pair_total(s1, tmp)
            p.pair_total(s2, tmp)
            e("v_mov_b32 %s, %s" % (v(s1 + 1), v(s2)))
            e("v_and_b32 %s, 31, %s" % (v(adr), v(L)))
            e("s_and_b32 %s, %s, 3" % (s(ST[0]), s(SW)))
            e("s_lshl_b32 %s, %s, 8" % (s(ST[0]), s(ST[0])))
            e("s_add_u32 %s, %s, %d" % (s(ST[0]), s(ST[0]), P1M + P_STAT))
            e("v_lshlrev_b32 %s, 3, %s" % (v(adr), v(adr)))
            e("v_add_u32 %s, %s, %s" % (v(adr), s(ST[0]), v(adr)))
            e("ds_write_b64 %s, %s offset:%d" % (v(adr), v(s1, 2), role * 1024))

        def finish_stats(other, tmp, rs, mr):
            e("v_add_f32 %s, %s, %s" % (v(s1), v(s1), v(other)))
            e("v_add_f32 %s, %s, %s" % (v(s1 + 1), v(s1 + 1), v(other + 1)))
            p.ln_stats(s1, s1 + 1, tmp, rs, mr)

        lgA = p.lg.clone()
        barsA = []
        accQ = va.alloc("p1a_accQ", 16, 4)
        accK = va.alloc("p1a_accK", 16, 4)
        xf = [va.alloc("p1a_xf%d" % i, 4, 4) for i in range(2)]
        wq = [va.alloc("p1a_wq%d" % i, 4, 4) for i in range(2)]
        wk = [va.alloc("p1a_wk%d" % i, 4, 4) for i in range(2)]
        csq, csk = va.alloc("p1a_csq", 2, 2), va.alloc("p1a_csk", 2, 2)
        for r in (csq, csq + 1, csk, csk + 1):
            e("v_mov_b32 %s, 0" % v(r))

        def readsA(st):
            c, j, b = st // 4, st % 4, st % 2
            xread(xf[b], c, j)
            wread(wq[b], c, j, 0)
            wread(wk[b], c, j, 1)
            for _ in range(5):
                lgA.issue(("r", st))

        def computeA(st):
            b, j = st % 2, st % 4
            cq = "0" if st == 0 else v(accQ, 16)
            ck = "0" if st == 0 else v(accK, 16)
            if j == 0:
                ops = p.frag_ops("cs", wq[b], tmps, (csq,), mask)
            elif j == 1:
                ops = p.frag_ops("cs", wk[b], tmps, (csk,), mask)
            else:
                ops = p.frag_ops("st", xf[b], tmps, (s1, s2), mask)
            h = len(ops) // 2
            e("v_mfma_f32_32x32x16_bf16 %s, %s, %s, %s" % (v(accQ, 16), v(wq[b], 4), v(xf[b], 4), cq))
            for o in ops[:h]:
                e(o)
            e("v_mfma_f32_32x32x16_bf16 %s, %s, %s, %s" % (v(accK, 16), v(wk[b], 4), v(xf[b], 4), ck))
            for o in ops[h:]:
                e(o)

        loop(lgA, readsA, computeA, barsA)
        va.free("p1a_xf0", "p1a_xf1", "p1a_wq0", "p1a_wq1", "p1a_wk0", "p1a_wk1")
        ta = va.alloc("p1a_t")
        adr = va.alloc("p1a_adr")
        sadr = va.alloc("p1a_sadr")
        write_stat_partial(0, ta, sadr)
        p.pair_total(csq, ta)
        p.pair_total(csk, ta)
        e("v_and_b32 %s, 31, %s" % (v(adr), v(L)))
        e("v_lshlrev_b32 %s, 2, %s" % (v(adr), v(adr)))
        e("v_add_u32 %s, %d, %s" % (v(adr), P1M + P_CSA, v(adr)))
        padr = va.alloc("p1a_padr")
        e("s_lshl_b32 %s, %s, 8" % (s(ST[0]), s(SW)))
        e("v_add_u32 %s, %s, %s" % (v(padr), s(ST[0]), v(adr)))
        e("ds_write_b32 %s, %s" % (v(padr), v(csq)))
        e("ds_write_b32 %s, %s offset:128" % (v(padr), v(csk)))
        cadr = va.alloc("p1a_cadr")
        e("v_lshrrev_b32 %s, 5, %s" % (v(cadr), v(L)))
        e("v_lshlrev_b32 %s, 4, %s" % (v(cadr), v(cadr)))
        e("s_add_u32 %s, %s, %d" % (s(ST[0]), s(ST[0]), P1M + P_CSF))
        e("v_add_u32 %s, %s, %s" % (v(cadr), s(ST[0]), v(cadr)))
        e("s_waitcnt lgkmcnt(0)")
        e("s_barrier")
        barsA.append("E1")
        part = va.alloc("p1a_part", 8, 4)
        oth = va.alloc("p1a_oth", 2, 2)
        fa = va.alloc("p1a_fa")
        for wv_ in range(4):
            e("ds_read_b32 %s, %s offset:%d" % (v(part + wv_), v(adr), wv_ * 256))
            e("ds_read_b32 %s, %s offset:%d" % (v(part + 4 + wv_), v(adr), wv_ * 256 + 128))
        e("ds_read_b64 %s, %s offset:1024" % (v(oth, 2), v(sadr)))
        e("v_mov_b32 %s, %d" % (v(ta), MISC + M_CTRL))
        e("ds_read_b32 %s, %s" % (v(fa), v(ta)))
        e("s_waitcnt lgkmcnt(2)")
        for base in (part, part + 4):
            e("v_add_f32 %s, %s, %s" % (v(base), v(base), v(base + 1)))
            e("v_add_f32 %s, %s, %s" % (v(base + 2), v(base + 2), v(base + 3)))
            e("v_add_f32 %s, %s, %s" % (v(base), v(base), v(base + 2)))
        e("ds_write_b32 %s, %s offset:%d" % (v(padr), v(part), P_CSF - P_CSA))
        e("ds_write_b32 %s, %s offset:%d" % (v(padr), v(part + 4), P_CSF - P_CSA + 128))
        e("s_waitcnt lgkmcnt(0)")
        csQ = va.alloc("p1a_csQ", 16, 4)
        csK = va.alloc("p1a_csK", 16, 4)
        for i in range(4):
            e("ds_read_b128 %s, %s offset:%d" % (v(csK + 4 * i, 4), v(cadr), 128 + 32 * i))
        for i in range(4):
            e("ds_read_b128 %s, %s offset:%d" % (v(csQ + 4 * i, 4), v(cadr), 32 * i))
        rs, mr = va.alloc("p1a_rs", 2, 2), va.alloc("p1a_mr", 2, 2)
        rq = va.alloc("p1a_rq", 2, 2)
        e("v_readfirstlane_b32 %s, %s" % (s(SFAST), v(fa)))
        finish_stats(oth, ta, rs, mr)
        e("v_mul_f32 %s, 0x%x, %s" % (v(rq), fbits(0.25 * LOG2E), v(rs)))
        e("v_sub_f32 %s, 0, %s" % (v(mr), v(s1)))
        e("s_waitcnt lgkmcnt(4)")
        for r in range(0, 16, 2):
            e("v_pk_fma_f32 %s, %s, %s, %s op_sel_hi:[0,1,1]" % (v(accK + r, 2), v(mr, 2), v(csK + r, 2), v(accK + r, 2)))
        for r in range(0, 16, 2):
            e("v_pk_mul_f32 %s, %s, %s op_sel_hi:[1,0]" % (v(accK + r, 2), v(accK + r, 2), v(rs, 2)))
        ka, kb = va.alloc("p1a_ka", 4, 4), va.alloc("p1a_kb", 4, 4)
        for i in range(4):
            e("v_cvt_pk_bf16_f32 %s, %s, %s" % (v(ka + i), v(accK + 2 * i), v(accK + 2 * i + 1)))
        for i in range(4):
            e("v_cvt_pk_bf16_f32 %s, %s, %s" % (v(kb + i), v(accK + 8 + 2 * i), v(accK + 9 + 2 * i)))
        e("s_lshl_b32 %s, %s, 17" % (s(ST[0]), s(SG)))
        e("s_lshl_b32 %s, %s, 12" % (s(ST[1]), s(SM)))
        e("s_add_u32 %s, %s, %s" % (s(ST[0]), s(ST[0]), s(ST[1])))
        e("s_lshl_b32 %s, %s, 10" % (s(ST[1]), s(SW)))
        e("s_add_u32 %s, %s, %s" % (s(ST[0]), s(ST[0]), s(ST[1])))
        e("s_add_u32 %s, %s, %d" % (s(ST[0]), s(ST[0]), WS_K))
        e("s_add_u32 %s, %s, 65536" % (s(ST[1]), s(ST[0])))

        def kst(fl):
            e("buffer_store_dwordx4 %s, %s, %s, %s offen %s" % (v(ka, 4), v(p.vL16), s(S_WS, 4), s(ST[0]), fl))
            e("buffer_store_dwordx4 %s, %s, %s, %s offen %s" % (v(kb, 4), v(p.vL16), s(S_WS, 4), s(ST[1]), fl))
        p.stores_fast_slow(kst)
        e("s_waitcnt lgkmcnt(0)")
        for r in range(0, 16, 2):
            e("v_pk_fma_f32 %s, %s, %s, %s op_sel_hi:[0,1,1]" % (v(accQ + r, 2), v(mr, 2), v(csQ + r, 2), v(accQ + r, 2)))
        for r in range(0, 16, 2):
            e("v_pk_mul_f32 %s, %s, %s op_sel_hi:[1,0]" % (v(accQ + r, 2), v(accQ + r, 2), v(rq, 2)))
        qb = va.alloc("p1a_qb", 4, 4)
        for i in range(4):
            e("v_cvt_pk_bf16_f32 %s, %s, %s" % (v(qb + i), v(accQ + 8 + 2 * i), v(accQ + 9 + 2 * i)))
        for i in range(4):
            e("v_cvt_pk_bf16_f32 %s, %s, %s" % (v(self.vQ + i), v(accQ + 2 * i), v(accQ + 2 * i + 1)))
        e("s_lshl_b32 %s, %s, 10" % (s(ST[0]), s(SW)))
        e("s_add_u32 %s, %s, %d" % (s(ST[0]), s(ST[0]), P1M + P_QB))
        e("v_add_u32 %s, %s, %s" % (v(adr), s(ST[0]), v(p.vL16)))
        e("ds_write_b128 %s, %s" % (v(adr), v(qb, 4)))
        e("s_waitcnt vmcnt(0) lgkmcnt(0)")
        e("s_barrier")
        barsA.append("E2")
        e("s_branch L_p1_join")
        va.free_prefix("p1a_")

        e.label("L_p1_roleB")
        lgB = p.lg.clone()
        barsB = []
        accV = va.alloc("p1b_accV", 16, 4)
        xfb = [va.alloc("p1b_xf%d" % i, 4, 4) for i in range(2)]
        wv = [va.alloc("p1b_wv%d" % i, 4, 4) for i in range(2)]
        csv = va.alloc("p1b_csv", 2, 2)
        e("v_mov_b32 %s, 0" % v(csv))
        e("v_mov_b32 %s, 0" % v(csv + 1))

        def readsB(st):
            c, j, b = st // 4, st % 4, st % 2
            xread(xfb[b], c, j)
            wread(wv[b], c, j, 2)
            for _ in range(3):
                lgB.issue(("r", st))

        def computeB(st):
            b, j = st % 2, st % 4
            cv = "0" if st == 0 else v(accV, 16)
            e("v_mfma_f32_32x32x16_bf16 %s, %s, %s, %s" % (v(accV, 16), v(xfb[b], 4), v(wv[b], 4), cv))
            ops = []
            if j == 0:
                ops = p.frag_ops("cs", wv[b], tmps, (csv,), mask)
            elif j >= 2:
                ops = p.frag_ops("st", xfb[b], tmps, (s1, s2), mask)
            for o in ops:
                e(o)

        loop(lgB, readsB, computeB, barsB)
        tb = va.alloc("p1b_t")
        adr = va.alloc("p1b_adr")
        sadr = va.alloc("p1b_sadr")
        padr = va.alloc("p1b_padr")
        write_stat_partial(1, tb, sadr)
        p.pair_total(csv, tb)
        e("v_and_b32 %s, 31, %s" % (v(adr), v(L)))
        e("v_lshlrev_b32 %s, 2, %s" % (v(adr), v(adr)))
        e("v_add_u32 %s, %d, %s" % (v(adr), P1M + P_CSB, v(adr)))
        e("s_and_b32 %s, %s, 3" % (s(ST[0]), s(SW)))
        e("s_lshl_b32 %s, %s, 7" % (s(ST[0]), s(ST[0])))
        e("v_add_u32 %s, %s, %s" % (v(padr), s(ST[0]), v(adr)))
        e("ds_write_b32 %s, %s" % (v(padr), v(csv)))
        radr = va.alloc("p1b_radr")
        cadr = va.alloc("p1b_cadr")
        e("s_and_b32 %s, %s, 3" % (s(ST[0]), s(SW)))
        e("s_lshl_b32 %s, %s, 8" % (s(ST[0]), s(ST[0])))
        e("s_add_u32 %s, %s, %d" % (s(ST[0]), s(ST[0]), P1M + P_RSB))
        e("v_and_b32 %s, 31, %s" % (v(radr), v(L)))
        e("v_lshlrev_b32 %s, 2, %s" % (v(radr), v(radr)))
        e("v_add_u32 %s, %s, %s" % (v(radr), s(ST[0]), v(radr)))
        e("v_lshrrev_b32 %s, 5, %s" % (v(cadr), v(L)))
        e("v_lshlrev_b32 %s, 4, %s" % (v(cadr), v(cadr)))
        e("v_add_u32 %s, %s, %s" % (v(cadr), s(ST[0]), v(cadr)))
        e("s_waitcnt lgkmcnt(0)")
        e("s_barrier")
        barsB.append("E1")
        part = va.alloc("p1b_part", 4, 4)
        oth = va.alloc("p1b_oth", 2, 2)
        fa = va.alloc("p1b_fa")
        e("ds_read_b64 %s, %s" % (v(oth, 2), v(sadr)))
        e("v_mov_b32 %s, %d" % (v(tb), MISC + M_CTRL))
        e("ds_read_b32 %s, %s" % (v(fa), v(tb)))
        for wv_ in range(4):
            e("ds_read_b32 %s, %s offset:%d" % (v(part + wv_), v(adr), wv_ * 128))
        e("s_waitcnt lgkmcnt(4)")
        rs, mr = va.alloc("p1b_rs"), va.alloc("p1b_mr")
        e("v_readfirstlane_b32 %s, %s" % (s(SFAST), v(fa)))
        finish_stats(oth, tb, rs, mr)
        e("ds_write_b32 %s, %s" % (v(radr), v(rs)))
        e("ds_write_b32 %s, %s offset:128" % (v(radr), v(mr)))
        e("s_waitcnt lgkmcnt(0)")
        rsT = va.alloc("p1b_rsT", 16, 4)
        mrT = va.alloc("p1b_mrT", 16, 4)
        for i in range(4):
            e("ds_read_b128 %s, %s offset:%d" % (v(rsT + 4 * i, 4), v(cadr), 32 * i))
        for i in range(4):
            e("ds_read_b128 %s, %s offset:%d" % (v(mrT + 4 * i, 4), v(cadr), 128 + 32 * i))
        e("v_add_f32 %s, %s, %s" % (v(part), v(part), v(part + 1)))
        e("v_add_f32 %s, %s, %s" % (v(part + 2), v(part + 2), v(part + 3)))
        e("v_add_f32 %s, %s, %s" % (v(csv), v(part), v(part + 2)))
        e("s_waitcnt lgkmcnt(4)")
        for r in range(0, 16, 2):
            e("v_pk_mul_f32 %s, %s, %s" % (v(accV + r, 2), v(accV + r, 2), v(rsT + r, 2)))
        e("v_sub_f32 %s, 0, %s" % (v(csv), v(csv)))
        e("s_waitcnt lgkmcnt(0)")
        for r in range(0, 16, 2):
            e("v_pk_fma_f32 %s, %s, %s, %s op_sel_hi:[1,0,1]" % (v(accV + r, 2), v(mrT + r, 2), v(csv, 2), v(accV + r, 2)))
        vf = va.alloc("p1b_vf", 8, 4)
        for i in range(8):
            e("v_cvt_pk_bf16_f32 %s, %s, %s" % (v(vf + i), v(accV + 2 * i), v(accV + 2 * i + 1)))
        vo = va.alloc("p1b_vo")
        e("v_bfe_u32 %s, %s, 4, 1" % (v(tb), v(L)))
        e("v_lshlrev_b32 %s, 16, %s" % (v(tb), v(tb)))
        e("v_lshrrev_b32 %s, 5, %s" % (v(vo), v(L)))
        e("v_lshlrev_b32 %s, 8, %s" % (v(vo), v(vo)))
        e("v_add_u32 %s, %s, %s" % (v(vo), v(vo), v(tb)))
        e("v_and_b32 %s, 15, %s" % (v(tb), v(L)))
        e("v_lshl_add_u32 %s, %s, 4, %s" % (v(vo), v(tb), v(vo)))
        e("s_lshl_b32 %s, %s, 17" % (s(ST[0]), s(SG)))
        e("s_lshl_b32 %s, %s, 12" % (s(ST[1]), s(SM)))
        e("s_add_u32 %s, %s, %s" % (s(ST[0]), s(ST[0]), s(ST[1])))
        e("s_and_b32 %s, %s, 3" % (s(ST[1]), s(SW)))
        e("s_lshl_b32 %s, %s, 10" % (s(ST[1]), s(ST[1])))
        e("s_add_u32 %s, %s, %s" % (s(ST[0]), s(ST[0]), s(ST[1])))
        e("s_add_u32 %s, %s, %d" % (s(ST[0]), s(ST[0]), WS_V))

        def vst(fl):
            e("buffer_store_dwordx4 %s, %s, %s, %s offen %s" % (v(vf, 4), v(vo), s(S_WS, 4), s(ST[0]), fl))
            e("buffer_store_dwordx4 %s, %s, %s, %s offen offset:512 %s" % (v(vf + 4, 4), v(vo), s(S_WS, 4), s(ST[0]), fl))
        p.stores_fast_slow(vst)
        e("s_waitcnt vmcnt(0) lgkmcnt(0)")
        e("s_barrier")
        barsB.append("E2")
        e("s_and_b32 %s, %s, 3" % (s(ST[0]), s(SW)))
        e("s_lshl_b32 %s, %s, 10" % (s(ST[0]), s(ST[0])))
        e("s_add_u32 %s, %s, %d" % (s(ST[0]), s(ST[0]), P1M + P_QB))
        e("v_add_u32 %s, %s, %s" % (v(adr), s(ST[0]), v(p.vL16)))
        e("ds_read_b128 %s, %s" % (v(self.vQ, 4), v(adr)))
        e("s_waitcnt lgkmcnt(0)")
        va.free_prefix("p1b_")
        e.label("L_p1_join")
        va.free_prefix("p1_")
        assert barsA == barsB
        p.bars += barsA
        p.stamp(1)
        p.barrier("E3")
        p.stamp(2)

    def attn_loader(self):
        p = self.l
        e, va, vm = p.e, p.va, p.vm

        def kv_issue(c):
            p.dma(S_WS, p.vL16, (self.sKVg, c * 4096), (self.sKVl_full, (c % 4) * KV_SLOT), ("kv", c), flags="sc1", n=4)

        self.sKVl_full = self.sKVl

        def wo_issue(c):
            e("s_add_u32 %s, %s, %d" % (s(ST[0]), s(self.sWOs), c))
            e("s_and_b32 %s, %s, 15" % (s(ST[0]), s(ST[0])))
            e("s_lshl_b32 %s, %s, 14" % (s(ST[0]), s(ST[0])))
            e("s_add_u32 %s, %s, %s" % (s(ST[0]), s(ST[0]), s(self.sWOg)))
            for i in range(2):
                p.dma(S_WO, p.vWF, (ST[0], i * 8192), (self.sWOl, (2 * c + i) * 1024), "wo")

        def pf_issue(k):
            e("s_and_b32 %s, %s, 14" % (s(ST[0]), s(SG)))
            e("s_add_u32 %s, %s, %s" % (s(ST[0]), s(ST[0]), s(self.sLW)))
            e("s_add_u32 %s, %s, %d" % (s(ST[0]), s(ST[0]), 4 * k))
            e("s_and_b32 %s, %s, 15" % (s(ST[0]), s(ST[0])))
            e("s_mul_i32 %s, %s, %d" % (s(ST[0]), s(ST[0]), 32 * 2752))
            e("s_lshl_b32 %s, %s, 5" % (s(ST[1]), s(self.sFs)))
            e("s_add_u32 %s, %s, %s" % (s(ST[0]), s(ST[0]), s(ST[1])))
            e("buffer_load_dword %s, %s, %s, %s offen" % (v(p.pfd), v(p.pfo), s(S_PF, 4), s(ST[0])))
            vm.issue("pf")

        e.label("L_attn_begin_ld")
        kv_issue(0)
        kv_issue(1)
        vm.wait(("kv", 0))
        p.barrier("A0")
        kv_issue(2)
        kv_issue(3)
        for c in range(15):
            p.fine(2)
            vm.wait(("kv", c + 1))
            p.fine(2)
            p.barrier("A%d" % (c + 1))
            if c >= 1 and c + 3 <= 15:
                kv_issue(c + 3)
            if c <= 7:
                wo_issue(c)
            if c % 2 == 1 and c <= 7 and not self.opts.get("nopf"):
                pf_issue(c // 2)
            if 8 <= c <= 9:
                self.gu_w_half(0, c - 8)
            if c == 10 and not self.opts.get("notouch"):
                self.dest_touch()
            if self.opts.get("dpf", 2) == 1 and c in (11, 12):
                self.dn_pf_issue(c - 11)
        vm.wait_all()
        p.barrier("F1")
        t0, t1 = va.alloc("al_t0"), va.alloc("al_t1")
        e("v_mov_b32 %s, %d" % (v(t0), MISC + M_CTRL + 4))
        e("ds_read_b32 %s, %s" % (v(t1), v(t0)))
        e("s_waitcnt lgkmcnt(0)")
        e("v_readfirstlane_b32 %s, %s" % (s(ST[0]), v(t1)))
        e("s_nop 1")
        e("s_cmp_eq_u32 %s, 0" % s(ST[0]))
        e("s_cbranch_scc1 L_attn_ok_ld")
        e("s_cmp_lg_u32 %s, 0" % s(SREDO))
        e("s_cbranch_scc1 L_attn_ok_ld")
        e("s_mov_b32 %s, 1" % s(SREDO))
        e("s_branch L_attn_begin_ld")
        e.label("L_attn_ok_ld")
        va.free("al_t0", "al_t1")

    def attn_compute(self):
        p = self.c
        e, va, vm, lg = p.e, p.va, p.vm, p.lg
        L = p.vL
        Q = self.vQ
        S = [va.alloc("at_S0", 16, 4), va.alloc("at_S1", 16, 4)]
        negM = va.alloc("at_negM", 16, 4)
        O = va.alloc("at_O", 16, 4)
        P = va.alloc("at_P", 8, 4)
        Kf = [va.alloc("at_K%d" % i, 4, 4) for i in range(2)]
        Vf = [va.alloc("at_V%d" % i, 8, 4) for i in range(2)]
        ka, vaa = va.alloc("at_ka"), va.alloc("at_va")
        t0, t1 = va.alloc("at_t0"), va.alloc("at_t1")
        sHead = SA[6]
        e("s_lshr_b32 %s, %s, 2" % (s(ST[0]), s(SW)))
        e("s_lshl_b32 %s, %s, 1" % (s(sHead), s(SG)))
        e("s_add_u32 %s, %s, %s" % (s(sHead), s(sHead), s(ST[0])))
        e("s_lshl_b32 %s, %s, 13" % (s(ST[0]), s(ST[0])))
        e("v_add_u32 %s, %s, %s" % (v(ka), s(ST[0]), v(p.vL16)))
        e("v_lshrrev_b32 %s, 5, %s" % (v(t0), v(L)))
        e("v_lshlrev_b32 %s, 8, %s" % (v(t0), v(t0)))
        e("v_and_b32 %s, 15, %s" % (v(t1), v(L)))
        e("v_lshl_add_u32 %s, %s, 4, %s" % (v(t0), v(t1), v(t0)))
        e("s_add_u32 %s, %s, 4096" % (s(ST[0]), s(ST[0])))
        e("v_add_u32 %s, %s, %s" % (v(vaa), s(ST[0]), v(t0)))

        e.label("L_attn_begin")
        for b in range(2):
            for i in range(8):
                e("v_mov_b32 %s, 0x%x" % (v(Vf[b] + i), ONES))

        def kread(t):
            c, i = t // 4, t % 4
            e("ds_read_b128 %s, %s offset:%d" % (v(Kf[t % 2], 4), v(ka), (c % 4) * KV_SLOT + i * 1024))
            lg.issue(("k", t))

        def vread(t):
            c, i = t // 4, t % 4
            e("s_mov_b64 exec, %s" % s(SHALF, 2))
            for f in range(2):
                e("ds_read_b128 %s, %s offset:%d" % (v(Vf[t % 2] + 4 * f, 4), v(vaa), (c % 4) * KV_SLOT + i * 1024 + f * 512))
                lg.issue(("v", t))
            e("s_mov_b64 exec, -1")

        p.barrier("A0")
        kread(0)
        kread(1)
        vread(0)
        lg.wait(("k", 0))
        skipm = p.lab("skip_max")
        e("s_cmp_lg_u32 %s, 0" % s(SREDO))
        e("s_cbranch_scc1 %s" % skipm)
        e("v_mfma_f32_32x32x16_bf16 %s, %s, %s, 0" % (v(S[0], 16), v(Kf[0], 4), v(Q, 4)))
        e("s_nop 11")
        e("v_max3_f32 %s, %s, %s, %s" % (v(t0), v(S[0]), v(S[0] + 1), v(S[0] + 2)))
        for i in range(3, 15, 2):
            e("v_max3_f32 %s, %s, %s, %s" % (v(t0), v(t0), v(S[0] + i), v(S[0] + i + 1)))
        e("v_max_f32 %s, %s, %s" % (v(t0), v(t0), v(S[0] + 15)))
        e("v_mov_b32 %s, %s" % (v(t1), v(t0)))
        e("s_nop 1")
        e("v_permlane32_swap_b32 %s, %s" % (v(t0), v(t1)))
        e("v_max_f32 %s, %s, %s" % (v(t0), v(t0), v(t1)))
        for i in range(16):
            e("v_sub_f32 %s, 0, %s" % (v(negM + i), v(t0)))
        e.label(skipm)
        e("s_nop 1")
        e("v_mfma_f32_32x32x16_bf16 %s, %s, %s, %s" % (v(S[0], 16), v(Kf[0], 4), v(Q, 4), v(negM, 16)))
        e("s_nop 7")

        def pv(t, f):
            first = (t == 0 and f == 0)
            e("v_mfma_f32_32x32x16_bf16 %s, %s, %s, %s" % (v(O, 16), v(Vf[t % 2] + 4 * f, 4), v(P + 4 * f, 4), "0" if first else v(O, 16)))

        NT = 64
        prio = self.opts.get("prio", 1)
        for t in range(NT):
            cur = S[t % 2]
            ex = lambda i: e("v_exp_f32 %s, %s" % (v(cur + i), v(cur + i)))
            cv = lambda i: e("v_cvt_pk_bf16_f32 %s, %s, %s" % (v(P + i), v(cur + 2 * i), v(cur + 2 * i + 1)))
            if prio == 1:
                e("s_setprio %d" % (3 - (t - 2) % 4))
            elif prio == 2:
                e("s_setprio %d" % (2 - min(2, (t - 2) % 4)))
            elif prio == 3 and t % 2 == 0:
                e("s_setprio %d" % (1 - ((t - 2) % 4) // 2))
            elif t == 0:
                e("s_nop 0")
            lg.wait_all()
            if t + 1 < NT:
                e("v_mfma_f32_32x32x16_bf16 %s, %s, %s, %s" % (v(S[(t + 1) % 2], 16), v(Kf[(t + 1) % 2], 4), v(Q, 4), v(negM, 16)))
            if t % 4 == 2 and t // 4 + 1 <= 15:
                p.fine(12)
                p.barrier("A%d" % (t // 4 + 1))
                p.fine(12)
            if t + 2 < NT:
                kread(t + 2)
            for i in range(4):
                ex(i)
            if t > 0:
                pv(t - 1, 1)
            if t + 1 < NT:
                vread(t + 1)
            cv(0); ex(4); ex(5); cv(1); ex(6); ex(7); cv(2); ex(8); cv(3); ex(9); ex(10)
            pv(t, 0)
            ex(11); cv(4); ex(12); ex(13); cv(5); ex(14); ex(15); cv(6)
            cv(7)
        e("s_setprio 0")
        e("s_nop 0")
        pv(NT - 1, 1)
        p.stamp(3)
        e("s_nop 11")
        chk = p.lab("chk_done")
        e("v_rcp_f32 %s, %s" % (v(t1), v(O + 8)))
        e("s_cmp_lg_u32 %s, 0" % s(SREDO))
        e("s_cbranch_scc1 %s" % chk)
        e("s_mov_b32 %s, 0x%x" % (s(ST[0]), fbits(2.0 ** 64)))
        e("v_cmp_nge_f32 vcc, %s, %s" % (s(ST[0]), v(O + 8)))
        e("s_nop 1")
        e("s_cbranch_vccz %s" % chk)
        e("v_mov_b32 %s, %d" % (v(t0), MISC + M_CTRL + 4))
        e("v_mov_b32 %s, 1" % v(S[0]))
        e("ds_write_b32 %s, %s" % (v(t0), v(S[0])))
        e.label(chk)
        for i in range(8):
            e("v_mul_f32 %s, %s, %s" % (v(O + i), v(O + i), v(t1)))
        for i in range(4):
            e("v_cvt_pk_bf16_f32 %s, %s, %s" % (v(P + i), v(O + 2 * i), v(O + 2 * i + 1)))
        e("s_lshl_b32 %s, %s, 2" % (s(ST[0]), s(SM)))
        e("s_and_b32 %s, %s, 3" % (s(ST[1]), s(SW)))
        e("s_add_u32 %s, %s, %s" % (s(ST[0]), s(ST[0]), s(ST[1])))
        e("s_lshl_b32 %s, %s, 5" % (s(ST[0]), s(ST[0])))
        e("s_add_u32 %s, %s, %s" % (s(ST[0]), s(ST[0]), s(sHead)))
        e("s_lshl_b32 %s, %s, 10" % (s(ST[0]), s(ST[0])))
        e("s_add_u32 %s, %s, %d" % (s(ST[0]), s(ST[0]), WS_O))
        e("buffer_store_dwordx4 %s, %s, %s, %s offen sc1" % (v(P, 4), v(p.vL16), s(S_WS, 4), s(ST[0])))
        e("s_waitcnt vmcnt(0) lgkmcnt(0)")
        vm.q, lg.q = [], []
        p.barrier("F1")
        e("v_mov_b32 %s, %d" % (v(t0), MISC + M_CTRL + 4))
        e("ds_read_b32 %s, %s" % (v(t1), v(t0)))
        e("s_waitcnt lgkmcnt(0)")
        e("v_readfirstlane_b32 %s, %s" % (s(ST[0]), v(t1)))
        e("s_nop 1")
        e("s_cmp_eq_u32 %s, 0" % s(ST[0]))
        e("s_cbranch_scc1 L_attn_ok")
        e("s_cmp_lg_u32 %s, 0" % s(SREDO))
        e("s_cbranch_scc1 L_attn_ok")
        e("s_mov_b32 %s, 1" % s(SREDO))
        e("s_lshl_b32 %s, %s, 16" % (s(ST[0]), s(sHead)))
        e("s_add_u32 %s, %s, %d" % (s(ST[0]), s(ST[0]), WS_K))
        e("s_mov_b32 %s, 64" % s(ST[1]))
        e("v_mov_b32 %s, 0xff800000" % v(t0))
        e.label("L_exact_max")
        e("buffer_load_dwordx4 %s, %s, %s, %s offen sc1" % (v(Kf[0], 4), v(p.vL16), s(S_WS, 4), s(ST[0])))
        e("s_add_u32 %s, %s, 1024" % (s(ST[0]), s(ST[0])))
        e("s_waitcnt vmcnt(0)")
        e("v_mfma_f32_32x32x16_bf16 %s, %s, %s, 0" % (v(S[0], 16), v(Kf[0], 4), v(Q, 4)))
        e("s_nop 11")
        for i in range(0, 16, 2):
            e("v_max3_f32 %s, %s, %s, %s" % (v(t0), v(t0), v(S[0] + i), v(S[0] + i + 1)))
        e("s_sub_u32 %s, %s, 1" % (s(ST[1]), s(ST[1])))
        e("s_cmp_lg_u32 %s, 0" % s(ST[1]))
        e("s_cbranch_scc1 L_exact_max")
        e("v_mov_b32 %s, %s" % (v(t1), v(t0)))
        e("s_nop 1")
        e("v_permlane32_swap_b32 %s, %s" % (v(t0), v(t1)))
        e("v_max_f32 %s, %s, %s" % (v(t0), v(t0), v(t1)))
        for i in range(16):
            e("v_sub_f32 %s, 0, %s" % (v(negM + i), v(t0)))
        e("s_branch L_attn_begin")
        e.label("L_attn_ok")
        va.free_prefix("at_")
        va.free("Q")

    def oproj_loader(self):
        p = self.l
        e, va, vm = p.e, p.va, p.vm

        def zupdate(a):
            sk = p.lab("zupd")
            e("s_cmp_lg_u32 s2, 0")
            e("s_cbranch_scc1 %s" % sk)
            e("s_mov_b64 exec, 1")
            e("buffer_store_dwordx2 %s, off, %s, 0 sc1" % (v(a, 2), s(S_WS, 4)))
            e.label(sk)
        sOg, sOl = SA[0], SA[1]
        e("s_lshl_b32 %s, %s, 2" % (s(ST[0]), s(SG)))
        e("s_lshr_b32 %s, %s, 3" % (s(ST[1]), s(SM)))
        e("s_lshl_b32 %s, %s, 1" % (s(ST[1]), s(ST[1])))
        e("s_add_u32 %s, %s, %s" % (s(ST[0]), s(ST[0]), s(ST[1])))
        e("s_and_b32 %s, %s, 1" % (s(ST[1]), s(self.sLW)))
        e("s_add_u32 %s, %s, %s" % (s(ST[0]), s(ST[0]), s(ST[1])))
        e("s_lshl_b32 %s, %s, 15" % (s(sOg), s(ST[0])))
        e("s_lshl_b32 %s, %s, 15" % (s(sOl), s(ST[1])))
        e("s_lshr_b32 %s, %s, 1" % (s(ST[1]), s(self.sLW)))
        e("s_lshl_b32 %s, %s, 14" % (s(ST[1]), s(ST[1])))
        e("s_add_u32 %s, %s, %s" % (s(sOl), s(sOl), s(ST[1])))
        e("s_add_u32 %s, %s, %s" % (s(sOg), s(sOg), s(ST[1])))
        e("s_add_u32 %s, %s, %d" % (s(sOg), s(sOg), WS_O))
        p.sync(1, SM, SG, SG, False, after_poll=zupdate)
        p.barrier("F2")

        def o_issue(cc):
            for pr in range(2):
                e("s_add_u32 %s, %s, %d" % (s(ST[0]), s(self.sRotO), 4 * cc + 2 * pr))
                e("s_and_b32 %s, %s, 15" % (s(ST[0]), s(ST[0])))
                e("s_lshl_b32 %s, %s, 10" % (s(ST[0]), s(ST[0])))
                e("s_add_u32 %s, %s, %s" % (s(ST[0]), s(ST[0]), s(sOg)))
                p.dma(S_WS, p.vL16, (ST[0], 0), (sOl, cc * 4096 + pr * 2048), ("o", cc), flags="sc1", n=2)
        o_issue(0)
        o_issue(1)
        for cc in range(4):
            vm.wait(("o", cc))
            p.barrier("Oc%d" % cc)
            if cc + 2 <= 3:
                o_issue(cc + 2)
        p.barrier("G1")
        self.gu_w_issue(1)
        p.barrier("X1")
        p.barrier("Y1")
        p.barrier("H1")
        p.sync(2, SG, SM, SG, True)
        p.barrier("H2")

    def tile64_roles(self):
        p = self.c
        e, va = p.e, p.va
        L = p.vL
        self.sTT, self.sCB = SA[12], SA[13]
        e("s_lshl_b32 %s, %s, 2" % (s(self.sTT), s(SG)))
        e("s_lshr_b32 %s, %s, 3" % (s(ST[0]), s(SM)))
        e("s_lshl_b32 %s, %s, 1" % (s(ST[0]), s(ST[0])))
        e("s_add_u32 %s, %s, %s" % (s(self.sTT), s(self.sTT), s(ST[0])))
        e("s_and_b32 %s, %s, 1" % (s(ST[0]), s(SW)))
        e("s_add_u32 %s, %s, %s" % (s(self.sTT), s(self.sTT), s(ST[0])))
        e("s_and_b32 %s, %s, 7" % (s(self.sCB), s(SM)))
        e("s_lshl_b32 %s, %s, 6" % (s(self.sCB), s(self.sCB)))
        e("s_bfe_u32 %s, %s, 0x10001" % (s(ST[0]), s(SW)))
        e("s_lshl_b32 %s, %s, 5" % (s(ST[0]), s(ST[0])))
        e("s_add_u32 %s, %s, %s" % (s(self.sCB), s(self.sCB), s(ST[0])))
        e("s_lshr_b32 %s, %s, 2" % (s(ST[0]), s(SW)))
        e("s_lshl_b32 %s, %s, 4" % (s(ST[0]), s(ST[0])))
        e("s_add_u32 %s, %s, %s" % (s(self.sCB), s(self.sCB), s(ST[0])))
        self.vTrP = va.alloc("TrP")
        a = va.alloc("t64_a")
        b_ = va.alloc("t64_b")
        e("v_lshrrev_b32 %s, 5, %s" % (v(a), v(L)))
        e("v_lshlrev_b32 %s, 2, %s" % (v(a), v(a)))
        e("v_bfe_u32 %s, %s, 2, 2" % (v(b_), v(L)))
        e("v_add_u32 %s, %s, %s" % (v(a), v(a), v(b_)))
        e("v_lshlrev_b32 %s, 7, %s" % (v(self.vTrP), v(a)))
        e("v_lshrrev_b32 %s, 1, %s" % (v(b_), v(b_)))
        e("s_bfe_u32 %s, %s, 0x10001" % (s(ST[0]), s(SW)))
        e("v_xor_b32 %s, %s, %s" % (v(b_), s(ST[0]), v(b_)))
        e("v_lshl_add_u32 %s, %s, 6, %s" % (v(self.vTrP), v(b_), v(self.vTrP)))
        e("s_lshr_b32 %s, %s, 2" % (s(ST[0]), s(SW)))
        e("v_bfe_u32 %s, %s, 4, 1" % (v(a), v(L)))
        e("v_xor_b32 %s, %s, %s" % (v(a), s(ST[0]), v(a)))
        e("v_lshl_add_u32 %s, %s, 5, %s" % (v(self.vTrP), v(a), v(self.vTrP)))
        e("v_and_b32 %s, 3, %s" % (v(a), v(L)))
        e("v_lshl_add_u32 %s, %s, 3, %s" % (v(self.vTrP), v(a), v(self.vTrP)))
        self.vRow = va.alloc("Row")
        e("v_and_b32 %s, 31, %s" % (v(a), v(L)))
        e("v_lshlrev_b32 %s, 10, %s" % (v(self.vRow), v(a)))
        e("v_lshrrev_b32 %s, 5, %s" % (v(a), v(L)))
        e("v_lshl_add_u32 %s, %s, 4, %s" % (v(self.vRow), v(a), v(self.vRow)))
        self.sRow = SA[14]
        e("s_lshl_b32 %s, %s, 15" % (s(self.sRow), s(self.sTT)))
        e("s_lshl_b32 %s, %s, 1" % (s(ST[0]), s(self.sCB)))
        e("s_add_u32 %s, %s, %s" % (s(self.sRow), s(self.sRow), s(ST[0])))
        va.free("t64_a", "t64_b")

    def exchange_halves(self, acc, base, tag):
        p = self.c
        e, va = p.e, p.va
        a, b = va.alloc("xc_a"), va.alloc("xc_b")
        r = va.alloc("xc_r", 8, 4)
        e("s_lshl_b32 %s, %s, 11" % (s(ST[0]), s(SW)))
        e("s_add_u32 %s, %s, %d" % (s(ST[1]), s(ST[0]), base))
        e("s_xor_b32 %s, %s, %d" % (s(ST[0]), s(ST[0]), 4 << 11))
        e("s_add_u32 %s, %s, %d" % (s(ST[0]), s(ST[0]), base))
        e("v_add_u32 %s, %s, %s" % (v(a), s(ST[1]), v(p.vL16)))
        e("v_add_u32 %s, %s, %s" % (v(b), s(ST[0]), v(p.vL16)))
        e("s_nop 7")
        e("ds_write_b128 %s, %s" % (v(a), v(acc + 8, 4)))
        e("ds_write_b128 %s, %s offset:1024" % (v(a), v(acc + 12, 4)))
        e("s_waitcnt lgkmcnt(0)")
        p.barrier(tag)
        e("ds_read_b128 %s, %s" % (v(r, 4), v(b)))
        e("ds_read_b128 %s, %s offset:1024" % (v(r + 4, 4), v(b)))
        e("s_waitcnt lgkmcnt(0)")
        for i in range(8):
            e("v_add_f32 %s, %s, %s" % (v(acc + i), v(acc + i), v(r + i)))
        va.free("xc_a", "xc_b", "xc_r")

    def add_packed(self, acc, pk):
        p = self.c
        e, va = p.e, p.va
        a = va.alloc("ap_a")
        for i in range(4):
            e("v_lshlrev_b32 %s, 16, %s" % (v(a), v(pk + i)))
            e("v_add_f32 %s, %s, %s" % (v(acc + 2 * i), v(acc + 2 * i), v(a)))
            e("v_and_b32 %s, 0xffff0000, %s" % (v(a), v(pk + i)))
            e("v_add_f32 %s, %s, %s" % (v(acc + 2 * i + 1), v(acc + 2 * i + 1), v(a)))
        va.free("ap_a")

    def oproj_compute(self):
        p = self.c
        e, va, vm, lg = p.e, p.va, p.vm, p.lg
        self.tile64_roles()
        xres = va.alloc("op_x", 4, 4)
        e("buffer_load_dwordx4 %s, %s, %s, %s offen" % (v(xres, 4), v(self.vRow), s(S_X, 4), s(self.sRow)))
        vm.issue("xres")
        oa, wa = va.alloc("op_oa"), va.alloc("op_wa")
        e("s_and_b32 %s, %s, 1" % (s(ST[0]), s(SW)))
        e("s_lshl_b32 %s, %s, 15" % (s(ST[0]), s(ST[0])))
        e("s_lshr_b32 %s, %s, 2" % (s(ST[1]), s(SW)))
        e("s_lshl_b32 %s, %s, 14" % (s(ST[1]), s(ST[1])))
        e("s_add_u32 %s, %s, %s" % (s(ST[0]), s(ST[0]), s(ST[1])))
        e("v_add_u32 %s, %s, %s" % (v(oa), s(ST[0]), v(p.vL16)))
        e("s_lshl_b32 %s, %s, 1" % (s(ST[0]), s(ST[1])))
        e("s_add_u32 %s, %s, %d" % (s(ST[0]), s(ST[0]), WO_LDS))
        e("v_add_u32 %s, %s, %s" % (v(wa), s(ST[0]), v(self.vTrP)))
        acc = va.alloc("op_acc", 16, 4)
        of = [va.alloc("op_of%d" % i, 4, 4) for i in range(2)]
        wf = [va.alloc("op_wf%d" % i, 4, 4) for i in range(2)]

        def reads(st):
            b = st % 2
            e("ds_read_b128 %s, %s offset:%d" % (v(of[b], 4), v(oa), st * 1024))
            e("ds_read_b64_tr_b16 %s, %s offset:%d" % (v(wf[b], 2), v(wa), st * 2048))
            e("ds_read_b64_tr_b16 %s, %s offset:%d" % (v(wf[b] + 2, 2), v(wa), st * 2048 + 1024))
            for _ in range(3):
                lg.issue(("r", st))

        p.barrier("F2")
        p.stamp(4)
        p.barrier("Oc0")
        reads(0)
        for st in range(16):
            nxt = st + 1
            if nxt < 16:
                if nxt % 4 == 0:
                    p.barrier("Oc%d" % (nxt // 4))
                reads(nxt)
                lg.wait(("r", st))
            else:
                lg.wait_all()
            b = st % 2
            e("v_mfma_f32_32x32x16_bf16 %s, %s, %s, %s" % (v(acc, 16), v(wf[b], 4), v(of[b], 4), "0" if st == 0 else v(acc, 16)))
        p.barrier("G1")
        vm.wait("xres")
        e("v_permlane32_swap_b32 %s, %s" % (v(xres), v(xres + 2)))
        e("v_permlane32_swap_b32 %s, %s" % (v(xres + 1), v(xres + 3)))
        self.exchange_halves(acc, XCH_OP, "X1")
        self.add_packed(acc, xres)
        self.vHF = va.alloc("HF", 4, 4)
        for i in range(4):
            e("v_cvt_pk_bf16_f32 %s, %s, %s" % (v(self.vHF + i), v(acc + 2 * i), v(acc + 2 * i + 1)))
        e("s_lshl_b32 %s, %s, 15" % (s(ST[0]), s(self.sTT)))
        e("s_lshl_b32 %s, %s, 6" % (s(ST[1]), s(self.sCB)))
        e("s_add_u32 %s, %s, %s" % (s(ST[0]), s(ST[0]), s(ST[1])))
        e("s_add_u32 %s, %s, %d" % (s(ST[0]), s(ST[0]), WS_H))

        def hst(fl):
            e("buffer_store_dwordx4 %s, %s, %s, %s offen %s" % (v(self.vHF, 4), v(p.vL16), s(S_WS, 4), s(ST[0]), fl))
        p.stores_fast_slow(hst)
        st = va.alloc("op_st", 2, 2)
        ta, tb, sad = va.alloc("op_ta"), va.alloc("op_tb"), va.alloc("op_sad")
        for i in range(4):
            e("v_lshlrev_b32 %s, 16, %s" % (v(ta), v(self.vHF + i)))
            e("v_and_b32 %s, 0xffff0000, %s" % (v(tb), v(self.vHF + i)))
            if i == 0:
                e("v_add_f32 %s, %s, %s" % (v(st), v(ta), v(tb)))
                e("v_mul_f32 %s, %s, %s" % (v(st + 1), v(ta), v(ta)))
            else:
                e("v_add_f32 %s, %s, %s" % (v(st), v(st), v(ta)))
                e("v_fmac_f32 %s, %s, %s" % (v(st + 1), v(ta), v(ta)))
                e("v_add_f32 %s, %s, %s" % (v(st), v(st), v(tb)))
            e("v_fmac_f32 %s, %s, %s" % (v(st + 1), v(tb), v(tb)))
        p.xhalf_sum(st, ta)
        p.xhalf_sum(st + 1, ta)
        e("v_and_b32 %s, 31, %s" % (v(sad), v(p.vL)))
        e("v_lshlrev_b32 %s, 3, %s" % (v(sad), v(sad)))
        e("s_and_b32 %s, %s, 1" % (s(ST[0]), s(SW)))
        e("s_lshl_b32 %s, %s, 10" % (s(ST[0]), s(ST[0])))
        e("s_add_u32 %s, %s, %d" % (s(ST[0]), s(ST[0]), OP_STP))
        e("v_add_u32 %s, %s, %s" % (v(sad), s(ST[0]), v(sad)))
        e("s_bfe_u32 %s, %s, 0x10001" % (s(ST[0]), s(SW)))
        e("s_lshl_b32 %s, %s, 1" % (s(ST[0]), s(ST[0])))
        e("s_lshr_b32 %s, %s, 2" % (s(ST[1]), s(SW)))
        e("s_add_u32 %s, %s, %s" % (s(ST[0]), s(ST[0]), s(ST[1])))
        e("s_lshl_b32 %s, %s, 8" % (s(ST[0]), s(ST[0])))
        e("v_add_u32 %s, %s, %s" % (v(ta), s(ST[0]), v(sad)))
        e("ds_write_b64 %s, %s" % (v(ta), v(st, 2)))
        e("s_waitcnt lgkmcnt(0)")
        p.barrier("Y1")
        sk = p.lab("st_skip")
        e("s_cmp_ge_u32 %s, 2" % s(SW))
        e("s_cbranch_scc1 %s" % sk)
        pr_ = va.alloc("op_pr", 8, 4)
        for q in range(4):
            e("ds_read_b64 %s, %s offset:%d" % (v(pr_ + 2 * q, 2), v(sad), q * 256))
        e("s_lshl_b32 %s, %s, 3" % (s(ST[0]), s(self.sTT)))
        e("s_and_b32 %s, %s, 7" % (s(ST[1]), s(SM)))
        e("s_add_u32 %s, %s, %s" % (s(ST[0]), s(ST[0]), s(ST[1])))
        e("s_lshl_b32 %s, %s, 8" % (s(ST[0]), s(ST[0])))
        e("s_add_u32 %s, %s, %d" % (s(ST[0]), s(ST[0]), WS_ST))
        e("v_and_b32 %s, 31, %s" % (v(tb), v(p.vL)))
        e("v_lshlrev_b32 %s, 3, %s" % (v(tb), v(tb)))
        e("s_waitcnt lgkmcnt(0)")
        for k in range(2):
            e("v_add_f32 %s, %s, %s" % (v(pr_ + k), v(pr_ + k), v(pr_ + 2 + k)))
            e("v_add_f32 %s, %s, %s" % (v(pr_ + 4 + k), v(pr_ + 4 + k), v(pr_ + 6 + k)))
            e("v_add_f32 %s, %s, %s" % (v(pr_ + k), v(pr_ + k), v(pr_ + 4 + k)))

        def sst(fl):
            e("buffer_store_dwordx2 %s, %s, %s, %s offen %s" % (v(pr_, 2), v(tb), s(S_WS, 4), s(ST[0]), fl))
        p.stores_fast_slow(sst)
        e.label(sk)
        e("s_waitcnt vmcnt(0)")
        vm.q = []
        p.barrier("H1")
        va.free_prefix("op_")
        p.stamp(5)
        p.barrier("H2")
        p.stamp(6)

    def gateup_loader(self):
        p = self.l
        e, vm = p.e, p.vm
        sHg, sHl = SA[0], SA[1]
        e("s_lshl_b32 %s, %s, 2" % (s(ST[0]), s(SG)))
        e("s_add_u32 %s, %s, %s" % (s(ST[0]), s(ST[0]), s(self.sLW)))
        e("s_lshl_b32 %s, %s, 15" % (s(sHg), s(ST[0])))
        e("s_add_u32 %s, %s, %d" % (s(sHg), s(sHg), WS_H))
        e("s_lshl_b32 %s, %s, 12" % (s(sHl), s(self.sLW)))

        def h_issue(c):
            p.dma(S_WS, p.vL16, (sHg, c * 4096), (sHl, GU_HSLOT[c % 3]), ("gh", c), flags="sc1", n=4)
        h_issue(0)
        h_issue(1)
        for c in range(8):
            p.fine(4)
            vm.wait([("gw", c), ("gh", c)])
            p.fine(4)
            p.barrier("Gc%d" % c)
            if c + 2 <= 7:
                self.gu_w_issue(c + 2)
                h_issue(c + 2)
            if self.opts.get("dpf", 2) == 2 and c in (5, 6):
                self.dn_pf_issue(c - 5)
        p.barrier("J1")
        for c in range(5):
            self.dn_w_issue(c)
        p.barrier("J2")
        p.sync(3, SG, SM, SG, True)
        p.barrier("J3")

    def gateup_compute(self):
        p = self.c
        e, va, vm, lg = p.e, p.va, p.vm, p.lg
        L = p.vL
        sF0, sR, sFs = SA[2], SA[3], SA[10]
        e("s_mul_i32 %s, %s, 6" % (s(sFs), s(SM)))
        e("s_lshl_b32 %s, %s, 2" % (s(ST[0]), s(SM)))
        e("s_add_u32 %s, %s, 22" % (s(ST[0]), s(ST[0])))
        e("s_min_u32 %s, %s, %s" % (s(sFs), s(sFs), s(ST[0])))
        e("s_lshr_b32 %s, %s, 2" % (s(ST[1]), s(SW)))
        e("s_mul_i32 %s, %s, 3" % (s(sF0), s(ST[1])))
        e("s_lshl_b32 %s, %s, 1" % (s(sR), s(ST[1])))
        e("s_add_u32 %s, %s, %s" % (s(sR), s(sR), s(SW)))
        t0, t1 = va.alloc("gu_t0"), va.alloc("gu_t1")
        wa = [[va.alloc("gu_wa%d%d" % (b, k)) for k in range(4)] for b in range(2)]
        ha = [va.alloc("gu_ha%d" % k) for k in range(4)]
        e("v_lshrrev_b32 %s, 5, %s" % (v(t0), v(L)))
        e("v_lshlrev_b32 %s, 2, %s" % (v(t0), v(t0)))
        e("v_bfe_u32 %s, %s, 2, 2" % (v(t1), v(L)))
        e("v_add_u32 %s, %s, %s" % (v(t0), v(t0), v(t1)))
        e("v_mul_u32_u24 %s, 192, %s" % (v(t0), v(t0)))
        e("v_and_b32 %s, 3, %s" % (v(t1), v(L)))
        e("v_lshl_add_u32 %s, %s, 3, %s" % (v(t0), v(t1), v(t0)))
        e("v_bfe_u32 %s, %s, 4, 1" % (v(t1), v(L)))
        e("v_mul_u32_u24 %s, %d, %s" % (v(t1), GU_UP, v(t1)))
        e("v_add_u32 %s, %s, %s" % (v(t0), v(t0), v(t1)))
        e("s_lshl_b32 %s, %s, 5" % (s(ST[2]), s(sF0)))
        e("v_add_u32 %s, %s, %s" % (v(t0), s(ST[2]), v(t0)))
        e("s_and_b32 %s, %s, 3" % (s(ST[0]), s(SW)))
        e("s_lshl_b32 %s, %s, 12" % (s(ST[0]), s(ST[0])))
        e("s_add_u32 %s, %s, %d" % (s(ST[0]), s(ST[0]), GU_HSLOT[0]))
        e("v_add_u32 %s, %s, %s" % (v(t1), s(ST[0]), v(p.vL16)))
        for k in range(4):
            e("s_add_u32 %s, %s, %d" % (s(ST[0]), s(sR), k))
            e("s_and_b32 %s, %s, 3" % (s(ST[0]), s(ST[0])))
            e("s_mul_i32 %s, %s, 3072" % (s(ST[1]), s(ST[0])))
            e("s_lshl_b32 %s, %s, 10" % (s(ST[0]), s(ST[0])))
            e("v_add_u32 %s, %s, %s" % (v(wa[0][k]), s(ST[1]), v(t0)))
            e("v_add_u32 %s, %s, %s" % (v(ha[k]), s(ST[0]), v(t1)))
            e("v_add_u32 %s, %d, %s" % (v(wa[1][k]), GU_WSLOT[0], v(wa[0][k])))
        acc = [va.alloc("gu_acc%d" % j, 16, 4) for j in range(3)]
        hf = [va.alloc("gu_hf%d" % i, 4, 4) for i in range(2)]
        wf = [[va.alloc("gu_wf%d%d" % (i, j), 4, 4) for j in range(3)] for i in range(2)]
        mask = va.alloc("gu_mask")
        tmps = [va.alloc("gu_tp0", 2, 2), va.alloc("gu_tp1", 2, 2)]
        cs = [va.alloc("gu_cs%d" % j, 2, 2) for j in range(3)]
        stp = va.alloc("gu_stp", 8, 4)
        e("v_and_b32 %s, 31, %s" % (v(t0), v(L)))
        e("v_lshlrev_b32 %s, 3, %s" % (v(t0), v(t0)))
        e("v_lshrrev_b32 %s, 5, %s" % (v(t1), v(L)))
        e("v_lshl_add_u32 %s, %s, 10, %s" % (v(t0), v(t1), v(t0)))
        e("s_lshl_b32 %s, %s, 2" % (s(ST[0]), s(SG)))
        e("s_and_b32 %s, %s, 3" % (s(ST[1]), s(SW)))
        e("s_add_u32 %s, %s, %s" % (s(ST[0]), s(ST[0]), s(ST[1])))
        e("s_lshl_b32 %s, %s, 11" % (s(ST[0]), s(ST[0])))
        e("s_add_u32 %s, %s, %d" % (s(ST[0]), s(ST[0]), WS_ST))
        for q in range(4):
            e("buffer_load_dwordx2 %s, %s, %s, %s offen offset:%d sc1" % (v(stp + 2 * q, 2), v(t0), s(S_WS, 4), s(ST[0]), q * 256))
            vm.issue("stp")
        e("v_mov_b32 %s, 0xffff0000" % v(mask))
        for r in cs:
            e("v_mov_b32 %s, 0" % v(r))
            e("v_mov_b32 %s, 0" % v(r + 1))

        def reads(st):
            c, k, b = st // 4, st % 4, st % 2
            e("ds_read_b128 %s, %s offset:%d" % (v(hf[b], 4), v(ha[k]), (c % 3) * 16384))
            slot = c % 4
            base, off = (1, 0) if slot == 0 else (0, GU_WSLOT[slot])
            for j in range(3):
                o = off + j * 32
                e("ds_read_b64_tr_b16 %s, %s offset:%d" % (v(wf[b][j], 2), v(wa[base][k]), o))
                e("ds_read_b64_tr_b16 %s, %s offset:%d" % (v(wf[b][j] + 2, 2), v(wa[base][k]), o + 1536))
            for _ in range(7):
                lg.issue(("r", st))

        def compute(st):
            b, k = st % 2, st % 4
            ops = []
            if k < 3:
                ops += p.frag_ops("cs", wf[b][k], tmps, (cs[k],), mask)
            per = (len(ops) + 2) // 3
            for j in range(3):
                e("v_mfma_f32_32x32x16_bf16 %s, %s, %s, %s" % (v(acc[j], 16), v(wf[b][j], 4), v(hf[b], 4), "0" if st == 0 else v(acc[j], 16)))
                for o in ops[j * per:(j + 1) * per]:
                    e(o)

        p.barrier("Gc0")
        reads(0)
        for st in range(32):
            nxt = st + 1
            if nxt < 32:
                if nxt % 4 == 0:
                    lg.wait_all()
                    p.fine(14)
                    p.barrier("Gc%d" % (nxt // 4))
                    p.fine(14)
                reads(nxt)
                lg.wait(("r", st))
            else:
                lg.wait_all()
            compute(st)
        for i in range(2):
            va.free("gu_hf%d" % i, "gu_wf%d0" % i, "gu_wf%d1" % i, "gu_wf%d2" % i)
        for k in range(4):
            va.free("gu_wa0%d" % k, "gu_wa1%d" % k, "gu_ha%d" % k)
        pa = va.alloc("gu_pa")
        e("v_and_b32 %s, 31, %s" % (v(t1), v(L)))
        e("v_lshlrev_b32 %s, 2, %s" % (v(pa), v(t1)))
        e("s_mul_i32 %s, %s, 384" % (s(ST[0]), s(SW)))
        e("s_add_u32 %s, %s, %d" % (s(ST[1]), s(ST[0]), GU_T + GU_CSP))
        e("v_add_u32 %s, %s, %s" % (v(pa), s(ST[1]), v(pa)))
        for j in range(3):
            p.pair_total(cs[j], t0)
            e("ds_write_b32 %s, %s offset:%d" % (v(pa), v(cs[j]), j * 128))
        ra = va.alloc("gu_ra")
        e("s_lshr_b32 %s, %s, 2" % (s(ST[1]), s(SW)))
        e("s_mul_i32 %s, %s, 1536" % (s(ST[1]), s(ST[1])))
        e("s_add_u32 %s, %s, %d" % (s(ST[1]), s(ST[1]), GU_T + GU_CSP))
        e("v_lshlrev_b32 %s, 2, %s" % (v(ra), v(t1)))
        e("v_add_u32 %s, %s, %s" % (v(ra), s(ST[1]), v(ra)))
        e("s_waitcnt lgkmcnt(0)")
        p.barrier("J1")
        p.stamp(7)
        part = va.alloc("gu_part", 12, 4)
        for j in range(3):
            for t in range(4):
                e("ds_read_b32 %s, %s offset:%d" % (v(part + 4 * j + t), v(ra), t * 384 + j * 128))
        vm.wait("stp")
        for k in range(2):
            e("v_add_f32 %s, %s, %s" % (v(stp + k), v(stp + k), v(stp + 2 + k)))
            e("v_add_f32 %s, %s, %s" % (v(stp + 4 + k), v(stp + 4 + k), v(stp + 6 + k)))
            e("v_add_f32 %s, %s, %s" % (v(stp + k), v(stp + k), v(stp + 4 + k)))
        p.xhalf_sum(stp, t0)
        p.xhalf_sum(stp + 1, t0)
        nm, c2, ve = va.alloc("gu_nm", 2, 2), va.alloc("gu_c2", 2, 2), va.alloc("gu_ve", 2, 2)
        e("v_mul_f32 %s, 0x%x, %s" % (v(nm), fbits(-1.0 / 512), v(stp)))
        e("v_mul_f32 %s, %s, %s" % (v(t0), v(nm), v(nm)))
        e("v_mov_b32 %s, 0x%x" % (v(ve), fbits(1.0 / 512)))
        e("v_fma_f32 %s, %s, %s, -%s" % (v(ve), v(stp + 1), v(ve), v(t0)))
        e("v_max_f32 %s, 0, %s" % (v(ve), v(ve)))
        e("v_add_f32 %s, 0x%x, %s" % (v(ve), fbits(1e-5), v(ve)))
        e("v_rsq_f32 %s, %s" % (v(c2), v(ve)))
        e("s_nop 0")
        e("v_mul_f32 %s, 0x%x, %s" % (v(c2), fbits(-LOG2E), v(c2)))
        e("s_waitcnt lgkmcnt(0)")
        for j in range(3):
            b = part + 4 * j
            e("v_add_f32 %s, %s, %s" % (v(b), v(b), v(b + 1)))
            e("v_add_f32 %s, %s, %s" % (v(b + 2), v(b + 2), v(b + 3)))
            e("v_add_f32 %s, %s, %s" % (v(b), v(b), v(b + 2)))
            e("ds_write_b32 %s, %s offset:%d" % (v(pa), v(b), GU_CSF - GU_CSP + j * 128))
        csr = va.alloc("gu_csr", 16, 4)
        ca = va.alloc("gu_ca")
        tg, tu, te = va.alloc("gu_tg", 8, 4), va.alloc("gu_tu", 8, 4), va.alloc("gu_te", 8, 4)
        pk = va.alloc("gu_pk", 4, 4)
        e("v_lshrrev_b32 %s, 5, %s" % (v(ca), v(L)))
        e("v_lshlrev_b32 %s, 4, %s" % (v(ca), v(ca)))
        e("s_mul_i32 %s, %s, 384" % (s(ST[0]), s(SW)))
        e("s_add_u32 %s, %s, %d" % (s(ST[0]), s(ST[0]), GU_T + GU_CSF))
        e("v_add_u32 %s, %s, %s" % (v(ca), s(ST[0]), v(ca)))
        sAo, sCnt = SA[5], SA[7]
        e("s_lshl_b32 %s, %s, 2" % (s(ST[0]), s(SG)))
        e("s_and_b32 %s, %s, 3" % (s(ST[1]), s(SW)))
        e("s_add_u32 %s, %s, %s" % (s(ST[0]), s(ST[0]), s(ST[1])))
        e("s_mul_i32 %s, %s, 86" % (s(ST[0]), s(ST[0])))
        e("s_add_u32 %s, %s, %s" % (s(ST[0]), s(ST[0]), s(sFs)))
        e("s_add_u32 %s, %s, %s" % (s(ST[0]), s(ST[0]), s(sF0)))
        e("s_lshl_b32 %s, %s, 10" % (s(sAo), s(ST[0])))
        e("s_add_u32 %s, %s, %d" % (s(sAo), s(sAo), WS_A))
        e("s_cmp_lt_u32 %s, 11" % s(SM))
        e("s_cselect_b32 %s, 6, 4" % s(sCnt))
        e("s_waitcnt lgkmcnt(0)")
        for j in range(3):
            for i in range(4):
                e("ds_read_b128 %s, %s offset:%d" % (v(csr + 4 * i, 4), v(ca), j * 128 + 32 * i))
            e("s_waitcnt lgkmcnt(2)")
            for r in range(0, 8, 2):
                e("v_pk_fma_f32 %s, %s, %s, %s op_sel_hi:[0,1,1]" % (v(tg + r, 2), v(nm, 2), v(csr + r, 2), v(acc[j] + r, 2)))
            for r in range(0, 8, 2):
                e("v_pk_mul_f32 %s, %s, %s op_sel_hi:[0,1]" % (v(te + r, 2), v(c2, 2), v(tg + r, 2)))
            for r in range(8):
                e("v_exp_f32 %s, %s" % (v(te + r), v(te + r)))
            e("s_waitcnt lgkmcnt(0)")
            for r in range(0, 8, 2):
                e("v_pk_fma_f32 %s, %s, %s, %s op_sel_hi:[0,1,1]" % (v(tu + r, 2), v(nm, 2), v(csr + 8 + r, 2), v(acc[j] + 8 + r, 2)))
            for r in range(0, 8, 2):
                e("v_pk_fma_f32 %s, %s, %s, %s op_sel_hi:[1,0,0]" % (v(te + r, 2), v(te + r, 2), v(ve, 2), v(ve, 2)))
            for r in range(8):
                e("v_rcp_f32 %s, %s" % (v(te + r), v(te + r)))
            for r in range(0, 8, 2):
                e("v_pk_mul_f32 %s, %s, %s" % (v(tg + r, 2), v(tg + r, 2), v(tu + r, 2)))
            for r in range(0, 8, 2):
                e("v_pk_mul_f32 %s, %s, %s" % (v(tg + r, 2), v(tg + r, 2), v(te + r, 2)))
            for i in range(4):
                e("v_cvt_pk_bf16_f32 %s, %s, %s" % (v(pk + i), v(tg + 2 * i), v(tg + 2 * i + 1)))
            sk = p.lab("act_skip")
            e("s_add_u32 %s, %s, %d" % (s(ST[0]), s(sF0), j))
            e("s_cmp_ge_u32 %s, %s" % (s(ST[0]), s(sCnt)))
            e("s_cbranch_scc1 %s" % sk)
            e("s_add_u32 %s, %s, %d" % (s(ST[0]), s(sAo), j * 1024))

            def ast(fl):
                e("buffer_store_dwordx4 %s, %s, %s, %s offen %s" % (v(pk, 4), v(p.vL16), s(S_WS, 4), s(ST[0]), fl))
            p.stores_fast_slow(ast)
            e.label(sk)
            e("s_nop 1")
        e("s_waitcnt vmcnt(0)")
        vm.q = []
        p.barrier("J2")
        va.free_prefix("gu_")
        p.stamp(8)
        p.barrier("J3")
        p.stamp(9)

    def down_loader(self):
        p = self.l
        e, vm = p.e, p.vm
        sAg, sAl = SA[0], SA[1]
        e("s_lshl_b32 %s, %s, 2" % (s(ST[0]), s(SG)))
        e("s_lshr_b32 %s, %s, 3" % (s(ST[1]), s(SM)))
        e("s_lshl_b32 %s, %s, 1" % (s(ST[1]), s(ST[1])))
        e("s_add_u32 %s, %s, %s" % (s(ST[0]), s(ST[0]), s(ST[1])))
        e("s_and_b32 %s, %s, 1" % (s(ST[1]), s(self.sLW)))
        e("s_add_u32 %s, %s, %s" % (s(ST[0]), s(ST[0]), s(ST[1])))
        e("s_mul_i32 %s, %s, 86" % (s(ST[0]), s(ST[0])))
        e("s_lshr_b32 %s, %s, 1" % (s(ST[2]), s(self.sLW)))
        e("s_mul_i32 %s, %s, 43" % (s(ST[3]), s(ST[2])))
        e("s_add_u32 %s, %s, %s" % (s(ST[0]), s(ST[0]), s(ST[3])))
        e("s_lshl_b32 %s, %s, 10" % (s(sAg), s(ST[0])))
        e("s_add_u32 %s, %s, %d" % (s(sAg), s(sAg), WS_A))
        e("s_lshl_b32 %s, %s, 12" % (s(sAl), s(self.sLW)))

        def a_issue(c):
            p.dma(S_WS, p.vL16, (sAg, c * 4096), (sAl, DN_ASLOT[c % 4]), ("da", c), flags="sc1", n=4)
        a_issue(0)
        a_issue(1)
        for c in range(11):
            p.fine(5)
            vm.wait([("dw", c), ("da", c)])
            p.fine(5)
            p.barrier("Dc%d" % c)
            if c == 0:
                a_issue(2)
            elif c + 2 <= 10:
                a_issue(c + 2)
            if c >= 1 and c + 4 <= 10:
                self.dn_w_issue(c + 4)
        vm.wait_all()
        p.barrier("K1")
        p.barrier("X2")

    def down_compute(self):
        p = self.c
        e, va, vm, lg = p.e, p.va, p.vm, p.lg
        aa = va.alloc("dn_aa")
        wa = [va.alloc("dn_wa0"), va.alloc("dn_wa1")]
        e("s_lshr_b32 %s, %s, 2" % (s(ST[0]), s(SW)))
        e("s_lshl_b32 %s, %s, 13" % (s(ST[0]), s(ST[0])))
        e("s_and_b32 %s, %s, 1" % (s(ST[1]), s(SW)))
        e("s_lshl_b32 %s, %s, 12" % (s(ST[1]), s(ST[1])))
        e("s_add_u32 %s, %s, %s" % (s(ST[1]), s(ST[1]), s(ST[0])))
        e("s_add_u32 %s, %s, %d" % (s(ST[1]), s(ST[1]), DN_ASLOT[0]))
        e("v_add_u32 %s, %s, %s" % (v(aa), s(ST[1]), v(p.vL16)))
        e("v_add_u32 %s, %s, %s" % (v(wa[0]), s(ST[0]), v(self.vTrP)))
        e("v_add_u32 %s, 65536, %s" % (v(wa[1]), v(wa[0])))
        acc = va.alloc("dn_acc", 16, 4)
        af = [va.alloc("dn_af%d" % i, 4, 4) for i in range(2)]
        wf = [va.alloc("dn_wf%d" % i, 4, 4) for i in range(2)]
        NS = 43

        def reads(st):
            c, i, b = st // 4, st % 4, st % 2
            e("ds_read_b128 %s, %s offset:%d" % (v(af[b], 4), v(aa), (c % 4) * 16384 + i * 1024))
            off = DN_WSLOT[c % 5] + i * 2048
            base = off // 65536
            off -= base * 65536
            e("ds_read_b64_tr_b16 %s, %s offset:%d" % (v(wf[b], 2), v(wa[base]), off))
            e("ds_read_b64_tr_b16 %s, %s offset:%d" % (v(wf[b] + 2, 2), v(wa[base]), off + 1024))
            for _ in range(3):
                lg.issue(("r", st))

        p.barrier("Dc0")
        reads(0)
        for st in range(NS):
            nxt = st + 1
            if nxt < NS:
                if nxt % 4 == 0:
                    lg.wait_all()
                    p.barrier("Dc%d" % (nxt // 4))
                reads(nxt)
                lg.wait(("r", st))
            else:
                lg.wait_all()
            b = st % 2
            e("v_mfma_f32_32x32x16_bf16 %s, %s, %s, %s" % (v(acc, 16), v(wf[b], 4), v(af[b], 4), "0" if st == 0 else v(acc, 16)))
        p.barrier("K1")
        self.exchange_halves(acc, XCH_DN, "X2")
        self.add_packed(acc, self.vHF)
        pk = va.alloc("dn_pk", 4, 4)
        for i in range(4):
            e("v_cvt_pk_bf16_f32 %s, %s, %s" % (v(pk + i), v(acc + 2 * i), v(acc + 2 * i + 1)))
        e("s_nop 1")
        e("v_permlane32_swap_b32 %s, %s" % (v(pk), v(pk + 2)))
        e("v_permlane32_swap_b32 %s, %s" % (v(pk + 1), v(pk + 3)))
        e("buffer_store_dwordx4 %s, %s, %s, %s offen" % (v(pk, 4), v(self.vRow), s(S_OUT, 4), s(self.sRow)))
        p.stamp(10)
        p.stamp_rt(12)
        va.free_prefix("dn_")

    def finish(self):
        p = self.c
        e = p.e
        if self.ts:
            for q, wave, off in ((self.c, TS_WAVE, 0), (self.l, CTRL_WAVE, 65536)):
                if q is self.l and not self.opts.get("fine"):
                    continue
                ee = q.e
                sk = q.lab("ts_out")
                ee("s_cmp_lg_u32 %s, %d" % (s(SW), wave))
                ee("s_cbranch_scc1 %s" % sk)
                ee("s_lshl_b32 %s, s2, 8" % s(ST[0]))
                ee("s_add_u32 %s, %s, %d" % (s(ST[0]), s(ST[0]), WS_TS + off))
                ee("v_lshlrev_b32 %s, 2, %s" % (v(q.vL), v(q.vL)))
                ee("s_nop 1")
                ee("buffer_store_dword %s, %s, %s, %s offen" % (v(q.vTS), v(q.vL), s(S_WS, 4), s(ST[0])))
                if q is self.c and self.opts.get("dbg_ts"):
                    ee("s_cmp_lg_u32 s2, %d" % self.opts.get("dbg_wg", 0))
                    ee("s_cbranch_scc1 %s" % sk)
                    ee("s_load_dwordx2 %s, s[0:1], 64" % s(S_X, 2))
                    ee("s_mov_b32 %s, 256" % s(S_X + 2))
                    ee("s_waitcnt lgkmcnt(0)")
                    ee("buffer_store_dword %s, %s, %s, 0 offen" % (v(q.vTS), v(q.vL), s(S_X, 4)))
                ee.label(sk)
        e("s_waitcnt vmcnt(0)")
        e("s_endpgm")
        self.l.e("s_waitcnt vmcnt(0)")

    def build(self):
        self.prologue()
        self.c.stamp(0)
        self.c.stamp_rt(11)
        phases = [("p1", self.p1_compute, self.p1_loader), ("attn", self.attn_compute, self.attn_loader),
                  ("oproj", self.oproj_compute, self.oproj_loader), ("gateup", self.gateup_compute, self.gateup_loader),
                  ("down", self.down_compute, self.down_loader)]
        for name, fc, fl in phases:
            self.c.e.comment("==================== compute: " + name)
            self.l.e.comment("==================== loader: " + name)
            fc()
            fl()
            assert self.c.bars == self.l.bars, (name, self.c.bars, self.l.bars)
            if self.stop == name:
                break
        self.finish()
        hdr = open(os.path.join(os.path.dirname(os.path.abspath(__file__)), "header.txt")).read()
        body = self.pre.text() + self.c.e.text() + "L_loader:\n" + self.l.e.text() + "L_end:\n  s_endpgm\n"
        nv = max(self.c.va.high, self.l.va.high)
        assert nv <= 168
        tail = """.section .rodata,"a"
.p2align 6
.amdhsa_kernel %s
  .amdhsa_next_free_vgpr 168
  .amdhsa_next_free_sgpr 102
  .amdhsa_accum_offset 168
  .amdhsa_group_segment_fixed_size 0
  .amdhsa_kernarg_size 80
  .amdhsa_user_sgpr_count 2
  .amdhsa_user_sgpr_kernarg_segment_ptr 1
  .amdhsa_system_sgpr_workgroup_id_x 1
.end_amdhsa_kernel
""" % KNAME
        return hdr + (".amdgcn_target \"amdgcn-amd-amdhsa--gfx950\"\n.text\n.globl %s\n.p2align 8\n.type %s,@function\n%s:\n" % (KNAME, KNAME, KNAME)) + body + tail


def generate(stop=None, ts=False, **opts):
    g = Gen(stop=stop, ts=ts, opts=opts)
    text = g.build()
    return text, g


if __name__ == "__main__":
    import hazcheck
    text, g = generate()
    n = hazcheck.check(text)
    print("hazards:", n, "vgpr high:", g.c.va.high, g.l.va.high, "lines:", text.count("\n"))
    out = sys.argv[1] if len(sys.argv) > 1 else "cdna_kernels/%s.s" % NAME
    open(out, "w").write(text)
```

```python
import os
import sys
from asmlib import Emit, VAlloc, Counter, v, s

NAME = "sequential_preLN__softmax_full_mha__swiglu_ffn__prompt"
KNAME = NAME + "_kernel"

WS_Z = 0
WS_XT = 4096
WS_FL = WS_XT + 32768
WS_K = 262144
WS_V = WS_K + (2 << 20)
WS_O = WS_V + (2 << 20)
WS_H = WS_O + (2 << 20)
WS_A = WS_H + (2 << 20)
WS_ST = WS_A + 16 * 4 * 86 * 1024 + 4096
WS_END = WS_ST + 64 * 8 * 256
WS_TS = WS_END + 4096
WS_SIZE = WS_TS + 2 * 256 * 256

LDS_SIZE = 163840
MISC = 155776
M_CTRL = 1024
P1M = 143360
P_STAT, P_CSA, P_CSF, P_CSB, P_RSB, P_QB = 0, 2048, 3072, 4096, 4608, 5632
P1_SLOT = 28672
KV_SLOT = 16384
WO_LDS = 65536
GU_WSLOT = [131072, 0, 24608, 49216]
GU_UP = 12320
GU_HSLOT = [73856, 73856 + 16384, 73856 + 32768]
GU_T = 73856 + 32768
GU_CSP, GU_STP, GU_CSF = 0, 3072, 5120
XCH_OP = 73856
OP_STP = 73856 + 16384
DN_NW, DN_NA = 6, 3
DN_WSLOT = [16384 * i for i in range(DN_NW)]
DN_ASLOT = [16384 * DN_NW + 16384 * i for i in range(DN_NA)]
XCH_DN = 0

S_X, S_WQKV, S_WO, S_WG, S_WD, S_OUT, S_WS = 4, 8, 12, 16, 20, 24, 28
S_WU = 92
S_PG, S_PU = 32, 34
SW, SG, SM, SFAST, SN, SREDO = 36, 37, 38, 39, 40, 42
ST = [44, 45, 46, 47, 48, 49, 50, 51, 52, 53]
SHALF = 54
SSAVE = 56
SA = list(range(58, 90))
S_PF = 96

LOG2E = 1.4426950408889634
ONES = 0x3F803F80
TS_WAVE = 7
CTRL_WAVE = 8
NWAVES = 12
POLL_LIMIT = 1 << 17


def fbits(x):
    import struct
    return struct.unpack("<I", struct.pack("<f", x))[0]


class Prog:
    def __init__(self, gen, name):
        self.g = gen
        self.name = name
        self.e = Emit()
        self.va = VAlloc(168)
        self.vm = Counter(self.e, "vmcnt", 63)
        self.lg = Counter(self.e, "lgkmcnt", 15)
        self.bars = []

    def barrier(self, tag):
        self.e("s_barrier")
        self.bars.append(tag)

    def lab(self, base):
        self.g.nlab += 1
        return "L_%s_%d" % (base, self.g.nlab)

    def _stamp(self, instr, idx, wave):
        e = self.e
        skip = self.lab("ts")
        e("s_cmp_lg_u32 %s, %d" % (s(SW), wave))
        e("s_cbranch_scc1 %s" % skip)
        e("%s %s" % (instr, s(90, 2)))
        e("s_waitcnt lgkmcnt(0)")
        e("v_writelane_b32 %s, %s, %d" % (v(self.vTS), s(90), idx))
        e.label(skip)

    def stamp(self, idx):
        if self.g.ts:
            self._stamp("s_memrealtime" if self.g.opts.get("rt") else "s_memtime", idx, TS_WAVE)

    def stamp_rt(self, idx):
        if self.g.ts:
            self._stamp("s_memrealtime", idx, TS_WAVE)

    def fine(self, phase):
        if not self.g.ts or self.g.opts.get("fine") != phase:
            return
        self.nfine = getattr(self, "nfine", 16)
        if self.nfine > 63:
            return
        self._stamp("s_memtime", self.nfine, TS_WAVE if self.name == "c" else CTRL_WAVE)
        self.nfine += 1

    def dma(self, srd, voff, soff_expr, m0_expr, tag, flags="", n=1):
        e = self.e
        sb, c = m0_expr
        if c == 0:
            e("s_mov_b32 m0, %s" % s(sb))
        else:
            e("s_add_u32 m0, %s, %d" % (s(sb), c))
        sb, c = soff_expr
        if c == 0:
            e("s_nop 0")
            so = s(sb)
        else:
            e("s_add_u32 %s, %s, %d" % (s(ST[9]), s(sb), c))
            so = s(ST[9])
        for i in range(n):
            e("buffer_load_dwordx4 %s, %s, %s offen %s%s lds" % (v(voff), s(srd, 4), so, ("offset:%d " % (i * 1024)) if i else "", flags))
            self.vm.issue(tag)

    def xhalf_sum(self, reg, tmp):
        e = self.e
        e("v_mov_b32 %s, %s" % (v(tmp), v(reg)))
        e("s_nop 1")
        e("v_permlane32_swap_b32 %s, %s" % (v(reg), v(tmp)))
        e("v_add_f32 %s, %s, %s" % (v(reg), v(reg), v(tmp)))

    def pair_total(self, pair, tmp):
        self.e("v_add_f32 %s, %s, %s" % (v(pair), v(pair), v(pair + 1)))
        self.xhalf_sum(pair, tmp)

    def ln_stats(self, s1, s2, tmp, rstd, mr):
        e = self.e
        e("v_mul_f32 %s, 0x%x, %s" % (v(s1), fbits(1.0 / 512), v(s1)))
        e("v_mul_f32 %s, %s, %s" % (v(tmp), v(s1), v(s1)))
        e("v_mov_b32 %s, 0x%x" % (v(rstd), fbits(1.0 / 512)))
        e("v_fma_f32 %s, %s, %s, -%s" % (v(s2), v(s2), v(rstd), v(tmp)))
        e("v_max_f32 %s, 0, %s" % (v(s2), v(s2)))
        e("v_add_f32 %s, 0x%x, %s" % (v(s2), fbits(1e-5), v(s2)))
        e("v_rsq_f32 %s, %s" % (v(rstd), v(s2)))
        e("s_nop 0")
        e("v_mul_f32 %s, %s, %s" % (v(mr), v(s1), v(rstd)))

    def frag_ops(self, kind, frag, tmps, accs, mask):
        out = []
        if self.g.opts.get("noops"):
            return out
        for i in range(4):
            t = tmps[i % 2]
            out.append("v_lshlrev_b32 %s, 16, %s" % (v(t), v(frag + i)))
            out.append("v_and_b32 %s, %s, %s" % (v(t + 1), v(mask), v(frag + i)))
            if not self.g.opts.get("pk"):
                out.append("v_add_f32 %s, %s, %s" % (v(accs[0]), v(accs[0]), v(t)))
                out.append("v_add_f32 %s, %s, %s" % (v(accs[0] + 1), v(accs[0] + 1), v(t + 1)))
                if kind == "st":
                    out.append("v_fmac_f32 %s, %s, %s" % (v(accs[1]), v(t), v(t)))
                    out.append("v_fmac_f32 %s, %s, %s" % (v(accs[1] + 1), v(t + 1), v(t + 1)))
                continue
            out.append("v_pk_add_f32 %s, %s, %s" % (v(accs[0], 2), v(accs[0], 2), v(t, 2)))
            if kind == "st":
                out.append("v_pk_fma_f32 %s, %s, %s, %s" % (v(accs[1], 2), v(t, 2), v(t, 2), v(accs[1], 2)))
        return out

    def make_selector(self, sel, tmp):
        e = self.e
        e("v_and_b32 %s, 15, %s" % (v(sel), v(self.vL)))
        e("v_bfe_u32 %s, %s, 4, 1" % (v(tmp), v(self.vL)))
        e("v_cmp_eq_u32 vcc, %s, %s" % (v(sel), v(tmp)))
        e("v_mov_b32 %s, 0x%x" % (v(tmp), ONES))
        e("s_nop 0")
        e("v_cndmask_b32 %s, 0, %s, vcc" % (v(sel), v(tmp)))
        for i in range(1, 4):
            e("v_mov_b32 %s, %s" % (v(sel + i), v(sel)))

    def colsum_mfma(self, acc, frag, sel, first):
        return "v_mfma_f32_16x16x32_bf16 %s, %s, %s, %s" % (v(acc, 4), v(frag, 4), v(sel, 4), "0" if first else v(acc, 4))

    def colsum_addr(self, adr, tmp):
        e = self.e
        e("v_and_b32 %s, 1, %s" % (v(adr), v(self.vL)))
        e("v_lshlrev_b32 %s, 6, %s" % (v(adr), v(adr)))
        e("v_lshrrev_b32 %s, 4, %s" % (v(tmp), v(self.vL)))
        e("v_lshl_add_u32 %s, %s, 4, %s" % (v(adr), v(tmp), v(adr)))

    def colsum_exec(self):
        self.e("s_mov_b32 exec_lo, 0x00030003")
        self.e("s_mov_b32 exec_hi, 0x00030003")

    def stores_fast_slow(self, fn):
        e = self.e
        slow = self.lab("st_slow")
        done = self.lab("st_done")
        e("s_cmp_eq_u32 %s, 0" % s(SFAST))
        e("s_cbranch_scc1 %s" % slow)
        fn("")
        e("s_branch %s" % done)
        e.label(slow)
        fn("sc1")
        e.label(done)

    def flag_off(self, sync, grp_sgpr, mem_sgpr, dst):
        e = self.e
        e("s_lshl_b32 %s, %s, 11" % (s(dst), s(grp_sgpr)))
        if mem_sgpr is not None:
            e("s_lshl_b32 %s, %s, 7" % (s(ST[8]), s(mem_sgpr)))
            e("s_add_u32 %s, %s, %s" % (s(dst), s(dst), s(ST[8])))
        e("s_add_u32 %s, %s, %d" % (s(dst), s(dst), WS_FL + sync * 32768))

    def sync(self, idx, post_grp, post_mem, poll_grp, fast_ok, after_poll=None):
        e, va = self.e, self.va
        skip = self.lab("sync_skip")
        poll = self.lab("poll")
        done = self.lab("poll_done")
        a = va.alloc("sy_a", 2, 2)
        b = va.alloc("sy_b", 2, 2)
        o = va.alloc("sy_o")
        e("s_cmp_lg_u32 %s, %d" % (s(SW), CTRL_WAVE))
        e("s_cbranch_scc1 %s" % skip)
        self.fine(20 + idx)
        e("s_waitcnt vmcnt(0)")
        self.flag_off(idx, post_grp, post_mem, ST[0])
        self.flag_off(idx, poll_grp, None, ST[1])
        e("v_mov_b32 %s, %s" % (v(a), s(SN)))
        e("v_mov_b32 %s, %s" % (v(a + 1), s(SN + 1)))
        e("v_lshlrev_b32 %s, 3, %s" % (v(o), v(self.vL16)))
        e("s_mov_b64 exec, 1")
        if fast_ok:
            slow = self.lab("flag_slow")
            posted = self.lab("flag_posted")
            e("s_cmp_eq_u32 %s, 0" % s(SFAST))
            e("s_cbranch_scc1 %s" % slow)
            e("buffer_store_dwordx2 %s, off, %s, %s" % (v(a, 2), s(S_WS, 4), s(ST[0])))
            e("s_branch %s" % posted)
            e.label(slow)
            e("buffer_store_dwordx2 %s, off, %s, %s sc1" % (v(a, 2), s(S_WS, 4), s(ST[0])))
            e.label(posted)
        else:
            e("buffer_store_dwordx2 %s, off, %s, %s sc1" % (v(a, 2), s(S_WS, 4), s(ST[0])))
        e("s_mov_b64 exec, -1")
        self.fine(20 + idx)
        e("s_mov_b64 exec, 0xffff")
        e("s_mov_b32 %s, 0" % s(ST[2]))
        e.label(poll)
        e("buffer_load_dwordx2 %s, %s, %s, %s offen sc1" % (v(b, 2), v(o), s(S_WS, 4), s(ST[1])))
        e("s_add_u32 %s, %s, 1" % (s(ST[2]), s(ST[2])))
        e("s_cmp_ge_u32 %s, %d" % (s(ST[2]), POLL_LIMIT))
        e("s_waitcnt vmcnt(0)")
        e("s_cbranch_scc1 %s" % done)
        e("v_cmp_ne_u32 vcc, %s, %s" % (s(SN), v(b)))
        e("v_cmp_ne_u32 %s, %s, %s" % (s(SSAVE, 2), s(SN + 1), v(b + 1)))
        e("s_nop 1")
        e("s_or_b64 vcc, vcc, %s" % s(SSAVE, 2))
        e("s_cbranch_vccnz %s" % poll)
        e.label(done)
        if after_poll:
            after_poll(a)
        e("s_mov_b64 exec, -1")
        self.fine(20 + idx)
        if self.g.ts and self.g.opts.get("fine") == 20 + idx:
            e("v_writelane_b32 %s, %s, 40" % (v(self.vTS), s(ST[2])))
        e.label(skip)
        va.free("sy_a", "sy_b", "sy_o")


class Gen:
    def __init__(self, stop=None, ts=False, opts=None):
        self.stop = stop
        self.ts = ts
        self.opts = opts or {}
        self.nlab = 0
        self.pre = Emit()
        self.c = Prog(self, "c")
        self.l = Prog(self, "l")

    def prologue(self):
        e = self.pre
        e("s_cmp_ge_u32 s2, 256")
        e("s_cbranch_scc1 L_end")
        e("s_load_dwordx2 %s, s[0:1], 0" % s(S_X, 2))
        e("s_load_dwordx2 %s, s[0:1], 8" % s(S_WQKV, 2))
        e("s_load_dwordx2 %s, s[0:1], 72" % s(S_WS, 2))
        e("s_load_dwordx2 %s, s[0:1], 16" % s(S_WO, 2))
        e("s_load_dwordx4 %s, s[0:1], 32" % s(S_PG, 4))
        e("s_load_dwordx2 %s, s[0:1], 48" % s(S_WD, 2))
        e("s_load_dwordx2 %s, s[0:1], 56" % s(S_OUT, 2))
        for p in (self.c, self.l):
            p.va.alloc("v0", 1)
            p.vL = p.va.alloc("L")
            p.vL16 = p.va.alloc("L16")
            p.vTS = p.va.alloc("TS")
        p = self.c
        t = 4
        e("v_lshrrev_b32 %s, 6, v0" % v(t))
        e("v_and_b32 %s, 63, v0" % v(p.vL))
        e("v_lshlrev_b32 %s, 4, %s" % (v(p.vL16), v(p.vL)))
        e("v_readfirstlane_b32 %s, %s" % (s(SW), v(t)))
        if self.ts:
            e("v_mov_b32 %s, 0" % v(p.vTS))
        e("s_and_b32 %s, s2, 7" % s(SG))
        e("s_lshl_b32 %s, %s, 1" % (s(SG), s(SG)))
        e("s_lshr_b32 %s, s2, 7" % s(SM))
        e("s_add_u32 %s, %s, %s" % (s(SG), s(SG), s(SM)))
        e("s_lshr_b32 %s, s2, 3" % s(SM))
        e("s_and_b32 %s, %s, 15" % (s(SM), s(SM)))
        e("s_mov_b32 %s, 0" % s(SREDO))
        e("s_mov_b32 %s, 0" % s(SFAST))
        for dst, nbytes in ((S_X, 2048 * 512 * 2), (S_WQKV, 512 * 1536 * 2), (S_WS, WS_SIZE if self.ts else WS_END),
                            (S_WO, 512 * 512 * 2), (S_WD, 1376 * 512 * 2), (S_OUT, 2048 * 512 * 2)):
            e("s_mov_b32 %s, %d" % (s(dst + 2), nbytes))
            e("s_mov_b32 %s, 0x20000" % s(dst + 3))
        e("s_cmp_ge_u32 %s, 8" % s(SW))
        e("s_cbranch_scc1 L_loader")

    def p1_loader(self):
        p = self.l
        e, va, vm = p.e, p.va, p.vm
        L = p.vL
        sLW = SA[20]
        self.sLW = sLW
        e("s_setprio 3")
        e("s_sub_u32 %s, %s, 8" % (s(sLW), s(SW)))
        t0, t1, t2 = va.alloc("p1_t0"), va.alloc("p1_t1"), va.alloc("p1_t2")
        xd = [va.alloc("p1_xd0"), va.alloc("p1_xd1")]
        e("v_lshrrev_b32 %s, 3, %s" % (v(t0), v(L)))
        e("v_lshlrev_b32 %s, 10, %s" % (v(t0), v(t0)))
        e("v_lshrrev_b32 %s, 4, %s" % (v(t1), v(L)))
        e("v_and_b32 %s, 7, %s" % (v(t2), v(L)))
        e("v_xor_b32 %s, %s, %s" % (v(xd[0]), v(t1), v(t2)))
        e("v_xor_b32 %s, 4, %s" % (v(xd[1]), v(xd[0])))
        e("v_lshl_add_u32 %s, %s, 4, %s" % (v(xd[0]), v(xd[0]), v(t0)))
        e("v_lshl_add_u32 %s, %s, 4, %s" % (v(xd[1]), v(xd[1]), v(t0)))
        wd = va.alloc("p1_wd")
        e("v_lshrrev_b32 %s, 2, %s" % (v(t0), v(L)))
        e("v_mul_u32_u24 %s, 3072, %s" % (v(t0), v(t0)))
        e("v_and_b32 %s, 3, %s" % (v(t1), v(L)))
        e("v_lshl_add_u32 %s, %s, 4, %s" % (v(wd), v(t1), v(t0)))
        sXg, sXl, sWg, sWl, sRot = SA[0], SA[1], SA[2], SA[3], SA[7]
        e("s_lshl_b32 %s, %s, 17" % (s(sXg), s(SM)))
        e("s_lshl_b32 %s, %s, 15" % (s(ST[0]), s(sLW)))
        e("s_add_u32 %s, %s, %s" % (s(sXg), s(sXg), s(ST[0])))
        e("s_lshl_b32 %s, %s, 12" % (s(sXl), s(sLW)))
        e("s_lshl_b32 %s, %s, 6" % (s(sWg), s(SG)))
        e("s_mul_i32 %s, %s, 49152" % (s(ST[0]), s(sLW)))
        e("s_add_u32 %s, %s, %s" % (s(sWg), s(sWg), s(ST[0])))
        e("s_lshl_b32 %s, %s, 10" % (s(sWl), s(sLW)))
        e("s_add_u32 %s, %s, 16384" % (s(sWl), s(sWl)))
        e("s_lshr_b32 %s, %s, 1" % (s(sRot), s(SG)))
        e("s_and_b32 %s, %s, 1" % (s(ST[0]), s(SG)))
        e("s_lshl_b32 %s, %s, 2" % (s(ST[0]), s(ST[0])))
        e("s_add_u32 %s, %s, %s" % (s(sRot), s(sRot), s(ST[0])))
        e("s_add_u32 %s, %s, %s" % (s(sRot), s(sRot), s(SM)))
        if self.opts.get("norot"):
            e("s_mov_b32 %s, 0" % s(sRot))
        zz = va.alloc("p1_z", 2, 2)
        xt = va.alloc("p1_xt", 2, 2)
        xr2 = va.alloc("p1_xr2", 2, 2)
        xo = va.alloc("p1_xo")
        p.fine(1)
        e("s_waitcnt lgkmcnt(0)")
        p.fine(1)

        def issue(c):
            slot = (c % 5) * P1_SLOT
            e("s_add_u32 %s, %s, %d" % (s(ST[0]), s(sRot), c))
            e("s_and_b32 %s, %s, 7" % (s(ST[0]), s(ST[0])))
            e("s_lshl_b32 %s, %s, 7" % (s(ST[1]), s(ST[0])))
            e("s_add_u32 %s, %s, %s" % (s(ST[1]), s(ST[1]), s(sXg)))
            e("s_mul_i32 %s, %s, 196608" % (s(ST[2]), s(ST[0])))
            e("s_add_u32 %s, %s, %s" % (s(ST[2]), s(ST[2]), s(sWg)))
            for i in range(4):
                p.dma(S_X, xd[i & 1], (ST[1], i * 8192), (sXl, slot + i * 1024), ("c", c))
            for nt in range(3):
                p.dma(S_WQKV, wd, (ST[2], nt * 1024), (sWl, slot + nt * 4096), ("c", c))

        if self.opts.get("pretouch", 0):
            e("v_lshrrev_b32 %s, 3, %s" % (v(t0), v(L)))
            e("v_lshlrev_b32 %s, 10, %s" % (v(t0), v(t0)))
            e("v_and_b32 %s, 7, %s" % (v(t1), v(L)))
            e("v_lshl_add_u32 %s, %s, 7, %s" % (v(t0), v(t1), v(t0)))
            e("s_lshl_b32 %s, %s, 2" % (s(ST[0]), s(SG)))
            e("s_add_u32 %s, %s, %s" % (s(ST[0]), s(ST[0]), s(sLW)))
            e("s_lshl_b32 %s, %s, 11" % (s(ST[0]), s(ST[0])))
            e("s_lshl_b32 %s, %s, 17" % (s(ST[1]), s(SM)))
            e("s_add_u32 %s, %s, %s" % (s(ST[0]), s(ST[0]), s(ST[1])))
            e("s_mov_b64 exec, 0xffff")
            e("buffer_load_dword %s, %s, %s, %s offen" % (v(t2), v(t0), s(S_X, 4), s(ST[0])))
            vm.issue("pt")
            e("s_mov_b64 exec, -1")
            e("v_mul_u32_u24 %s, 86, %s" % (v(t0), v(L)))
            e("v_lshrrev_b32 %s, 8, %s" % (v(t0), v(t0)))
            e("v_mul_u32_u24 %s, 3, %s" % (v(t1), v(t0)))
            e("v_sub_u32 %s, %s, %s" % (v(t1), v(L), v(t1)))
            e("v_mul_u32_u24 %s, 3072, %s" % (v(t0), v(t0)))
            e("v_lshl_add_u32 %s, %s, 10, %s" % (v(t0), v(t1), v(t0)))
            e("s_and_b32 %s, %s, 1" % (s(ST[0]), s(SG)))
            e("s_lshl_b32 %s, %s, 4" % (s(ST[0]), s(ST[0])))
            e("s_add_u32 %s, %s, %s" % (s(ST[0]), s(ST[0]), s(SM)))
            e("s_lshl_b32 %s, %s, 2" % (s(ST[0]), s(ST[0])))
            e("s_add_u32 %s, %s, %s" % (s(ST[0]), s(ST[0]), s(sLW)))
            e("s_mul_i32 %s, %s, %d" % (s(ST[0]), s(ST[0]), 4 * 3072))
            e("s_lshr_b32 %s, %s, 1" % (s(ST[1]), s(SG)))
            e("s_lshl_b32 %s, %s, 7" % (s(ST[1]), s(ST[1])))
            e("s_add_u32 %s, %s, %s" % (s(ST[0]), s(ST[0]), s(ST[1])))
            e("s_mov_b64 exec, 0xfff")
            e("buffer_load_dword %s, %s, %s, %s offen" % (v(xo), v(t0), s(S_WQKV, 4), s(ST[0])))
            vm.issue("pt")
            e("s_mov_b64 exec, -1")
        issue(0)
        e("buffer_load_dwordx2 %s, off, %s, 0 sc1" % (v(zz, 2), s(S_WS, 4)))
        vm.issue("z")
        issue(1)

        def kv_touch():
            e("v_lshlrev_b32 %s, 7, %s" % (v(t0), v(L)))
            e("s_lshl_b32 %s, %s, 1" % (s(ST[0]), s(SG)))
            e("s_lshr_b32 %s, %s, 1" % (s(ST[1]), s(sLW)))
            e("s_add_u32 %s, %s, %s" % (s(ST[0]), s(ST[0]), s(ST[1])))
            e("s_lshl_b32 %s, %s, 16" % (s(ST[0]), s(ST[0])))
            e("s_lshl_b32 %s, %s, 12" % (s(ST[1]), s(SM)))
            e("s_add_u32 %s, %s, %s" % (s(ST[0]), s(ST[0]), s(ST[1])))
            e("s_and_b32 %s, %s, 1" % (s(ST[1]), s(sLW)))
            e("s_mul_i32 %s, %s, %d" % (s(ST[1]), s(ST[1]), WS_V - WS_K))
            e("s_add_u32 %s, %s, %s" % (s(ST[0]), s(ST[0]), s(ST[1])))
            e("s_add_u32 %s, %s, %d" % (s(ST[0]), s(ST[0]), WS_K))
            e("s_mov_b32 exec_hi, 0")
            e("buffer_load_dword %s, %s, %s, %s offen" % (v(t2), v(t0), s(S_WS, 4), s(ST[0])))
            e("s_mov_b32 exec_hi, -1")
            vm.issue("kvt")

        sched = {0: [2, 3], 1: [4], 2: [5], 3: [6], 4: [7]} if self.opts.get("p1lead", 2) == 3 else {c: [c + 2] for c in range(6)}
        for dst, ptr in ((S_WG, S_PG), (S_WU, S_PU)):
            e("s_mov_b32 %s, %s" % (s(dst), s(ptr)))
            e("s_mov_b32 %s, %s" % (s(dst + 1), s(ptr + 1)))
            e("s_mov_b32 %s, %d" % (s(dst + 2), 512 * 1376 * 2))
            e("s_mov_b32 %s, 0x20000" % s(dst + 3))
        xcc_at = max(c for c in sched if 7 in sched[c])
        for c in range(8):
            p.fine(1)
            vm.wait(("c", c))
            p.fine(1)
            p.barrier("p1c%d" % c)
            if c == 1:
                vm.wait("z")
                sk = p.lab("xcc_post")
                e("s_cmp_lg_u32 %s, %d" % (s(SW), CTRL_WAVE))
                e("s_cbranch_scc1 %s" % sk)
                e("v_readfirstlane_b32 %s, %s" % (s(SN), v(zz)))
                e("v_readfirstlane_b32 %s, %s" % (s(SN + 1), v(zz + 1)))
                e("s_getreg_b32 %s, hwreg(HW_REG_XCC_ID, 0, 4)" % s(ST[0]))
                e("s_add_u32 %s, %s, 1" % (s(SN), s(SN)))
                e("s_addc_u32 %s, %s, 0" % (s(SN + 1), s(SN + 1)))
                e("s_lshl_b32 %s, %s, 28" % (s(ST[0]), s(ST[0])))
                e("s_add_u32 %s, %s, %s" % (s(SA[4]), s(SN + 1), s(ST[0])))
                e("s_lshl_b32 %s, %s, 11" % (s(ST[1]), s(SG)))
                e("s_add_u32 %s, %s, %d" % (s(SA[5]), s(ST[1]), WS_XT))
                e("s_lshl_b32 %s, %s, 7" % (s(ST[1]), s(SM)))
                e("s_add_u32 %s, %s, %s" % (s(ST[1]), s(ST[1]), s(SA[5])))
                e("v_mov_b32 %s, %s" % (v(xt), s(SN)))
                e("v_mov_b32 %s, %s" % (v(xt + 1), s(SA[4])))
                e("s_mov_b64 exec, 1")
                e("buffer_store_dwordx2 %s, off, %s, %s sc1" % (v(xt, 2), s(S_WS, 4), s(ST[1])))
                e("s_mov_b64 exec, -1")
                e.label(sk)
            if c == xcc_at:
                e("s_lshl_b32 %s, %s, 11" % (s(ST[1]), s(SG)))
                e("s_add_u32 %s, %s, %d" % (s(ST[1]), s(ST[1]), WS_XT))
                e("v_and_b32 %s, 15, %s" % (v(xo), v(L)))
                e("v_lshlrev_b32 %s, 7, %s" % (v(xo), v(xo)))
                e("buffer_load_dwordx2 %s, %s, %s, %s offen sc1" % (v(xr2, 2), v(xo), s(S_WS, 4), s(ST[1])))
                vm.issue("xcc")
            if c == 2 and not self.opts.get("noftouch"):
                e("v_lshrrev_b32 %s, 0, %s" % (v(t0), v(L)))
                e("v_min_u32 %s, 1, %s" % (v(t1), v(L)))
                e("v_add_u32 %s, %s, %s" % (v(t0), v(t0), v(t1)))
                e("v_lshlrev_b32 %s, 15, %s" % (v(t0), v(t0)))
                e("s_lshl_b32 %s, %s, 11" % (s(ST[0]), s(SG)))
                e("s_lshl_b32 %s, %s, 7" % (s(ST[1]), s(SM)))
                e("s_add_u32 %s, %s, %s" % (s(ST[0]), s(ST[0]), s(ST[1])))
                e("s_add_u32 %s, %s, %d" % (s(ST[0]), s(ST[0]), WS_FL))
                e("s_mov_b64 exec, 7")
                e("buffer_load_dword %s, %s, %s, %s offen" % (v(t2), v(t0), s(S_WS, 4), s(ST[0])))
                e("s_mov_b64 exec, -1")
                vm.issue("ft")
            for cc in sched.get(c, []):
                issue(cc)
                if cc == 7 and not self.opts.get("notouch"):
                    kv_touch()
        sk = p.lab("fast_decide")
        e("s_cmp_lg_u32 %s, %d" % (s(SW), CTRL_WAVE))
        e("s_cbranch_scc1 %s" % sk)
        e("v_cmp_ne_u32 vcc, %s, %s" % (s(SN), v(xr2)))
        e("v_cmp_ne_u32 %s, %s, %s" % (s(SSAVE, 2), s(SA[4]), v(xr2 + 1)))
        e("s_nop 1")
        e("s_or_b64 vcc, vcc, %s" % s(SSAVE, 2))
        e("s_cmp_eq_u64 vcc, 0")
        e("s_cselect_b32 %s, 1, 0" % s(SFAST))
        if self.opts.get("force_slow"):
            e("s_mov_b32 %s, 0" % s(SFAST))
        e("v_mov_b32 %s, %s" % (v(xt), s(SFAST)))
        e("v_mov_b32 %s, 0" % v(xt + 1))
        e("v_mov_b32 %s, %d" % (v(t0), MISC + M_CTRL))
        e("ds_write_b64 %s, %s" % (v(t0), v(xt, 2)))
        e("s_waitcnt lgkmcnt(0)")
        e.label(sk)
        p.barrier("E1")
        self.loader_patterns()
        p.barrier("E2")
        va.free_prefix("p1_")

    def loader_patterns(self):
        p = self.l
        e, va = p.e, p.va
        L, sLW = p.vL, self.sLW
        a, b = va.alloc("lp_a"), va.alloc("lp_b")
        p.vWF = va.alloc("WF")
        e("v_lshrrev_b32 %s, 3, %s" % (v(a), v(L)))
        e("v_lshlrev_b32 %s, 10, %s" % (v(a), v(a)))
        e("v_bfe_u32 %s, %s, 4, 1" % (v(b), v(L)))
        e("v_lshlrev_b32 %s, 2, %s" % (v(b), v(b)))
        e("v_and_b32 %s, 7, %s" % (v(p.vWF), v(L)))
        e("v_xor_b32 %s, %s, %s" % (v(p.vWF), v(p.vWF), v(b)))
        e("v_lshl_add_u32 %s, %s, 4, %s" % (v(p.vWF), v(p.vWF), v(a)))
        self.sGUg, self.sGUl, self.sFs = SA[8], SA[9], SA[10]
        e("s_mul_i32 %s, %s, 6" % (s(self.sFs), s(SM)))
        e("s_lshl_b32 %s, %s, 2" % (s(ST[0]), s(SM)))
        e("s_add_u32 %s, %s, 22" % (s(ST[0]), s(ST[0])))
        e("s_min_u32 %s, %s, %s" % (s(self.sFs), s(self.sFs), s(ST[0])))
        e("s_mul_i32 %s, %s, %d" % (s(self.sGUg), s(sLW), 16 * 2752))
        e("s_lshl_b32 %s, %s, 5" % (s(ST[1]), s(self.sFs)))
        e("s_add_u32 %s, %s, %s" % (s(self.sGUg), s(self.sGUg), s(ST[1])))
        e("s_mul_i32 %s, %s, 3072" % (s(self.sGUl), s(sLW)))
        p.gud = [va.alloc("gud%d" % q) for q in range(3)]
        for q in range(3):
            e("v_add_u32 %s, %d, %s" % (v(a), 64 * q, v(L)))
            e("v_mul_u32_u24 %s, 171, %s" % (v(b), v(a)))
            e("v_lshrrev_b32 %s, 11, %s" % (v(b), v(b)))
            e("v_mul_u32_u24 %s, 12, %s" % (v(p.gud[q]), v(b)))
            e("v_sub_u32 %s, %s, %s" % (v(a), v(a), v(p.gud[q])))
            e("v_mul_u32_u24 %s, 2752, %s" % (v(b), v(b)))
            e("v_lshl_add_u32 %s, %s, 4, %s" % (v(p.gud[q]), v(a), v(b)))
        p.pfo, p.pfd, p.pfr = va.alloc("pfo"), va.alloc("pfd"), va.alloc("pfr")
        e("v_lshlrev_b32 %s, 10, %s" % (v(p.pfr), v(L)))
        e("v_lshrrev_b32 %s, 1, %s" % (v(p.pfo), v(L)))
        e("v_mul_u32_u24 %s, 2752, %s" % (v(p.pfo), v(p.pfo)))
        e("v_and_b32 %s, 1, %s" % (v(a), v(L)))
        e("v_lshl_add_u32 %s, %s, 7, %s" % (v(p.pfo), v(a), v(p.pfo)))
        e("s_and_b32 %s, %s, 1" % (s(ST[1]), s(SG)))
        e("s_cmp_eq_u32 %s, 1" % s(ST[1]))
        e("s_cselect_b32 %s, %s, %s" % (s(S_PF), s(S_PU), s(S_PG)))
        e("s_cselect_b32 %s, %s, %s" % (s(S_PF + 1), s(S_PU + 1), s(S_PG + 1)))
        e("s_mov_b32 %s, %d" % (s(S_PF + 2), 512 * 1376 * 2))
        e("s_mov_b32 %s, 0x20000" % s(S_PF + 3))
        self.sKVg, self.sKVl = SA[0], SA[1]
        e("s_lshr_b32 %s, %s, 1" % (s(ST[0]), s(sLW)))
        e("s_lshl_b32 %s, %s, 1" % (s(ST[1]), s(SG)))
        e("s_add_u32 %s, %s, %s" % (s(ST[1]), s(ST[1]), s(ST[0])))
        e("s_lshl_b32 %s, %s, 16" % (s(self.sKVg), s(ST[1])))
        e("s_and_b32 %s, %s, 1" % (s(ST[1]), s(sLW)))
        e("s_mul_i32 %s, %s, %d" % (s(ST[2]), s(ST[1]), WS_V - WS_K))
        e("s_add_u32 %s, %s, %s" % (s(self.sKVg), s(self.sKVg), s(ST[2])))
        e("s_add_u32 %s, %s, %d" % (s(self.sKVg), s(self.sKVg), WS_K))
        e("s_lshl_b32 %s, %s, 12" % (s(self.sKVl), s(sLW)))
        self.sWOg, self.sWOl, self.sWOs, self.sRotO = SA[2], SA[3], SA[15], SA[19]
        e("s_and_b32 %s, %s, 7" % (s(ST[2]), s(SM)))
        e("s_lshl_b32 %s, %s, 1" % (s(self.sRotO), s(ST[2])))
        if self.opts.get("norot"):
            e("s_mov_b32 %s, 0" % s(self.sRotO))
        e("s_lshl_b32 %s, %s, 7" % (s(self.sWOg), s(ST[2])))
        e("s_lshl_b32 %s, %s, 18" % (s(ST[2]), s(ST[0])))
        e("s_add_u32 %s, %s, %s" % (s(self.sWOg), s(self.sWOg), s(ST[2])))
        e("s_lshl_b32 %s, %s, 3" % (s(self.sWOs), s(ST[1])))
        e("s_add_u32 %s, %s, %s" % (s(self.sWOs), s(self.sWOs), s(self.sRotO)))
        e("s_lshl_b32 %s, %s, 14" % (s(self.sWOl), s(sLW)))
        e("s_add_u32 %s, %s, %d" % (s(self.sWOl), s(self.sWOl), WO_LDS))
        self.sDg, self.sDl = SA[16], SA[17]
        e("s_mul_i32 %s, %s, 43" % (s(self.sDg), s(ST[0])))
        e("s_lshl_b32 %s, %s, 1" % (s(ST[2]), s(ST[1])))
        e("s_add_u32 %s, %s, %s" % (s(self.sDg), s(self.sDg), s(ST[2])))
        e("s_lshl_b32 %s, %s, 14" % (s(self.sDg), s(self.sDg)))
        e("s_and_b32 %s, %s, 7" % (s(ST[2]), s(SM)))
        e("s_lshl_b32 %s, %s, 7" % (s(ST[2]), s(ST[2])))
        e("s_add_u32 %s, %s, %s" % (s(self.sDg), s(self.sDg), s(ST[2])))
        e("s_lshl_b32 %s, %s, 12" % (s(self.sDl), s(sLW)))
        va.free("lp_a", "lp_b")

    def early_writeback(self, bit):
        if not (self.opts.get("wb", 0) & bit):
            return
        p = self.l
        e = p.e
        sk = p.lab("wb")
        e("s_cmp_lg_u32 %s, %d" % (s(SW), CTRL_WAVE))
        e("s_cbranch_scc1 %s" % sk)
        e("s_cmp_ge_u32 s2, 8")
        e("s_cbranch_scc1 %s" % sk)
        e("buffer_wbl2 sc1")
        e.label(sk)

    def gu_w_half(self, c, which):
        p = self.l
        for q in range(3):
            p.dma(S_WU if which else S_WG, p.gud[q], (self.sGUg, c * 64 * 2752),
                  (self.sGUl, GU_WSLOT[c % 4] + which * GU_UP + q * 1024), ("gw", c))

    def gu_w_issue(self, c):
        self.gu_w_half(c, 0)
        self.gu_w_half(c, 1)

    def dn_pf_issue(self, k):
        p = self.l
        e = p.e
        e("s_and_b32 %s, %s, 1" % (s(ST[0]), s(SG)))
        e("s_lshl_b32 %s, %s, 1" % (s(ST[0]), s(ST[0])))
        e("s_lshr_b32 %s, %s, 3" % (s(ST[1]), s(SM)))
        e("s_add_u32 %s, %s, %s" % (s(ST[0]), s(ST[0]), s(ST[1])))
        e("s_lshl_b32 %s, %s, 2" % (s(ST[0]), s(ST[0])))
        e("s_add_u32 %s, %s, %s" % (s(ST[0]), s(ST[0]), s(self.sLW)))
        e("s_mul_i32 %s, %s, 86" % (s(ST[0]), s(ST[0])))
        e("s_add_u32 %s, %s, %d" % (s(ST[0]), s(ST[0]), 64 * k))
        e("s_lshl_b32 %s, %s, 10" % (s(ST[0]), s(ST[0])))
        e("s_and_b32 %s, %s, 7" % (s(ST[1]), s(SM)))
        e("s_lshl_b32 %s, %s, 7" % (s(ST[1]), s(ST[1])))
        e("s_add_u32 %s, %s, %s" % (s(ST[0]), s(ST[0]), s(ST[1])))
        if k == 1:
            e("s_mov_b64 exec, 0x3fffff")
        e("buffer_load_dword %s, %s, %s, %s offen" % (v(p.pfd), v(p.pfr), s(S_WD, 4), s(ST[0])))
        if k == 1:
            e("s_mov_b64 exec, -1")
        p.vm.issue("pf")

    def dn_pf_late(self, first=320, per=46):
        p = self.l
        e = p.e
        e("s_and_b32 %s, %s, 1" % (s(ST[0]), s(SG)))
        e("s_lshl_b32 %s, %s, 1" % (s(ST[0]), s(ST[0])))
        e("s_lshr_b32 %s, %s, 3" % (s(ST[1]), s(SM)))
        e("s_add_u32 %s, %s, %s" % (s(ST[0]), s(ST[0]), s(ST[1])))
        e("s_lshl_b32 %s, %s, 2" % (s(ST[0]), s(ST[0])))
        e("s_add_u32 %s, %s, %s" % (s(ST[0]), s(ST[0]), s(self.sLW)))
        e("s_lshr_b32 %s, %s, 3" % (s(ST[1]), s(ST[0])))
        e("s_mul_i32 %s, %s, 688" % (s(ST[1]), s(ST[1])))
        e("s_and_b32 %s, %s, 7" % (s(ST[0]), s(ST[0])))
        e("s_mul_i32 %s, %s, %d" % (s(ST[0]), s(ST[0]), per))
        e("s_add_u32 %s, %s, %s" % (s(ST[0]), s(ST[0]), s(ST[1])))
        e("s_add_u32 %s, %s, %d" % (s(ST[0]), s(ST[0]), first))
        e("s_lshl_b32 %s, %s, 10" % (s(ST[0]), s(ST[0])))
        e("s_and_b32 %s, %s, 7" % (s(ST[1]), s(SM)))
        e("s_lshl_b32 %s, %s, 7" % (s(ST[1]), s(ST[1])))
        e("s_add_u32 %s, %s, %s" % (s(ST[0]), s(ST[0]), s(ST[1])))
        e("s_mov_b32 exec_lo, -1")
        e("s_mov_b32 exec_hi, 0x%x" % ((1 << (per - 32)) - 1))
        e("buffer_load_dword %s, %s, %s, %s offen" % (v(p.pfd), v(p.pfr), s(S_WD, 4), s(ST[0])))
        e("s_mov_b64 exec, -1")
        p.vm.issue("pf")

    def dest_touch(self, part):
        p = self.l
        e, va = p.e, p.va
        a = va.alloc("dt_a")
        e("v_lshlrev_b32 %s, 3, %s" % (v(a), v(p.vL16)))
        if part == 0:
            e("s_lshl_b32 %s, %s, 2" % (s(ST[0]), s(SG)))
            e("s_add_u32 %s, %s, %s" % (s(ST[0]), s(ST[0]), s(self.sLW)))
            e("s_mul_i32 %s, %s, 86" % (s(ST[0]), s(ST[0])))
            e("s_add_u32 %s, %s, %s" % (s(ST[0]), s(ST[0]), s(self.sFs)))
            e("s_lshl_b32 %s, %s, 10" % (s(ST[0]), s(ST[0])))
            e("s_add_u32 %s, %s, %d" % (s(ST[0]), s(ST[0]), WS_A))
            e("s_mov_b32 exec_lo, -1")
            e("s_mov_b32 exec_hi, 0xffff")
        else:
            e("s_lshl_b32 %s, %s, 2" % (s(ST[0]), s(SG)))
            e("s_lshr_b32 %s, %s, 3" % (s(ST[1]), s(SM)))
            e("s_lshl_b32 %s, %s, 1" % (s(ST[1]), s(ST[1])))
            e("s_add_u32 %s, %s, %s" % (s(ST[0]), s(ST[0]), s(ST[1])))
            e("s_and_b32 %s, %s, 1" % (s(ST[1]), s(self.sLW)))
            e("s_add_u32 %s, %s, %s" % (s(ST[0]), s(ST[0]), s(ST[1])))
            e("s_and_b32 %s, %s, 7" % (s(ST[1]), s(SM)))
            e("s_lshl_b32 %s, %s, 15" % (s(ST[2]), s(ST[0])))
            e("s_lshl_b32 %s, %s, 12" % (s(ST[3]), s(ST[1])))
            e("s_add_u32 %s, %s, %s" % (s(ST[2]), s(ST[2]), s(ST[3])))
            e("s_add_u32 %s, %s, %d" % (s(ST[2]), s(ST[2]), WS_H))
            e("s_lshl_b32 %s, %s, 3" % (s(ST[0]), s(ST[0])))
            e("s_add_u32 %s, %s, %s" % (s(ST[0]), s(ST[0]), s(ST[1])))
            e("s_lshl_b32 %s, %s, 8" % (s(ST[0]), s(ST[0])))
            e("s_add_u32 %s, %s, %d" % (s(ST[0]), s(ST[0]), WS_ST))
            e("s_cmp_ge_u32 %s, 2" % s(self.sLW))
            e("s_cselect_b32 %s, %s, %s" % (s(ST[0]), s(ST[0]), s(ST[2])))
            e("s_cselect_b32 %s, 3, -1" % s(ST[1]))
            e("s_mov_b32 exec_lo, %s" % s(ST[1]))
            e("s_mov_b32 exec_hi, 0")
        e("buffer_load_dword %s, %s, %s, %s offen" % (v(p.pfd), v(a), s(S_WS, 4), s(ST[0])))
        p.vm.issue("pf")
        e("s_mov_b64 exec, -1")
        va.free("dt_a")

    def out_touch(self):
        p = self.l
        e = p.e
        e("s_lshl_b32 %s, %s, 1" % (s(ST[0]), s(SG)))
        e("s_lshr_b32 %s, %s, 3" % (s(ST[1]), s(SM)))
        e("s_add_u32 %s, %s, %s" % (s(ST[0]), s(ST[0]), s(ST[1])))
        e("s_lshl_b32 %s, %s, 2" % (s(ST[0]), s(ST[0])))
        e("s_add_u32 %s, %s, %s" % (s(ST[0]), s(ST[0]), s(self.sLW)))
        e("s_lshl_b32 %s, %s, 14" % (s(ST[0]), s(ST[0])))
        e("s_and_b32 %s, %s, 7" % (s(ST[1]), s(SM)))
        e("s_lshl_b32 %s, %s, 7" % (s(ST[1]), s(ST[1])))
        e("s_add_u32 %s, %s, %s" % (s(ST[0]), s(ST[0]), s(ST[1])))
        e("s_mov_b64 exec, 0xffff")
        e("buffer_load_dword %s, %s, %s, %s offen" % (v(p.pfd), v(p.pfr), s(S_OUT, 4), s(ST[0])))
        e("s_mov_b64 exec, -1")
        p.vm.issue("pf")

    def dn_mall_touch(self):
        p = self.l
        e = p.e
        e("s_lshl_b32 %s, %s, 1" % (s(ST[0]), s(SG)))
        e("s_lshr_b32 %s, %s, 3" % (s(ST[1]), s(SM)))
        e("s_add_u32 %s, %s, %s" % (s(ST[0]), s(ST[0]), s(ST[1])))
        e("s_mul_i32 %s, %s, 43" % (s(ST[0]), s(ST[0])))
        e("s_mul_i32 %s, %s, 11" % (s(ST[1]), s(self.sLW)))
        e("s_add_u32 %s, %s, %s" % (s(ST[0]), s(ST[0]), s(ST[1])))
        e("s_lshl_b32 %s, %s, 10" % (s(ST[0]), s(ST[0])))
        e("s_and_b32 %s, %s, 7" % (s(ST[1]), s(SM)))
        e("s_lshl_b32 %s, %s, 7" % (s(ST[1]), s(ST[1])))
        e("s_add_u32 %s, %s, %s" % (s(ST[0]), s(ST[0]), s(ST[1])))
        e("s_mov_b64 exec, 0x7ff")
        e("buffer_load_dword %s, %s, %s, %s offen" % (v(p.pfd), v(p.pfr), s(S_WD, 4), s(ST[0])))
        e("s_mov_b64 exec, -1")
        p.vm.issue("pf")

    def dn_w_issue(self, c):
        p = self.l
        for q in range(4):
            p.dma(S_WD, p.vWF, (self.sDg, c * 65536 + q * 8192), (self.sDl, DN_WSLOT[c % DN_NW] + q * 1024), ("dw", c))

    def p1_compute(self):
        p = self.c
        e, va = p.e, p.va
        L = p.vL
        t0, t1, t2 = va.alloc("p1_t0"), va.alloc("p1_t1"), va.alloc("p1_t2")
        sR = SA[11]
        e("s_lshr_b32 %s, %s, 2" % (s(sR), s(SW)))
        e("s_lshl_b32 %s, %s, 1" % (s(sR), s(sR)))
        e("s_add_u32 %s, %s, %s" % (s(sR), s(sR), s(SW)))
        xr = [va.alloc("p1_xr%d" % k) for k in range(4)]
        tr = [va.alloc("p1_tr%d" % k) for k in range(4)]
        e("v_and_b32 %s, 31, %s" % (v(t0), v(L)))
        e("v_lshlrev_b32 %s, 7, %s" % (v(t0), v(t0)))
        e("v_bfe_u32 %s, %s, 1, 3" % (v(t1), v(L)))
        e("v_lshrrev_b32 %s, 5, %s" % (v(t2), v(L)))
        e("v_xor_b32 %s, %s, %s" % (v(t1), v(t1), v(t2)))
        e("v_lshl_add_u32 %s, %s, 4, %s" % (v(t0), v(t1), v(t0)))
        e("s_and_b32 %s, %s, 3" % (s(ST[0]), s(SW)))
        e("s_lshl_b32 %s, %s, 12" % (s(ST[0]), s(ST[0])))
        e("v_add_u32 %s, %s, %s" % (v(t0), s(ST[0]), v(t0)))
        e("v_lshlrev_b32 %s, 3, %s" % (v(t2), v(t2)))
        e("v_bfe_u32 %s, %s, 2, 2" % (v(t1), v(L)))
        e("v_add_u32 %s, %s, %s" % (v(t2), v(t2), v(t1)))
        e("v_lshlrev_b32 %s, 6, %s" % (v(t2), v(t2)))
        e("v_bfe_u32 %s, %s, 4, 1" % (v(t1), v(L)))
        e("v_lshl_add_u32 %s, %s, 5, %s" % (v(t2), v(t1), v(t2)))
        e("v_and_b32 %s, 3, %s" % (v(t1), v(L)))
        e("v_lshl_add_u32 %s, %s, 3, %s" % (v(t1), v(t1), v(t2)))
        for k in range(4):
            e("s_add_u32 %s, %s, %d" % (s(ST[0]), s(sR), k))
            e("s_and_b32 %s, %s, 3" % (s(ST[0]), s(ST[0])))
            e("s_lshl_b32 %s, %s, 5" % (s(ST[1]), s(ST[0])))
            e("s_lshl_b32 %s, %s, 10" % (s(ST[0]), s(ST[0])))
            e("v_xor_b32 %s, %s, %s" % (v(xr[k]), s(ST[1]), v(t0)))
            e("v_add_u32 %s, %s, %s" % (v(tr[k]), s(ST[0]), v(t1)))
        if not self.opts.get("nocodepf"):
            sk = p.lab("codepf")
            e("s_cmp_lg_u32 %s, 0" % s(SW))
            e("s_cbranch_scc1 %s" % sk)
            e("s_getpc_b64 %s" % s(ST[2], 2))
            e.label("L_pc_here")
            e("s_sub_u32 %s, %s, L_pc_here-%s" % (s(ST[2]), s(ST[2]), KNAME))
            e("s_subb_u32 %s, %s, 0" % (s(ST[3]), s(ST[3])))
            e("s_lshr_b32 %s, s2, 3" % s(ST[0]))
            e("s_lshl_b32 %s, %s, 11" % (s(ST[0]), s(ST[0])))
            e("v_lshlrev_b32 %s, 7, %s" % (v(t1), v(L)))
            e("v_add_u32 %s, %s, %s" % (v(t1), s(ST[0]), v(t1)))
            e("s_mov_b32 %s, L_end-%s" % (s(ST[1]), KNAME))
            e("v_cmp_gt_u32 vcc, %s, %s" % (s(ST[1]), v(t1)))
            e("s_nop 0")
            e("s_and_b32 vcc_lo, vcc_lo, 0xffff")
            e("s_mov_b32 vcc_hi, 0")
            e("s_and_saveexec_b64 %s, vcc" % s(SSAVE, 2))
            e("s_cbranch_execz %s" % (sk + "_r"))
            e("global_load_dword %s, %s, %s" % (v(t2), v(t1), s(ST[2], 2)))
            e.label(sk + "_r")
            e("s_mov_b64 exec, %s" % s(SSAVE, 2))
            e.label(sk)
        mask = va.alloc("p1_mask")
        sel = va.alloc("p1_sel", 4, 4)
        p.make_selector(sel, t1)
        tmps = [va.alloc("p1_tp0", 2, 2), va.alloc("p1_tp1", 2, 2)]
        s1, s2 = va.alloc("p1_s1", 2, 2), va.alloc("p1_s2", 2, 2)
        self.vQ = va.alloc("Q", 4, 4)
        e("v_mov_b32 %s, 0xffff0000" % v(mask))
        for r in (s1, s1 + 1, s2, s2 + 1):
            e("v_mov_b32 %s, 0" % v(r))
        e("s_mov_b32 %s, 0x0000ffff" % s(SHALF))
        e("s_mov_b32 %s, 0x0000ffff" % s(SHALF + 1))
        e("s_waitcnt lgkmcnt(0)")
        e("s_cmp_ge_u32 %s, 4" % s(SW))
        e("s_cbranch_scc1 L_p1_roleB")

        state = {"base": 0}

        def rebase(slot):
            want = (slot // 2) * 57344
            d = want - state["base"]
            if d:
                for r in xr + tr:
                    if d > 0:
                        e("v_add_u32 %s, %d, %s" % (v(r), d, v(r)))
                    else:
                        e("v_subrev_u32 %s, %d, %s" % (v(r), -d, v(r)))
                state["base"] = want

        def xread(dst, c, j):
            e("ds_read_b128 %s, %s offset:%d" % (v(dst, 4), v(xr[j]), ((c % 5) % 2) * P1_SLOT))

        def wread(dst, c, j, nt):
            off = ((c % 5) % 2) * P1_SLOT + 16384 + nt * 4096
            e("ds_read_b64_tr_b16 %s, %s offset:%d" % (v(dst, 2), v(tr[j]), off))
            e("ds_read_b64_tr_b16 %s, %s offset:%d" % (v(dst + 2, 2), v(tr[j]), off + 256))

        def loop(lg, reads, compute, bars, prio):
            S = 32
            mode = self.opts.get("p1mode", 1)
            state["base"] = 0
            if prio:
                e("s_setprio %d" % prio)
            e("s_barrier")
            bars.append("p1c0")
            reads(0)
            for st in range(S):
                nxt = st + 1
                if mode == 0:
                    if nxt < S:
                        if nxt % 4 == 0:
                            c = nxt // 4
                            lg.wait_all()
                            rebase(c % 5)
                            e("s_barrier")
                            bars.append("p1c%d" % c)
                        reads(nxt)
                        lg.wait(("r", st))
                    else:
                        lg.wait_all()
                    compute(st)
                else:
                    lg.wait_all()
                    if nxt < S and nxt % 4 == 0:
                        c = nxt // 4
                        rebase(c % 5)
                        e("s_barrier")
                        bars.append("p1c%d" % c)
                    compute(st, (lambda n=nxt: reads(n)) if nxt < S else None)
            if prio:
                e("s_setprio 0")

        def stat_addr(adr):
            e("v_and_b32 %s, 31, %s" % (v(adr), v(L)))
            e("s_and_b32 %s, %s, 3" % (s(ST[0]), s(SW)))
            e("s_lshl_b32 %s, %s, 7" % (s(ST[0]), s(ST[0])))
            e("s_add_u32 %s, %s, %d" % (s(ST[0]), s(ST[0]), P1M + P_STAT))
            e("v_lshlrev_b32 %s, 2, %s" % (v(adr), v(adr)))
            e("v_add_u32 %s, %s, %s" % (v(adr), s(ST[0]), v(adr)))

        lgA = p.lg.clone()
        barsA = []
        accQ = va.alloc("p1a_accQ", 16, 4)
        accK = va.alloc("p1a_accK", 16, 4)
        xf = [va.alloc("p1a_xf%d" % i, 4, 4) for i in range(2)]
        wq = [va.alloc("p1a_wq%d" % i, 4, 4) for i in range(2)]
        wk = [va.alloc("p1a_wk%d" % i, 4, 4) for i in range(2)]
        csq, csk = va.alloc("p1a_csq", 4, 4), va.alloc("p1a_csk", 4, 4)

        def readsA(st):
            c, j, b = st // 4, st % 4, st % 2
            xread(xf[b], c, j)
            wread(wq[b], c, j, 0)
            wread(wk[b], c, j, 1)
            for _ in range(5):
                lgA.issue(("r", st))

        def computeA(st, mid=None):
            b, j = st % 2, st % 4
            cq = "0" if st == 0 else v(accQ, 16)
            ck = "0" if st == 0 else v(accK, 16)
            ops = []
            h = 0
            e("v_mfma_f32_32x32x16_bf16 %s, %s, %s, %s" % (v(accQ, 16), v(wq[b], 4), v(xf[b], 4), cq))
            if mid:
                mid()
            e("v_mfma_f32_32x32x16_bf16 %s, %s, %s, %s" % (v(accK, 16), v(wk[b], 4), v(xf[b], 4), ck))
            for o in ops[h:]:
                e(o)
            if j == 0:
                e(p.colsum_mfma(csq, wq[b], sel, st == 0))
            elif j == 1:
                e(p.colsum_mfma(csk, wk[b], sel, st == 1))

        ta = va.alloc("p1a_t")
        adr = va.alloc("p1a_adr")
        sadr = va.alloc("p1a_sadr")
        pw = va.alloc("p1a_pw")
        padr = va.alloc("p1a_padr")
        cadr = va.alloc("p1a_cadr")
        stat_addr(sadr)
        p.colsum_addr(pw, ta)
        e("s_lshl_b32 %s, %s, 8" % (s(ST[0]), s(SW)))
        e("s_add_u32 %s, %s, %d" % (s(ST[1]), s(ST[0]), P1M + P_CSA))
        e("v_add_u32 %s, %s, %s" % (v(pw), s(ST[1]), v(pw)))
        e("v_and_b32 %s, 31, %s" % (v(adr), v(L)))
        e("v_lshlrev_b32 %s, 2, %s" % (v(adr), v(adr)))
        e("v_add_u32 %s, %d, %s" % (v(adr), P1M + P_CSA, v(adr)))
        e("v_add_u32 %s, %s, %s" % (v(padr), s(ST[0]), v(adr)))
        e("v_lshrrev_b32 %s, 5, %s" % (v(cadr), v(L)))
        e("v_lshlrev_b32 %s, 4, %s" % (v(cadr), v(cadr)))
        e("s_add_u32 %s, %s, %d" % (s(ST[0]), s(ST[0]), P1M + P_CSF))
        e("v_add_u32 %s, %s, %s" % (v(cadr), s(ST[0]), v(cadr)))
        sKo = SA[4]
        e("s_lshl_b32 %s, %s, 17" % (s(sKo), s(SG)))
        e("s_lshl_b32 %s, %s, 12" % (s(ST[1]), s(SM)))
        e("s_add_u32 %s, %s, %s" % (s(sKo), s(sKo), s(ST[1])))
        e("s_lshl_b32 %s, %s, 10" % (s(ST[1]), s(SW)))
        e("s_add_u32 %s, %s, %s" % (s(sKo), s(sKo), s(ST[1])))
        e("s_add_u32 %s, %s, %d" % (s(sKo), s(sKo), WS_K))
        e("s_add_u32 %s, %s, 65536" % (s(sKo + 1), s(sKo)))
        kl = va.alloc("p1a_kl")
        e("s_lshl_b32 %s, %s, 10" % (s(ST[0]), s(SW)))
        e("v_add_u32 %s, %s, %s" % (v(kl), s(ST[0]), v(p.vL16)))
        loop(lgA, readsA, computeA, barsA, self.opts.get("p1pa", 0))
        va.free("p1a_xf0", "p1a_xf1", "p1a_wq0", "p1a_wq1", "p1a_wk0", "p1a_wk1")
        p.colsum_exec()
        e("ds_write_b128 %s, %s" % (v(pw), v(csq, 4)))
        e("ds_write_b128 %s, %s offset:128" % (v(pw), v(csk, 4)))
        e("s_mov_b64 exec, -1")
        e("v_mov_b32 %s, %d" % (v(ta), MISC + M_CTRL))
        e("s_waitcnt lgkmcnt(0)")
        e("s_barrier")
        barsA.append("E1")
        part = va.alloc("p1a_part", 8, 4)
        fa = va.alloc("p1a_fa")
        rs, mr = va.alloc("p1a_rs", 2, 2), va.alloc("p1a_mr", 2, 2)
        rq = va.alloc("p1a_rq", 2, 2)
        for wv_ in range(4):
            e("ds_read_b32 %s, %s offset:%d" % (v(part + wv_), v(adr), wv_ * 256))
            e("ds_read_b32 %s, %s offset:%d" % (v(part + 4 + wv_), v(adr), wv_ * 256 + 128))
        e("ds_read_b32 %s, %s" % (v(rs), v(sadr)))
        e("ds_read_b32 %s, %s offset:1024" % (v(mr), v(sadr)))
        e("ds_read_b32 %s, %s" % (v(fa), v(ta)))
        e("s_waitcnt lgkmcnt(3)")
        for base in (part, part + 4):
            e("v_add_f32 %s, %s, %s" % (v(base), v(base), v(base + 1)))
            e("v_add_f32 %s, %s, %s" % (v(base + 2), v(base + 2), v(base + 3)))
            e("v_add_f32 %s, %s, %s" % (v(base), v(base), v(base + 2)))
        e("ds_write_b32 %s, %s offset:%d" % (v(padr), v(part), P_CSF - P_CSA))
        e("ds_write_b32 %s, %s offset:%d" % (v(padr), v(part + 4), P_CSF - P_CSA + 128))
        e("s_waitcnt lgkmcnt(0)")
        csQ = va.alloc("p1a_csQ", 16, 4)
        csK = va.alloc("p1a_csK", 16, 4)
        for i in range(4):
            e("ds_read_b128 %s, %s offset:%d" % (v(csK + 4 * i, 4), v(cadr), 128 + 32 * i))
        for i in range(4):
            e("ds_read_b128 %s, %s offset:%d" % (v(csQ + 4 * i, 4), v(cadr), 32 * i))
        e("v_readfirstlane_b32 %s, %s" % (s(SFAST), v(fa)))
        e("v_mul_f32 %s, 0x%x, %s" % (v(rq), fbits(0.25 * LOG2E), v(rs)))
        e("s_waitcnt lgkmcnt(4)")
        for r in range(0, 16, 2):
            e("v_pk_fma_f32 %s, %s, %s, %s op_sel_hi:[0,1,1]" % (v(accK + r, 2), v(mr, 2), v(csK + r, 2), v(accK + r, 2)))
        for r in range(0, 16, 2):
            e("v_pk_mul_f32 %s, %s, %s op_sel_hi:[1,0]" % (v(accK + r, 2), v(accK + r, 2), v(rs, 2)))
        ka, kb = va.alloc("p1a_ka", 4, 4), va.alloc("p1a_kb", 4, 4)
        for i in range(4):
            e("v_cvt_pk_bf16_f32 %s, %s, %s" % (v(ka + i), v(accK + 2 * i), v(accK + 2 * i + 1)))
        for i in range(4):
            e("v_cvt_pk_bf16_f32 %s, %s, %s" % (v(kb + i), v(accK + 8 + 2 * i), v(accK + 9 + 2 * i)))

        def kst(fl):
            e("buffer_store_dwordx4 %s, %s, %s, %s offen %s" % (v(ka, 4), v(p.vL16), s(S_WS, 4), s(sKo), fl))
            e("buffer_store_dwordx4 %s, %s, %s, %s offen %s" % (v(kb, 4), v(p.vL16), s(S_WS, 4), s(sKo + 1), fl))
        p.stores_fast_slow(kst)
        e("ds_write_b128 %s, %s" % (v(kl), v(ka, 4)))
        e("ds_write_b128 %s, %s offset:8192" % (v(kl), v(kb, 4)))
        e("s_waitcnt lgkmcnt(2)")
        for r in range(0, 16, 2):
            e("v_pk_fma_f32 %s, %s, %s, %s op_sel_hi:[0,1,1]" % (v(accQ + r, 2), v(mr, 2), v(csQ + r, 2), v(accQ + r, 2)))
        for r in range(0, 16, 2):
            e("v_pk_mul_f32 %s, %s, %s op_sel_hi:[1,0]" % (v(accQ + r, 2), v(accQ + r, 2), v(rq, 2)))
        qb = va.alloc("p1a_qb", 4, 4)
        for i in range(4):
            e("v_cvt_pk_bf16_f32 %s, %s, %s" % (v(qb + i), v(accQ + 8 + 2 * i), v(accQ + 9 + 2 * i)))
        for i in range(4):
            e("v_cvt_pk_bf16_f32 %s, %s, %s" % (v(self.vQ + i), v(accQ + 2 * i), v(accQ + 2 * i + 1)))
        e("v_add_u32 %s, %d, %s" % (v(adr), P1M + P_QB, v(kl)))
        e("ds_write_b128 %s, %s" % (v(adr), v(qb, 4)))
        e("s_waitcnt vmcnt(0) lgkmcnt(0)")
        e("s_barrier")
        barsA.append("E2")
        e("s_branch L_p1_join")
        va.free_prefix("p1a_")

        e.label("L_p1_roleB")
        lgB = p.lg.clone()
        barsB = []
        accV = va.alloc("p1b_accV", 16, 4)
        xfb = [va.alloc("p1b_xf%d" % i, 4, 4) for i in range(2)]
        wv = [va.alloc("p1b_wv%d" % i, 4, 4) for i in range(2)]
        csv = va.alloc("p1b_csv", 4, 4)

        def readsB(st):
            c, j, b = st // 4, st % 4, st % 2
            xread(xfb[b], c, j)
            wread(wv[b], c, j, 2)
            for _ in range(3):
                lgB.issue(("r", st))

        def computeB(st, mid=None):
            b, j = st % 2, st % 4
            cv = "0" if st == 0 else v(accV, 16)
            e("v_mfma_f32_32x32x16_bf16 %s, %s, %s, %s" % (v(accV, 16), v(xfb[b], 4), v(wv[b], 4), cv))
            if mid:
                mid()
            ops = p.frag_ops("st", xfb[b], tmps, (s1, s2), mask)
            for o in ops:
                e(o)
            if j == 0:
                e(p.colsum_mfma(csv, wv[b], sel, st == 0))

        tb = va.alloc("p1b_t")
        adr = va.alloc("p1b_adr")
        sadr = va.alloc("p1b_sadr")
        padr = va.alloc("p1b_padr")
        cadr = va.alloc("p1b_cadr")
        vo = va.alloc("p1b_vo")
        vl = va.alloc("p1b_vl")
        stat_addr(sadr)
        p.colsum_addr(padr, tb)
        e("s_and_b32 %s, %s, 3" % (s(ST[0]), s(SW)))
        e("s_lshl_b32 %s, %s, 7" % (s(ST[0]), s(ST[0])))
        e("s_add_u32 %s, %s, %d" % (s(ST[0]), s(ST[0]), P1M + P_CSB))
        e("v_add_u32 %s, %s, %s" % (v(padr), s(ST[0]), v(padr)))
        e("v_and_b32 %s, 31, %s" % (v(adr), v(L)))
        e("v_lshlrev_b32 %s, 2, %s" % (v(adr), v(adr)))
        e("v_add_u32 %s, %d, %s" % (v(adr), P1M + P_CSB, v(adr)))
        e("s_and_b32 %s, %s, 3" % (s(ST[0]), s(SW)))
        e("s_lshl_b32 %s, %s, 7" % (s(ST[0]), s(ST[0])))
        e("s_add_u32 %s, %s, %d" % (s(ST[0]), s(ST[0]), P1M + P_STAT))
        e("v_lshrrev_b32 %s, 5, %s" % (v(cadr), v(L)))
        e("v_lshlrev_b32 %s, 4, %s" % (v(cadr), v(cadr)))
        e("v_add_u32 %s, %s, %s" % (v(cadr), s(ST[0]), v(cadr)))
        e("v_bfe_u32 %s, %s, 4, 1" % (v(tb), v(L)))
        e("v_lshlrev_b32 %s, 13, %s" % (v(vl), v(tb)))
        e("v_lshlrev_b32 %s, 16, %s" % (v(tb), v(tb)))
        e("v_lshrrev_b32 %s, 5, %s" % (v(vo), v(L)))
        e("v_lshlrev_b32 %s, 8, %s" % (v(vo), v(vo)))
        e("v_and_b32 %s, 15, %s" % (v(t0), v(L)))
        e("v_lshl_add_u32 %s, %s, 4, %s" % (v(vo), v(t0), v(vo)))
        e("v_add_u32 %s, %s, %s" % (v(vl), v(vl), v(vo)))
        e("v_add_u32 %s, %s, %s" % (v(vo), v(vo), v(tb)))
        sVo = SA[4]
        e("s_lshl_b32 %s, %s, 17" % (s(sVo), s(SG)))
        e("s_lshl_b32 %s, %s, 12" % (s(ST[1]), s(SM)))
        e("s_add_u32 %s, %s, %s" % (s(sVo), s(sVo), s(ST[1])))
        e("s_and_b32 %s, %s, 3" % (s(ST[1]), s(SW)))
        e("s_lshl_b32 %s, %s, 10" % (s(ST[1]), s(ST[1])))
        e("s_add_u32 %s, %s, %s" % (s(sVo), s(sVo), s(ST[1])))
        e("s_add_u32 %s, %s, %d" % (s(sVo), s(sVo), WS_V))
        e("s_add_u32 %s, %s, 4096" % (s(ST[1]), s(ST[1])))
        e("v_add_u32 %s, %s, %s" % (v(vl), s(ST[1]), v(vl)))
        p.fine(11)
        loop(lgB, readsB, computeB, barsB, self.opts.get("p1pb", 1))
        p.fine(11)
        p.colsum_exec()
        e("ds_write_b128 %s, %s" % (v(padr), v(csv, 4)))
        e("s_mov_b64 exec, -1")
        rs, mr = va.alloc("p1b_rs"), va.alloc("p1b_mr")
        p.pair_total(s1, tb)
        p.pair_total(s2, tb)
        p.ln_stats(s1, s2, tb, rs, mr)
        e("v_sub_f32 %s, 0, %s" % (v(s1), v(s1)))
        e("ds_write_b32 %s, %s" % (v(sadr), v(rs)))
        e("ds_write_b32 %s, %s offset:512" % (v(sadr), v(mr)))
        e("ds_write_b32 %s, %s offset:1024" % (v(sadr), v(s1)))
        e("v_mov_b32 %s, %d" % (v(tb), MISC + M_CTRL))
        e("s_waitcnt lgkmcnt(0)")
        p.fine(11)
        e("s_barrier")
        barsB.append("E1")
        p.fine(11)
        part = va.alloc("p1b_part", 4, 4)
        fa = va.alloc("p1b_fa")
        rsT = va.alloc("p1b_rsT", 16, 4)
        mrT = va.alloc("p1b_mrT", 16, 4)
        e("ds_read_b32 %s, %s" % (v(fa), v(tb)))
        for wv_ in range(4):
            e("ds_read_b32 %s, %s offset:%d" % (v(part + wv_), v(adr), wv_ * 128))
        for i in range(4):
            e("ds_read_b128 %s, %s offset:%d" % (v(rsT + 4 * i, 4), v(cadr), 32 * i))
        for i in range(4):
            e("ds_read_b128 %s, %s offset:%d" % (v(mrT + 4 * i, 4), v(cadr), 512 + 32 * i))
        e("s_waitcnt lgkmcnt(8)")
        e("v_readfirstlane_b32 %s, %s" % (s(SFAST), v(fa)))
        e("v_add_f32 %s, %s, %s" % (v(part), v(part), v(part + 1)))
        e("v_add_f32 %s, %s, %s" % (v(part + 2), v(part + 2), v(part + 3)))
        e("v_add_f32 %s, %s, %s" % (v(csv), v(part), v(part + 2)))
        e("s_waitcnt lgkmcnt(4)")
        for r in range(0, 16, 2):
            e("v_pk_mul_f32 %s, %s, %s" % (v(accV + r, 2), v(accV + r, 2), v(rsT + r, 2)))
        e("v_sub_f32 %s, 0, %s" % (v(csv), v(csv)))
        e("s_waitcnt lgkmcnt(0)")
        for r in range(0, 16, 2):
            e("v_pk_fma_f32 %s, %s, %s, %s op_sel_hi:[1,0,1]" % (v(accV + r, 2), v(mrT + r, 2), v(csv, 2), v(accV + r, 2)))
        vf = va.alloc("p1b_vf", 8, 4)
        for i in range(8):
            e("v_cvt_pk_bf16_f32 %s, %s, %s" % (v(vf + i), v(accV + 2 * i), v(accV + 2 * i + 1)))

        def vst(fl):
            e("buffer_store_dwordx4 %s, %s, %s, %s offen %s" % (v(vf, 4), v(vo), s(S_WS, 4), s(sVo), fl))
            e("buffer_store_dwordx4 %s, %s, %s, %s offen offset:512 %s" % (v(vf + 4, 4), v(vo), s(S_WS, 4), s(sVo), fl))
        p.fine(11)
        p.stores_fast_slow(vst)
        e("ds_write_b128 %s, %s" % (v(vl), v(vf, 4)))
        e("ds_write_b128 %s, %s offset:512" % (v(vl), v(vf + 4, 4)))
        p.fine(11)
        e("s_waitcnt vmcnt(0) lgkmcnt(0)")
        p.fine(11)
        e("s_barrier")
        barsB.append("E2")
        p.fine(11)
        e("s_and_b32 %s, %s, 3" % (s(ST[0]), s(SW)))
        e("s_lshl_b32 %s, %s, 10" % (s(ST[0]), s(ST[0])))
        e("s_add_u32 %s, %s, %d" % (s(ST[0]), s(ST[0]), P1M + P_QB))
        e("v_add_u32 %s, %s, %s" % (v(adr), s(ST[0]), v(p.vL16)))
        e("ds_read_b128 %s, %s" % (v(self.vQ, 4), v(adr)))
        e("s_waitcnt lgkmcnt(0)")
        va.free_prefix("p1b_")
        e.label("L_p1_join")
        va.free_prefix("p1_")
        assert barsA == barsB
        p.bars += barsA
        p.stamp(1)
        p.stamp(2)

    def attn_loader(self):
        p = self.l
        e, va, vm = p.e, p.va, p.vm
        sX = SA[21]
        e("s_lshr_b32 %s, %s, 1" % (s(sX), s(SG)))

        def kv_src(c):
            e("s_add_u32 %s, %s, %d" % (s(ST[0]), s(SM), c))
            e("s_and_b32 %s, %s, 15" % (s(ST[0]), s(ST[0])))
            e("s_lshl_b32 %s, %s, 12" % (s(ST[0]), s(ST[0])))
            e("s_add_u32 %s, %s, %s" % (s(ST[0]), s(ST[0]), s(self.sKVg)))

        def kv_issue(c):
            kv_src(c)
            p.dma(S_WS, p.vL16, (ST[0], 0), (self.sKVl, (c % 4) * KV_SLOT), ("kv", c), flags="sc1", n=4)

        def kv_issue_all(c):
            kv_src(c)
            for q in range(4):
                p.dma(S_WS, p.vL16, (ST[0], (q >> 1) * 65536 + (q & 1) * (WS_V - WS_K)), (self.sKVl, (c % 4) * KV_SLOT + q * 4096), ("kv", c), flags="sc1", n=4)

        def wo_issue(c):
            e("s_add_u32 %s, %s, %d" % (s(ST[1]), s(sX), c))
            e("s_and_b32 %s, %s, 7" % (s(ST[1]), s(ST[1])))
            e("s_add_u32 %s, %s, %s" % (s(ST[0]), s(self.sWOs), s(ST[1])))
            e("s_and_b32 %s, %s, 15" % (s(ST[0]), s(ST[0])))
            e("s_lshl_b32 %s, %s, 14" % (s(ST[0]), s(ST[0])))
            e("s_add_u32 %s, %s, %s" % (s(ST[0]), s(ST[0]), s(self.sWOg)))
            e("s_lshl_b32 %s, %s, 11" % (s(ST[1]), s(ST[1])))
            e("s_add_u32 %s, %s, %s" % (s(ST[1]), s(ST[1]), s(self.sWOl)))
            for i in range(2):
                p.dma(S_WO, p.vWF, (ST[0], i * 8192), (ST[1], i * 1024), "wo")

        def pf_issue(k):
            e("s_lshl_b32 %s, %s, 2" % (s(ST[0]), s(sX)))
            e("s_add_u32 %s, %s, %s" % (s(ST[0]), s(ST[0]), s(self.sLW)))
            e("s_add_u32 %s, %s, %d" % (s(ST[0]), s(ST[0]), 4 * k))
            e("s_and_b32 %s, %s, 31" % (s(ST[0]), s(ST[0])))
            e("s_mul_i32 %s, %s, %d" % (s(ST[0]), s(ST[0]), 16 * 2752))
            e("s_lshl_b32 %s, %s, 5" % (s(ST[1]), s(self.sFs)))
            e("s_add_u32 %s, %s, %s" % (s(ST[0]), s(ST[0]), s(ST[1])))
            e("s_mov_b32 exec_hi, 0")
            e("buffer_load_dword %s, %s, %s, %s offen" % (v(p.pfd), v(p.pfo), s(S_PF, 4), s(ST[0])))
            e("s_mov_b32 exec_hi, -1")
            vm.issue("pf")

        def extras(c):
            if c <= 7:
                wo_issue(c)
                if not self.opts.get("nopf"):
                    pf_issue(c)
            if 8 <= c <= 9:
                self.gu_w_half(0, c - 8)
            if not self.opts.get("notouch"):
                if c == 10:
                    self.dest_touch(0)
                if c == 11:
                    self.dest_touch(1)
            if c == 12 and self.opts.get("dmall", 1):
                self.dn_mall_touch()
            if c == 13 and not self.opts.get("noout"):
                self.out_touch()
            if c == 12 and self.opts.get("otouch"):
                e("s_and_b32 %s, %s, 1" % (s(ST[1]), s(self.sLW)))
                e("s_cmp_eq_u32 %s, 0" % s(ST[1]))
                e("s_cselect_b32 %s, %s, %s" % (s(ST[0]), s(SM), s(SG)))
                e("s_lshl_b32 %s, %s, 17" % (s(ST[0]), s(ST[0])))
                e("s_add_u32 %s, %s, %d" % (s(ST[0]), s(ST[0]), WS_O))
                e("s_lshl_b32 %s, %s, 15" % (s(ST[1]), s(self.sLW)))
                e("s_add_u32 %s, %s, %s" % (s(ST[0]), s(ST[0]), s(ST[1])))
                e("buffer_load_dword %s, off, %s, %s sc1" % (v(p.pfd), s(S_WS, 4), s(ST[0])))
                vm.issue("pf")
            if c == 14:
                self.early_writeback(1)
            if c == 3:
                self.early_writeback(8)
            if c == 8:
                self.early_writeback(16)
            if self.opts.get("dpf", 4) == 1 and c in (13, 14):
                self.dn_pf_issue(c - 13)
            if self.opts.get("dpf", 4) == 3 and c == 14:
                self.dn_pf_late()

        def boundary(c, bars):
            p.fine(2)
            vm.wait(("kv", c + 1))
            p.fine(2)
            e("s_barrier")
            bars.append("A%d" % (c + 1))
            if c >= 1 and c + 3 <= 15:
                kv_issue(c + 3)
            extras(c)

        e("s_cmp_lg_u32 %s, %d" % (s(SW), CTRL_WAVE))
        e("s_cbranch_scc1 L_attn_others_ld")
        p.sync(0, SG, SM, SG, True)
        q0 = list(vm.q)
        for c in range(1, 4):
            kv_issue_all(c)
        bars1 = []
        for c in range(3):
            boundary(c, bars1)
        q1 = list(vm.q)
        e("s_branch L_attn_merge_ld")
        e.label("L_attn_others_ld")
        vm.q = list(q0)
        bars2 = []
        for c in range(3):
            boundary(c, bars2)
        assert bars1 == bars2
        n1 = len([t for t in q1]); n2 = len(vm.q)
        assert vm.q[-n1:] == q1 or q1[-n2:] == vm.q, (q1, vm.q)
        if n1 < n2:
            pass
        else:
            vm.q = q1
        e.label("L_attn_merge_ld")
        p.bars += bars1
        bars3 = []
        for c in range(3, 15):
            boundary(c, bars3)
            if c == 13:
                self.oproj_loader_setup()
        p.bars += bars3
        vm.wait_all()
        p.fine(21)
        p.barrier("F1")
        p.fine(21)
        t0, t1 = va.alloc("al_t0"), va.alloc("al_t1")
        e("v_mov_b32 %s, %d" % (v(t0), MISC + M_CTRL + 4))
        e("ds_read_b32 %s, %s" % (v(t1), v(t0)))
        e("s_waitcnt lgkmcnt(0)")
        e("v_readfirstlane_b32 %s, %s" % (s(ST[0]), v(t1)))
        e("s_nop 1")
        e("s_cmp_eq_u32 %s, 0" % s(ST[0]))
        e("s_cbranch_scc1 L_attn_ok_ld")
        e("s_cmp_lg_u32 %s, 0" % s(SREDO))
        e("s_cbranch_scc1 L_attn_ok_ld")
        e("s_mov_b32 %s, 1" % s(SREDO))
        qs = list(vm.q)
        for c in range(4):
            kv_issue(c)
        e("s_waitcnt vmcnt(0)")
        vm.q = qs
        e("s_barrier")
        e("s_branch L_attn_others_ld")
        e.label("L_attn_ok_ld")
        va.free("al_t0", "al_t1")

    def attn_compute(self):
        p = self.c
        e, va, vm, lg = p.e, p.va, p.vm, p.lg
        L = p.vL
        Q = self.vQ
        S = [va.alloc("at_S0", 16, 4), va.alloc("at_S1", 16, 4)]
        negM = va.alloc("at_negM", 16, 4)
        O = va.alloc("at_O", 16, 4)
        P = va.alloc("at_P", 8, 4)
        Kf = [va.alloc("at_K%d" % i, 4, 4) for i in range(2)]
        Vf = [va.alloc("at_V%d" % i, 8, 4) for i in range(2)]
        ka, vaa = va.alloc("at_ka"), va.alloc("at_va")
        t0, t1 = va.alloc("at_t0"), va.alloc("at_t1")
        sHead = SA[6]
        e("s_lshr_b32 %s, %s, 2" % (s(ST[0]), s(SW)))
        e("s_lshl_b32 %s, %s, 1" % (s(sHead), s(SG)))
        e("s_add_u32 %s, %s, %s" % (s(sHead), s(sHead), s(ST[0])))
        e("s_lshl_b32 %s, %s, 13" % (s(ST[0]), s(ST[0])))
        e("v_add_u32 %s, %s, %s" % (v(ka), s(ST[0]), v(p.vL16)))
        e("v_lshrrev_b32 %s, 5, %s" % (v(t0), v(L)))
        e("v_lshlrev_b32 %s, 8, %s" % (v(t0), v(t0)))
        e("v_and_b32 %s, 15, %s" % (v(t1), v(L)))
        e("v_lshl_add_u32 %s, %s, 4, %s" % (v(t0), v(t1), v(t0)))
        e("s_add_u32 %s, %s, 4096" % (s(ST[0]), s(ST[0])))
        e("v_add_u32 %s, %s, %s" % (v(vaa), s(ST[0]), v(t0)))

        e.label("L_attn_begin")
        if self.opts.get("vzero", 1):
            e("v_and_b32 %s, 31, %s" % (v(t0), v(L)))
            e("v_cmp_eq_u32 vcc, 16, %s" % v(t0))
            e("v_mov_b32 %s, 0x%x" % (v(t1), ONES))
            e("s_nop 0")
            e("v_cndmask_b32 %s, 0, %s, vcc" % (v(t0), v(t1)))
            for b in range(2):
                for i in range(8):
                    e("v_mov_b32 %s, %s" % (v(Vf[b] + i), v(t0)))
        else:
            for b in range(2):
                for i in range(8):
                    e("v_mov_b32 %s, 0x%x" % (v(Vf[b] + i), ONES))

        def kread(t):
            c, i = t // 4, t % 4
            e("ds_read_b128 %s, %s offset:%d" % (v(Kf[t % 2], 4), v(ka), (c % 4) * KV_SLOT + i * 1024))
            lg.issue(("k", t))

        def vread(t):
            c, i = t // 4, t % 4
            e("s_mov_b64 exec, %s" % s(SHALF, 2))
            for f in range(2):
                e("ds_read_b128 %s, %s offset:%d" % (v(Vf[t % 2] + 4 * f, 4), v(vaa), (c % 4) * KV_SLOT + i * 1024 + f * 512))
                lg.issue(("v", t))
            e("s_mov_b64 exec, -1")

        kread(0)
        kread(1)
        vread(0)
        lg.wait(("k", 0))
        skipm = p.lab("skip_max")
        e("s_cmp_lg_u32 %s, 0" % s(SREDO))
        e("s_cbranch_scc1 %s" % skipm)
        e("v_mfma_f32_32x32x16_bf16 %s, %s, %s, 0" % (v(S[0], 16), v(Kf[0], 4), v(Q, 4)))
        e("s_nop 11")
        e("v_max3_f32 %s, %s, %s, %s" % (v(t0), v(S[0]), v(S[0] + 1), v(S[0] + 2)))
        for i in range(3, 15, 2):
            e("v_max3_f32 %s, %s, %s, %s" % (v(t0), v(t0), v(S[0] + i), v(S[0] + i + 1)))
        e("v_max_f32 %s, %s, %s" % (v(t0), v(t0), v(S[0] + 15)))
        e("v_mov_b32 %s, %s" % (v(t1), v(t0)))
        e("s_nop 1")
        e("v_permlane32_swap_b32 %s, %s" % (v(t0), v(t1)))
        e("v_max_f32 %s, %s, %s" % (v(t0), v(t0), v(t1)))
        for i in range(16):
            e("v_sub_f32 %s, 0, %s" % (v(negM + i), v(t0)))
        e.label(skipm)
        e("s_nop 1")
        e("v_mfma_f32_32x32x16_bf16 %s, %s, %s, %s" % (v(S[0], 16), v(Kf[0], 4), v(Q, 4), v(negM, 16)))
        e("s_nop 8")

        def pv(t, f):
            first = (t == 0 and f == 0)
            e("v_mfma_f32_32x32x16_bf16 %s, %s, %s, %s" % (v(O, 16), v(Vf[t % 2] + 4 * f, 4), v(P + 4 * f, 4), "0" if first else v(O, 16)))

        NT = 64
        prio = self.opts.get("prio", 1)
        for t in range(NT):
            cur = S[t % 2]
            ex = lambda i: e("v_exp_f32 %s, %s" % (v(cur + i), v(cur + i)))
            cv = lambda i: e("v_cvt_pk_bf16_f32 %s, %s, %s" % (v(P + i), v(cur + 2 * i), v(cur + 2 * i + 1)))
            if prio == 1:
                e("s_setprio %d" % (3 - (t - 2) % 4))
            elif prio == 2:
                e("s_setprio %d" % (2 - min(2, (t - 2) % 4)))
            elif prio == 3 and t % 2 == 0:
                e("s_setprio %d" % (1 - ((t - 2) % 4) // 2))
            elif t == 0:
                e("s_nop 0")
            lg.wait_all()
            if t + 1 < NT:
                e("v_mfma_f32_32x32x16_bf16 %s, %s, %s, %s" % (v(S[(t + 1) % 2], 16), v(Kf[(t + 1) % 2], 4), v(Q, 4), v(negM, 16)))
            kpos = self.opts.get("kpos", 1)
            vpos = self.opts.get("vpos", 0)

            def next_k():
                if t % 4 == 2 and t // 4 + 1 <= 15:
                    p.fine(12)
                    p.barrier("A%d" % (t // 4 + 1))
                    p.fine(12)
                if t + 2 < NT:
                    kread(t + 2)
            def next_v():
                if t + 1 < NT:
                    vread(t + 1)
            if kpos == 0:
                next_k()
            for i in range(4):
                ex(i)
            if t > 0:
                pv(t - 1, 1)
            if vpos == 0:
                next_v()
            cv(0); ex(4); ex(5); cv(1)
            if vpos == 3:
                next_v()
            if kpos == 2:
                next_k()
            ex(6); ex(7); cv(2); ex(8); cv(3); ex(9); ex(10)
            pv(t, 0)
            if vpos == 1:
                next_v()
            if kpos == 1:
                next_k()
            if vpos == 2:
                next_v()
            ex(11); cv(4); ex(12); ex(13); cv(5)
            if kpos == 3:
                next_k()
            ex(14); ex(15); cv(6)
            cv(7)
        e("s_setprio 0")
        e("s_nop 0")
        pv(NT - 1, 1)
        p.stamp(3)
        e("s_nop 11")
        chk = p.lab("chk_done")
        if self.opts.get("vzero", 1):
            e("v_mov_b32 %s, %s" % (v(t1), v(O + 8)))
            e("s_nop 1")
            e("v_permlane32_swap_b32 %s, %s" % (v(O + 8), v(t1)))
            e("s_nop 1")
        e("v_rcp_f32 %s, %s" % (v(t1), v(O + 8)))
        e("s_cmp_lg_u32 %s, 0" % s(SREDO))
        e("s_cbranch_scc1 %s" % chk)
        e("s_mov_b32 %s, 0x%x" % (s(ST[0]), fbits(2.0 ** 64)))
        e("v_cmp_nge_f32 vcc, %s, %s" % (s(ST[0]), v(O + 8)))
        e("s_nop 1")
        e("s_cbranch_vccz %s" % chk)
        e("v_mov_b32 %s, %d" % (v(t0), MISC + M_CTRL + 4))
        e("v_mov_b32 %s, 1" % v(S[0]))
        e("ds_write_b32 %s, %s" % (v(t0), v(S[0])))
        e.label(chk)
        for i in range(8):
            e("v_mul_f32 %s, %s, %s" % (v(O + i), v(O + i), v(t1)))
        for i in range(4):
            e("v_cvt_pk_bf16_f32 %s, %s, %s" % (v(P + i), v(O + 2 * i), v(O + 2 * i + 1)))
        e("s_lshl_b32 %s, %s, 2" % (s(ST[0]), s(SM)))
        e("s_and_b32 %s, %s, 3" % (s(ST[1]), s(SW)))
        e("s_add_u32 %s, %s, %s" % (s(ST[0]), s(ST[0]), s(ST[1])))
        e("s_lshl_b32 %s, %s, 5" % (s(ST[0]), s(ST[0])))
        e("s_add_u32 %s, %s, %s" % (s(ST[0]), s(ST[0]), s(sHead)))
        e("s_lshl_b32 %s, %s, 10" % (s(ST[0]), s(ST[0])))
        e("s_add_u32 %s, %s, %d" % (s(ST[0]), s(ST[0]), WS_O))
        e("buffer_store_dwordx4 %s, %s, %s, %s offen sc1" % (v(P, 4), v(p.vL16), s(S_WS, 4), s(ST[0])))
        p.fine(31)
        e("s_waitcnt vmcnt(0) lgkmcnt(0)")
        p.fine(31)
        vm.q, lg.q = [], []
        p.barrier("F1")
        e("v_mov_b32 %s, %d" % (v(t0), MISC + M_CTRL + 4))
        e("ds_read_b32 %s, %s" % (v(t1), v(t0)))
        e("s_waitcnt lgkmcnt(0)")
        e("v_readfirstlane_b32 %s, %s" % (s(ST[0]), v(t1)))
        e("s_nop 1")
        e("s_cmp_eq_u32 %s, 0" % s(ST[0]))
        e("s_cbranch_scc1 L_attn_ok")
        e("s_cmp_lg_u32 %s, 0" % s(SREDO))
        e("s_cbranch_scc1 L_attn_ok")
        e("s_mov_b32 %s, 1" % s(SREDO))
        e("s_lshl_b32 %s, %s, 16" % (s(ST[0]), s(sHead)))
        e("s_add_u32 %s, %s, %d" % (s(ST[0]), s(ST[0]), WS_K))
        e("s_mov_b32 %s, 64" % s(ST[1]))
        e("v_mov_b32 %s, 0xff800000" % v(t0))
        e.label("L_exact_max")
        e("buffer_load_dwordx4 %s, %s, %s, %s offen sc1" % (v(Kf[0], 4), v(p.vL16), s(S_WS, 4), s(ST[0])))
        e("s_add_u32 %s, %s, 1024" % (s(ST[0]), s(ST[0])))
        e("s_waitcnt vmcnt(0)")
        e("v_mfma_f32_32x32x16_bf16 %s, %s, %s, 0" % (v(S[0], 16), v(Kf[0], 4), v(Q, 4)))
        e("s_nop 11")
        for i in range(0, 16, 2):
            e("v_max3_f32 %s, %s, %s, %s" % (v(t0), v(t0), v(S[0] + i), v(S[0] + i + 1)))
        e("s_sub_u32 %s, %s, 1" % (s(ST[1]), s(ST[1])))
        e("s_cmp_lg_u32 %s, 0" % s(ST[1]))
        e("s_cbranch_scc1 L_exact_max")
        e("v_mov_b32 %s, %s" % (v(t1), v(t0)))
        e("s_nop 1")
        e("v_permlane32_swap_b32 %s, %s" % (v(t0), v(t1)))
        e("v_max_f32 %s, %s, %s" % (v(t0), v(t0), v(t1)))
        for i in range(16):
            e("v_sub_f32 %s, 0, %s" % (v(negM + i), v(t0)))
        e("s_barrier")
        e("s_branch L_attn_begin")
        e.label("L_attn_ok")
        va.free_prefix("at_")
        va.free("Q")

    def oproj_loader_setup(self):
        p = self.l
        e = p.e
        sOg, sOl = SA[22], SA[23]
        self.sOg, self.sOl = sOg, sOl
        e("s_lshl_b32 %s, %s, 2" % (s(ST[0]), s(SG)))
        e("s_lshr_b32 %s, %s, 3" % (s(ST[1]), s(SM)))
        e("s_lshl_b32 %s, %s, 1" % (s(ST[1]), s(ST[1])))
        e("s_add_u32 %s, %s, %s" % (s(ST[0]), s(ST[0]), s(ST[1])))
        e("s_and_b32 %s, %s, 1" % (s(ST[1]), s(self.sLW)))
        e("s_add_u32 %s, %s, %s" % (s(ST[0]), s(ST[0]), s(ST[1])))
        e("s_lshl_b32 %s, %s, 15" % (s(sOg), s(ST[0])))
        e("s_lshl_b32 %s, %s, 15" % (s(sOl), s(ST[1])))
        e("s_lshr_b32 %s, %s, 1" % (s(ST[1]), s(self.sLW)))
        e("s_lshl_b32 %s, %s, 14" % (s(ST[1]), s(ST[1])))
        e("s_add_u32 %s, %s, %s" % (s(sOl), s(sOl), s(ST[1])))
        e("s_add_u32 %s, %s, %s" % (s(sOg), s(sOg), s(ST[1])))
        e("s_add_u32 %s, %s, %d" % (s(sOg), s(sOg), WS_O))

    def oproj_loader(self):
        p = self.l
        e, va, vm = p.e, p.va, p.vm

        def zupdate(a):
            sk = p.lab("zupd")
            e("s_cmp_lg_u32 s2, 0")
            e("s_cbranch_scc1 %s" % sk)
            e("s_mov_b64 exec, 1")
            e("buffer_store_dwordx2 %s, off, %s, 0 sc1" % (v(a, 2), s(S_WS, 4)))
            e.label(sk)
        sOg, sOl = self.sOg, self.sOl
        p.sync(1, SM, SG, SG, False, after_poll=zupdate)
        p.barrier("F2")

        def o_issue(cc):
            for pr in range(2):
                e("s_add_u32 %s, %s, %d" % (s(ST[0]), s(self.sRotO), 4 * cc + 2 * pr))
                e("s_and_b32 %s, %s, 15" % (s(ST[0]), s(ST[0])))
                e("s_lshl_b32 %s, %s, 10" % (s(ST[0]), s(ST[0])))
                e("s_add_u32 %s, %s, %s" % (s(ST[0]), s(ST[0]), s(sOg)))
                p.dma(S_WS, p.vL16, (ST[0], 0), (sOl, cc * 4096 + pr * 2048), ("o", cc), flags="sc1", n=2)
        o_issue(0)
        o_issue(1)
        for cc in range(4):
            vm.wait(("o", cc))
            p.barrier("Oc%d" % cc)
            if cc + 2 <= 3:
                o_issue(cc + 2)
        p.barrier("X1")
        self.gu_w_issue(1)
        p.barrier("Y1")
        p.barrier("H1")
        if self.opts.get("gw2pre", 0):
            oth = p.lab("s3_others")
            join = p.lab("s3_join")
            e("s_cmp_lg_u32 %s, %d" % (s(SW), CTRL_WAVE))
            e("s_cbranch_scc1 %s" % oth)
            p.sync(2, SG, SM, SG, True)
            e("s_barrier")
            q0 = list(vm.q)
            self.gu_w_issue(2)
            e("s_branch %s" % join)
            e.label(oth)
            vm.q = q0
            self.gu_w_issue(2)
            e("s_barrier")
            e.label(join)
            p.bars.append("H2")
        else:
            p.sync(2, SG, SM, SG, True)
            p.barrier("H2")

    def tile64_roles(self):
        p = self.c
        e, va = p.e, p.va
        L = p.vL
        self.sTT, self.sCB = SA[12], SA[13]
        e("s_lshl_b32 %s, %s, 2" % (s(self.sTT), s(SG)))
        e("s_lshr_b32 %s, %s, 3" % (s(ST[0]), s(SM)))
        e("s_lshl_b32 %s, %s, 1" % (s(ST[0]), s(ST[0])))
        e("s_add_u32 %s, %s, %s" % (s(self.sTT), s(self.sTT), s(ST[0])))
        e("s_and_b32 %s, %s, 1" % (s(ST[0]), s(SW)))
        e("s_add_u32 %s, %s, %s" % (s(self.sTT), s(self.sTT), s(ST[0])))
        e("s_and_b32 %s, %s, 7" % (s(self.sCB), s(SM)))
        e("s_lshl_b32 %s, %s, 6" % (s(self.sCB), s(self.sCB)))
        e("s_bfe_u32 %s, %s, 0x10001" % (s(ST[0]), s(SW)))
        e("s_lshl_b32 %s, %s, 5" % (s(ST[0]), s(ST[0])))
        e("s_add_u32 %s, %s, %s" % (s(self.sCB), s(self.sCB), s(ST[0])))
        e("s_lshr_b32 %s, %s, 2" % (s(ST[0]), s(SW)))
        e("s_lshl_b32 %s, %s, 4" % (s(ST[0]), s(ST[0])))
        e("s_add_u32 %s, %s, %s" % (s(self.sCB), s(self.sCB), s(ST[0])))
        self.vTrP = va.alloc("TrP")
        a = va.alloc("t64_a")
        b_ = va.alloc("t64_b")
        e("v_lshrrev_b32 %s, 5, %s" % (v(a), v(L)))
        e("v_lshlrev_b32 %s, 2, %s" % (v(a), v(a)))
        e("v_bfe_u32 %s, %s, 2, 2" % (v(b_), v(L)))
        e("v_add_u32 %s, %s, %s" % (v(a), v(a), v(b_)))
        e("v_lshlrev_b32 %s, 7, %s" % (v(self.vTrP), v(a)))
        e("v_lshrrev_b32 %s, 1, %s" % (v(b_), v(b_)))
        e("s_bfe_u32 %s, %s, 0x10001" % (s(ST[0]), s(SW)))
        e("v_xor_b32 %s, %s, %s" % (v(b_), s(ST[0]), v(b_)))
        e("v_lshl_add_u32 %s, %s, 6, %s" % (v(self.vTrP), v(b_), v(self.vTrP)))
        e("s_lshr_b32 %s, %s, 2" % (s(ST[0]), s(SW)))
        e("v_bfe_u32 %s, %s, 4, 1" % (v(a), v(L)))
        e("v_xor_b32 %s, %s, %s" % (v(a), s(ST[0]), v(a)))
        e("v_lshl_add_u32 %s, %s, 5, %s" % (v(self.vTrP), v(a), v(self.vTrP)))
        e("v_and_b32 %s, 3, %s" % (v(a), v(L)))
        e("v_lshl_add_u32 %s, %s, 3, %s" % (v(self.vTrP), v(a), v(self.vTrP)))
        self.vRow = va.alloc("Row")
        e("v_and_b32 %s, 31, %s" % (v(a), v(L)))
        e("v_lshlrev_b32 %s, 10, %s" % (v(self.vRow), v(a)))
        e("v_lshrrev_b32 %s, 5, %s" % (v(a), v(L)))
        e("v_lshl_add_u32 %s, %s, 4, %s" % (v(self.vRow), v(a), v(self.vRow)))
        self.sRow = SA[14]
        e("s_lshl_b32 %s, %s, 15" % (s(self.sRow), s(self.sTT)))
        e("s_lshl_b32 %s, %s, 1" % (s(ST[0]), s(self.sCB)))
        e("s_add_u32 %s, %s, %s" % (s(self.sRow), s(self.sRow), s(ST[0])))
        va.free("t64_a", "t64_b")

    def exchange_setup(self, name, offs):
        p = self.c
        e, va = p.e, p.va
        a, b = va.alloc(name + "_xa"), va.alloc(name + "_xb")
        offs(SW, ST[1])
        e("s_xor_b32 %s, %s, 4" % (s(ST[2]), s(SW)))
        offs(ST[2], ST[0])
        e("v_add_u32 %s, %s, %s" % (v(a), s(ST[1]), v(p.vL16)))
        e("v_add_u32 %s, %s, %s" % (v(b), s(ST[0]), v(p.vL16)))
        return a, b

    def exchange_halves(self, acc, adr, tag):
        p = self.c
        e, va = p.e, p.va
        a, b = adr
        r = va.alloc("xc_r", 8, 4)
        e("ds_write_b128 %s, %s" % (v(a), v(acc + 8, 4)))
        e("ds_write_b128 %s, %s offset:1024" % (v(a), v(acc + 12, 4)))
        e("s_waitcnt lgkmcnt(0)")
        p.barrier(tag)
        e("ds_read_b128 %s, %s" % (v(r, 4), v(b)))
        e("ds_read_b128 %s, %s offset:1024" % (v(r + 4, 4), v(b)))
        e("s_waitcnt lgkmcnt(0)")
        for i in range(8):
            e("v_add_f32 %s, %s, %s" % (v(acc + i), v(acc + i), v(r + i)))
        va.free("xc_r")

    def add_packed(self, acc, pk):
        p = self.c
        e, va = p.e, p.va
        a = va.alloc("ap_a")
        for i in range(4):
            e("v_lshlrev_b32 %s, 16, %s" % (v(a), v(pk + i)))
            e("v_add_f32 %s, %s, %s" % (v(acc + 2 * i), v(acc + 2 * i), v(a)))
            e("v_and_b32 %s, 0xffff0000, %s" % (v(a), v(pk + i)))
            e("v_add_f32 %s, %s, %s" % (v(acc + 2 * i + 1), v(acc + 2 * i + 1), v(a)))
        va.free("ap_a")

    def oproj_compute(self):
        p = self.c
        e, va, vm, lg = p.e, p.va, p.vm, p.lg
        self.tile64_roles()
        xres = va.alloc("op_x", 4, 4)
        e("buffer_load_dwordx4 %s, %s, %s, %s offen" % (v(xres, 4), v(self.vRow), s(S_X, 4), s(self.sRow)))
        vm.issue("xres")
        oa, wa = va.alloc("op_oa"), va.alloc("op_wa")
        e("s_and_b32 %s, %s, 1" % (s(ST[0]), s(SW)))
        e("s_lshl_b32 %s, %s, 15" % (s(ST[0]), s(ST[0])))
        e("s_lshr_b32 %s, %s, 2" % (s(ST[1]), s(SW)))
        e("s_lshl_b32 %s, %s, 14" % (s(ST[1]), s(ST[1])))
        e("s_add_u32 %s, %s, %s" % (s(ST[0]), s(ST[0]), s(ST[1])))
        e("v_add_u32 %s, %s, %s" % (v(oa), s(ST[0]), v(p.vL16)))
        e("s_lshl_b32 %s, %s, 1" % (s(ST[0]), s(ST[1])))
        e("s_add_u32 %s, %s, %d" % (s(ST[0]), s(ST[0]), WO_LDS))
        e("v_add_u32 %s, %s, %s" % (v(wa), s(ST[0]), v(self.vTrP)))
        acc = va.alloc("op_acc", 16, 4)
        of = [va.alloc("op_of%d" % i, 4, 4) for i in range(3)]
        wf = [va.alloc("op_wf%d" % i, 4, 4) for i in range(3)]

        def reads(st):
            b = st % 3
            e("ds_read_b128 %s, %s offset:%d" % (v(of[b], 4), v(oa), st * 1024))
            e("ds_read_b64_tr_b16 %s, %s offset:%d" % (v(wf[b], 2), v(wa), st * 2048))
            e("ds_read_b64_tr_b16 %s, %s offset:%d" % (v(wf[b] + 2, 2), v(wa), st * 2048 + 1024))
            for _ in range(3):
                lg.issue(("r", st))

        def xoffs(w, dst):
            e("s_lshr_b32 %s, %s, 2" % (s(dst), s(w)))
            e("s_lshl_b32 %s, %s, 14" % (s(dst), s(dst)))
            e("s_and_b32 %s, %s, 3" % (s(ST[3]), s(w)))
            e("s_lshl_b32 %s, %s, 11" % (s(ST[3]), s(ST[3])))
            e("s_add_u32 %s, %s, %s" % (s(dst), s(dst), s(ST[3])))
            e("s_add_u32 %s, %s, 32768" % (s(dst), s(dst)))
        xadr = self.exchange_setup("op", xoffs)
        sHo, sSo = SA[4], SA[5]
        e("s_lshl_b32 %s, %s, 15" % (s(sHo), s(self.sTT)))
        e("s_lshl_b32 %s, %s, 6" % (s(ST[1]), s(self.sCB)))
        e("s_add_u32 %s, %s, %s" % (s(sHo), s(sHo), s(ST[1])))
        e("s_add_u32 %s, %s, %d" % (s(sHo), s(sHo), WS_H))
        sad, swr, sgo = va.alloc("op_sad"), va.alloc("op_swr"), va.alloc("op_sgo")
        e("v_and_b32 %s, 31, %s" % (v(sgo), v(p.vL)))
        e("v_lshlrev_b32 %s, 3, %s" % (v(sgo), v(sgo)))
        e("s_and_b32 %s, %s, 1" % (s(ST[0]), s(SW)))
        e("s_lshl_b32 %s, %s, 10" % (s(ST[0]), s(ST[0])))
        e("s_add_u32 %s, %s, %d" % (s(ST[0]), s(ST[0]), OP_STP))
        e("v_add_u32 %s, %s, %s" % (v(sad), s(ST[0]), v(sgo)))
        e("s_bfe_u32 %s, %s, 0x10001" % (s(ST[0]), s(SW)))
        e("s_lshl_b32 %s, %s, 1" % (s(ST[0]), s(ST[0])))
        e("s_lshr_b32 %s, %s, 2" % (s(ST[1]), s(SW)))
        e("s_add_u32 %s, %s, %s" % (s(ST[0]), s(ST[0]), s(ST[1])))
        e("s_lshl_b32 %s, %s, 8" % (s(ST[0]), s(ST[0])))
        e("v_add_u32 %s, %s, %s" % (v(swr), s(ST[0]), v(sad)))
        e("s_lshl_b32 %s, %s, 3" % (s(sSo), s(self.sTT)))
        e("s_and_b32 %s, %s, 7" % (s(ST[1]), s(SM)))
        e("s_add_u32 %s, %s, %s" % (s(sSo), s(sSo), s(ST[1])))
        e("s_lshl_b32 %s, %s, 8" % (s(sSo), s(sSo)))
        e("s_add_u32 %s, %s, %d" % (s(sSo), s(sSo), WS_ST))
        vm.wait("xres")
        e("v_permlane32_swap_b32 %s, %s" % (v(xres), v(xres + 2)))
        e("v_permlane32_swap_b32 %s, %s" % (v(xres + 1), v(xres + 3)))
        p.barrier("F2")
        p.stamp(4)
        p.barrier("Oc0")
        reads(0)
        reads(1)
        for st in range(16):
            b = st % 3
            lg.wait(("r", st))
            if st + 2 < 16 and (st + 2) % 4 == 0:
                p.barrier("Oc%d" % ((st + 2) // 4))
            e("v_mfma_f32_32x32x16_bf16 %s, %s, %s, %s" % (v(acc, 16), v(wf[b], 4), v(of[b], 4), "0" if st == 0 else v(acc, 16)))
            if st + 2 < 16:
                reads(st + 2)
        e("s_nop 11")
        self.exchange_halves(acc, xadr, "X1")
        self.add_packed(acc, xres)
        self.vHF = va.alloc("HF", 4, 4)
        for i in range(4):
            e("v_cvt_pk_bf16_f32 %s, %s, %s" % (v(self.vHF + i), v(acc + 2 * i), v(acc + 2 * i + 1)))
        def hst(fl):
            e("buffer_store_dwordx4 %s, %s, %s, %s offen %s" % (v(self.vHF, 4), v(p.vL16), s(S_WS, 4), s(sHo), fl))
        p.stores_fast_slow(hst)
        st = va.alloc("op_st", 2, 2)
        ta, tb = va.alloc("op_ta"), va.alloc("op_tb")
        for i in range(4):
            e("v_lshlrev_b32 %s, 16, %s" % (v(ta), v(self.vHF + i)))
            e("v_and_b32 %s, 0xffff0000, %s" % (v(tb), v(self.vHF + i)))
            if i == 0:
                e("v_add_f32 %s, %s, %s" % (v(st), v(ta), v(tb)))
                e("v_mul_f32 %s, %s, %s" % (v(st + 1), v(ta), v(ta)))
            else:
                e("v_add_f32 %s, %s, %s" % (v(st), v(st), v(ta)))
                e("v_fmac_f32 %s, %s, %s" % (v(st + 1), v(ta), v(ta)))
                e("v_add_f32 %s, %s, %s" % (v(st), v(st), v(tb)))
            e("v_fmac_f32 %s, %s, %s" % (v(st + 1), v(tb), v(tb)))
        p.xhalf_sum(st, ta)
        p.xhalf_sum(st + 1, ta)
        e("ds_write_b64 %s, %s" % (v(swr), v(st, 2)))
        e("s_waitcnt lgkmcnt(0)")
        p.barrier("Y1")
        sk = p.lab("st_skip")
        e("s_cmp_ge_u32 %s, 2" % s(SW))
        e("s_cbranch_scc1 %s" % sk)
        pr_ = va.alloc("op_pr", 8, 4)
        for q in range(4):
            e("ds_read_b64 %s, %s offset:%d" % (v(pr_ + 2 * q, 2), v(sad), q * 256))
        e("s_waitcnt lgkmcnt(0)")
        for k in range(2):
            e("v_add_f32 %s, %s, %s" % (v(pr_ + k), v(pr_ + k), v(pr_ + 2 + k)))
            e("v_add_f32 %s, %s, %s" % (v(pr_ + 4 + k), v(pr_ + 4 + k), v(pr_ + 6 + k)))
            e("v_add_f32 %s, %s, %s" % (v(pr_ + k), v(pr_ + k), v(pr_ + 4 + k)))

        def sst(fl):
            e("buffer_store_dwordx2 %s, %s, %s, %s offen %s" % (v(pr_, 2), v(sgo), s(S_WS, 4), s(sSo), fl))
        p.stores_fast_slow(sst)
        e.label(sk)
        e("s_waitcnt vmcnt(0)")
        vm.q = []
        p.barrier("H1")
        va.free_prefix("op_")
        p.stamp(5)
        p.barrier("H2")
        p.stamp(6)

    def gateup_loader(self):
        p = self.l
        e, vm = p.e, p.vm
        sHg, sHl = SA[0], SA[1]
        e("s_lshl_b32 %s, %s, 2" % (s(ST[0]), s(SG)))
        e("s_add_u32 %s, %s, %s" % (s(ST[0]), s(ST[0]), s(self.sLW)))
        e("s_lshl_b32 %s, %s, 15" % (s(sHg), s(ST[0])))
        e("s_add_u32 %s, %s, %d" % (s(sHg), s(sHg), WS_H))
        e("s_lshl_b32 %s, %s, 12" % (s(sHl), s(self.sLW)))

        def h_issue(c):
            p.dma(S_WS, p.vL16, (sHg, c * 4096), (sHl, GU_HSLOT[c % 3]), ("gh", c), flags="sc1", n=4)
        h_issue(0)
        h_issue(1)
        gsp = self.opts.get("gsp", 0)
        if self.opts.get("gw2pre", 0):
            plan = {c: [(c + 3, 0), (c + 3, 1)] for c in range(5)}
        elif gsp == 0:
            plan = {c: [(c + 2, 0), (c + 2, 1)] for c in range(6)}
        else:
            plan = {0: [(3, 0), (3, 1)], 1: [(4, 0), (4, 1)], 2: [(5, 0)], 3: [(5, 1), (6, 0)], 4: [(6, 1), (7, 0)], 5: [(7, 1)]}
        for c in range(8):
            p.fine(4)
            vm.wait([("gw", c), ("gh", c)])
            p.fine(4)
            p.barrier("Gc%d" % c)
            if c + 2 <= 7:
                h_issue(c + 2)
            for cc, wh in plan.get(c, []):
                self.gu_w_half(cc, wh)
            dpf = self.opts.get("dpf", 4)
            if dpf in (4, 5) and c == 6:
                self.dn_pf_late()
            if dpf == 5 and c == 7:
                self.dn_pf_late(0, 40)
            if dpf == 6 and c == 6:
                self.dn_pf_late(0, 40)
            if dpf == 6 and c == 7:
                self.dn_pf_late()
        self.early_writeback(2)
        p.barrier("J1")
        for c in range(self.opts.get("dpre", 5)):
            self.dn_w_issue(c)
        p.barrier("J2")
        p.sync(3, SG, SM, SG, True)
        p.barrier("J3")

    def gateup_compute(self):
        p = self.c
        e, va, vm, lg = p.e, p.va, p.vm, p.lg
        L = p.vL
        sF0, sR, sFs = SA[2], SA[3], SA[10]
        e("s_mul_i32 %s, %s, 6" % (s(sFs), s(SM)))
        e("s_lshl_b32 %s, %s, 2" % (s(ST[0]), s(SM)))
        e("s_add_u32 %s, %s, 22" % (s(ST[0]), s(ST[0])))
        e("s_min_u32 %s, %s, %s" % (s(sFs), s(sFs), s(ST[0])))
        e("s_lshr_b32 %s, %s, 2" % (s(ST[1]), s(SW)))
        e("s_mul_i32 %s, %s, 3" % (s(sF0), s(ST[1])))
        e("s_lshl_b32 %s, %s, 1" % (s(sR), s(ST[1])))
        e("s_add_u32 %s, %s, %s" % (s(sR), s(sR), s(SW)))
        t0, t1 = va.alloc("gu_t0"), va.alloc("gu_t1")
        wa = [[va.alloc("gu_wa%d%d" % (b, k)) for k in range(4)] for b in range(2)]
        ha = [va.alloc("gu_ha%d" % k) for k in range(4)]
        e("v_lshrrev_b32 %s, 5, %s" % (v(t0), v(L)))
        e("v_lshlrev_b32 %s, 2, %s" % (v(t0), v(t0)))
        e("v_bfe_u32 %s, %s, 2, 2" % (v(t1), v(L)))
        e("v_add_u32 %s, %s, %s" % (v(t0), v(t0), v(t1)))
        e("v_mul_u32_u24 %s, 192, %s" % (v(t0), v(t0)))
        e("v_and_b32 %s, 3, %s" % (v(t1), v(L)))
        e("v_lshl_add_u32 %s, %s, 3, %s" % (v(t0), v(t1), v(t0)))
        e("v_bfe_u32 %s, %s, 4, 1" % (v(t1), v(L)))
        e("v_mul_u32_u24 %s, %d, %s" % (v(t1), GU_UP, v(t1)))
        e("v_add_u32 %s, %s, %s" % (v(t0), v(t0), v(t1)))
        e("s_lshl_b32 %s, %s, 5" % (s(ST[2]), s(sF0)))
        e("v_add_u32 %s, %s, %s" % (v(t0), s(ST[2]), v(t0)))
        e("s_and_b32 %s, %s, 3" % (s(ST[0]), s(SW)))
        e("s_lshl_b32 %s, %s, 12" % (s(ST[0]), s(ST[0])))
        e("s_add_u32 %s, %s, %d" % (s(ST[0]), s(ST[0]), GU_HSLOT[0]))
        e("v_add_u32 %s, %s, %s" % (v(t1), s(ST[0]), v(p.vL16)))
        for k in range(4):
            e("s_add_u32 %s, %s, %d" % (s(ST[0]), s(sR), k))
            e("s_and_b32 %s, %s, 3" % (s(ST[0]), s(ST[0])))
            e("s_mul_i32 %s, %s, 3072" % (s(ST[1]), s(ST[0])))
            e("s_lshl_b32 %s, %s, 10" % (s(ST[0]), s(ST[0])))
            e("v_add_u32 %s, %s, %s" % (v(wa[0][k]), s(ST[1]), v(t0)))
            e("v_add_u32 %s, %s, %s" % (v(ha[k]), s(ST[0]), v(t1)))
            e("v_add_u32 %s, %d, %s" % (v(wa[1][k]), GU_WSLOT[0], v(wa[0][k])))
        acc = [va.alloc("gu_acc%d" % j, 16, 4) for j in range(3)]
        hf = [va.alloc("gu_hf%d" % i, 4, 4) for i in range(2)]
        wf = [[va.alloc("gu_wf%d%d" % (i, j), 4, 4) for j in range(3)] for i in range(2)]
        cs = [va.alloc("gu_cs%d" % j, 4, 4) for j in range(3)]
        sel = va.alloc("gu_sel", 4, 4)
        p.make_selector(sel, t0)
        stp = va.alloc("gu_stp", 8, 4)
        e("v_and_b32 %s, 31, %s" % (v(t0), v(L)))
        e("v_lshlrev_b32 %s, 3, %s" % (v(t0), v(t0)))
        e("v_lshrrev_b32 %s, 5, %s" % (v(t1), v(L)))
        e("v_lshl_add_u32 %s, %s, 10, %s" % (v(t0), v(t1), v(t0)))
        e("s_lshl_b32 %s, %s, 2" % (s(ST[0]), s(SG)))
        e("s_and_b32 %s, %s, 3" % (s(ST[1]), s(SW)))
        e("s_add_u32 %s, %s, %s" % (s(ST[0]), s(ST[0]), s(ST[1])))
        e("s_lshl_b32 %s, %s, 11" % (s(ST[0]), s(ST[0])))
        e("s_add_u32 %s, %s, %d" % (s(ST[0]), s(ST[0]), WS_ST))
        for q in range(4):
            e("buffer_load_dwordx2 %s, %s, %s, %s offen offset:%d sc1" % (v(stp + 2 * q, 2), v(t0), s(S_WS, 4), s(ST[0]), q * 256))
            vm.issue("stp")

        def read_h(st):
            c, k, b = st // 4, st % 4, st % 2
            e("ds_read_b128 %s, %s offset:%d" % (v(hf[b], 4), v(ha[k]), (c % 3) * 16384))
            lg.issue(("h", st))

        def read_w(st, j):
            c, k, b = st // 4, st % 4, st % 2
            slot = c % 4
            base, off = (1, 0) if slot == 0 else (0, GU_WSLOT[slot])
            o = off + j * 32
            e("ds_read_b64_tr_b16 %s, %s offset:%d" % (v(wf[b][j], 2), v(wa[base][k]), o))
            e("ds_read_b64_tr_b16 %s, %s offset:%d" % (v(wf[b][j] + 2, 2), v(wa[base][k]), o + 1536))
            lg.issue(("w", st, j))
            lg.issue(("w", st, j))

        pa, pb, ra, ca = va.alloc("gu_pa"), va.alloc("gu_pb"), va.alloc("gu_ra"), va.alloc("gu_ca")
        p.colsum_addr(pa, t0)
        e("s_mul_i32 %s, %s, 384" % (s(ST[0]), s(SW)))
        e("s_add_u32 %s, %s, %d" % (s(ST[1]), s(ST[0]), GU_T + GU_CSP))
        e("v_add_u32 %s, %s, %s" % (v(pa), s(ST[1]), v(pa)))
        e("v_and_b32 %s, 31, %s" % (v(t1), v(L)))
        e("v_lshlrev_b32 %s, 2, %s" % (v(t1), v(t1)))
        e("s_add_u32 %s, %s, %d" % (s(ST[0]), s(ST[0]), GU_T + GU_CSF))
        e("v_add_u32 %s, %s, %s" % (v(pb), s(ST[0]), v(t1)))
        e("v_lshrrev_b32 %s, 5, %s" % (v(ca), v(L)))
        e("v_lshlrev_b32 %s, 4, %s" % (v(ca), v(ca)))
        e("v_add_u32 %s, %s, %s" % (v(ca), s(ST[0]), v(ca)))
        e("s_lshr_b32 %s, %s, 2" % (s(ST[1]), s(SW)))
        e("s_mul_i32 %s, %s, 1536" % (s(ST[1]), s(ST[1])))
        e("s_add_u32 %s, %s, %d" % (s(ST[1]), s(ST[1]), GU_T + GU_CSP))
        e("v_add_u32 %s, %s, %s" % (v(ra), s(ST[1]), v(t1)))
        sAo, sCnt = SA[5], SA[7]
        e("s_lshl_b32 %s, %s, 2" % (s(ST[0]), s(SG)))
        e("s_and_b32 %s, %s, 3" % (s(ST[1]), s(SW)))
        e("s_add_u32 %s, %s, %s" % (s(ST[0]), s(ST[0]), s(ST[1])))
        e("s_mul_i32 %s, %s, 86" % (s(ST[0]), s(ST[0])))
        e("s_add_u32 %s, %s, %s" % (s(ST[0]), s(ST[0]), s(sFs)))
        e("s_add_u32 %s, %s, %s" % (s(ST[0]), s(ST[0]), s(sF0)))
        e("s_lshl_b32 %s, %s, 10" % (s(sAo), s(ST[0])))
        e("s_add_u32 %s, %s, %d" % (s(sAo), s(sAo), WS_A))
        e("s_cmp_lt_u32 %s, 11" % s(SM))
        e("s_cselect_b32 %s, 6, 4" % s(sCnt))
        nm, c2, ve = va.alloc("gu_nm", 2, 2), va.alloc("gu_c2", 2, 2), va.alloc("gu_ve", 2, 2)

        def row_stats():
            vm.wait("stp")
            for k in range(2):
                e("v_add_f32 %s, %s, %s" % (v(stp + k), v(stp + k), v(stp + 2 + k)))
                e("v_add_f32 %s, %s, %s" % (v(stp + 4 + k), v(stp + 4 + k), v(stp + 6 + k)))
                e("v_add_f32 %s, %s, %s" % (v(stp + k), v(stp + k), v(stp + 4 + k)))
            p.xhalf_sum(stp, t0)
            p.xhalf_sum(stp + 1, t0)
            e("v_mul_f32 %s, 0x%x, %s" % (v(nm), fbits(-1.0 / 512), v(stp)))
            e("v_mul_f32 %s, %s, %s" % (v(t0), v(nm), v(nm)))
            e("v_mov_b32 %s, 0x%x" % (v(ve), fbits(1.0 / 512)))
            e("v_fma_f32 %s, %s, %s, -%s" % (v(ve), v(stp + 1), v(ve), v(t0)))
            e("v_max_f32 %s, 0, %s" % (v(ve), v(ve)))
            e("v_add_f32 %s, 0x%x, %s" % (v(ve), fbits(1e-5), v(ve)))
            e("v_rsq_f32 %s, %s" % (v(c2), v(ve)))
            e("s_nop 0")
            e("v_mul_f32 %s, 0x%x, %s" % (v(c2), fbits(-LOG2E), v(c2)))

        p.barrier("Gc0")
        read_h(0)
        for j in range(3):
            read_w(0, j)
        gprio = self.opts.get("gprio", 1)
        for st in range(32):
            b, k = st % 2, st % 4
            nxt = st + 1
            if gprio:
                e("s_setprio %d" % (2 - min(2, (st + 1) % 4)))
            lg.wait_all()
            if nxt < 32 and nxt % 4 == 0:
                p.fine(14)
                p.barrier("Gc%d" % (nxt // 4))
                p.fine(14)
            for j in range(3):
                e("v_mfma_f32_32x32x16_bf16 %s, %s, %s, %s" % (v(acc[j], 16), v(wf[b][j], 4), v(hf[b], 4), "0" if st == 0 else v(acc[j], 16)))
                if j == k:
                    e(p.colsum_mfma(cs[j], wf[b][j], sel, st == k))
                if nxt < 32:
                    if j == 0:
                        read_h(nxt)
                        read_w(nxt, 0)
                    elif j == 1:
                        read_w(nxt, 1)
                        read_w(nxt, 2)
            if st == 9:
                row_stats()
        if gprio:
            e("s_setprio 0")
        for i in range(2):
            va.free("gu_hf%d" % i, "gu_wf%d0" % i, "gu_wf%d1" % i, "gu_wf%d2" % i)
        for k in range(4):
            va.free("gu_wa0%d" % k, "gu_wa1%d" % k, "gu_ha%d" % k)
        va.free("gu_stp", "gu_sel")
        e("s_nop 4")
        p.colsum_exec()
        for j in range(3):
            e("ds_write_b128 %s, %s offset:%d" % (v(pa), v(cs[j], 4), j * 128))
        e("s_mov_b64 exec, -1")
        e("s_waitcnt lgkmcnt(0)")
        p.barrier("J1")
        p.stamp(7)
        part = va.alloc("gu_part", 12, 4)
        for j in range(3):
            for t in range(4):
                e("ds_read_b32 %s, %s offset:%d" % (v(part + 4 * j + t), v(ra), t * 384 + j * 128))
        for j in range(3):
            b = part + 4 * j
            e("s_waitcnt lgkmcnt(%d)" % (8 - 4 * j + j))
            e("v_add_f32 %s, %s, %s" % (v(b), v(b), v(b + 1)))
            e("v_add_f32 %s, %s, %s" % (v(b + 2), v(b + 2), v(b + 3)))
            e("v_add_f32 %s, %s, %s" % (v(b), v(b), v(b + 2)))
            e("ds_write_b32 %s, %s offset:%d" % (v(pb), v(b), j * 128))
        e("s_waitcnt lgkmcnt(0)")
        va.free("gu_part")
        csb = [va.alloc("gu_csr0", 16, 4), va.alloc("gu_csr1", 16, 4)]
        tg, tu, te = va.alloc("gu_tg", 8, 4), va.alloc("gu_tu", 8, 4), va.alloc("gu_te", 8, 4)
        pk = va.alloc("gu_pk", 4, 4)

        def cs_read(j):
            for i in range(4):
                e("ds_read_b128 %s, %s offset:%d" % (v(csb[j % 2] + 4 * i, 4), v(ca), j * 128 + 32 * i))
        cs_read(0)
        cs_read(1)
        for j in range(3):
            csr = csb[j % 2]
            e("s_waitcnt lgkmcnt(%d)" % (4 if j < 2 else 0))
            for r in range(0, 8, 2):
                e("v_pk_fma_f32 %s, %s, %s, %s op_sel_hi:[0,1,1]" % (v(tg + r, 2), v(nm, 2), v(csr + r, 2), v(acc[j] + r, 2)))
            for r in range(0, 8, 2):
                e("v_pk_fma_f32 %s, %s, %s, %s op_sel_hi:[0,1,1]" % (v(tu + r, 2), v(nm, 2), v(csr + 8 + r, 2), v(acc[j] + 8 + r, 2)))
            if j == 0:
                cs_read(2)
            for r in range(0, 8, 2):
                e("v_pk_mul_f32 %s, %s, %s op_sel_hi:[0,1]" % (v(te + r, 2), v(c2, 2), v(tg + r, 2)))
            for r in range(8):
                e("v_exp_f32 %s, %s" % (v(te + r), v(te + r)))
            for r in range(0, 8, 2):
                e("v_pk_mul_f32 %s, %s, %s" % (v(tg + r, 2), v(tg + r, 2), v(tu + r, 2)))
            for r in range(0, 8, 2):
                e("v_pk_fma_f32 %s, %s, %s, %s op_sel_hi:[1,0,0]" % (v(te + r, 2), v(te + r, 2), v(ve, 2), v(ve, 2)))
            for r in range(8):
                e("v_rcp_f32 %s, %s" % (v(te + r), v(te + r)))
            for r in range(0, 8, 2):
                e("v_pk_mul_f32 %s, %s, %s" % (v(tg + r, 2), v(tg + r, 2), v(te + r, 2)))
            for i in range(4):
                e("v_cvt_pk_bf16_f32 %s, %s, %s" % (v(pk + i), v(tg + 2 * i), v(tg + 2 * i + 1)))
            sk = p.lab("act_skip")
            e("s_add_u32 %s, %s, %d" % (s(ST[0]), s(sF0), j))
            e("s_cmp_ge_u32 %s, %s" % (s(ST[0]), s(sCnt)))
            e("s_cbranch_scc1 %s" % sk)
            e("s_add_u32 %s, %s, %d" % (s(ST[0]), s(sAo), j * 1024))

            def ast(fl):
                e("buffer_store_dwordx4 %s, %s, %s, %s offen %s" % (v(pk, 4), v(p.vL16), s(S_WS, 4), s(ST[0]), fl))
            p.stores_fast_slow(ast)
            e.label(sk)
            e("s_nop 1")
        e("s_waitcnt vmcnt(0)")
        vm.q = []
        p.barrier("J2")
        va.free_prefix("gu_")
        p.stamp(8)
        p.barrier("J3")
        p.stamp(9)

    def down_loader(self):
        p = self.l
        e, vm = p.e, p.vm
        sAg, sAl = SA[0], SA[1]
        e("s_lshl_b32 %s, %s, 2" % (s(ST[0]), s(SG)))
        e("s_lshr_b32 %s, %s, 3" % (s(ST[1]), s(SM)))
        e("s_lshl_b32 %s, %s, 1" % (s(ST[1]), s(ST[1])))
        e("s_add_u32 %s, %s, %s" % (s(ST[0]), s(ST[0]), s(ST[1])))
        e("s_and_b32 %s, %s, 1" % (s(ST[1]), s(self.sLW)))
        e("s_add_u32 %s, %s, %s" % (s(ST[0]), s(ST[0]), s(ST[1])))
        e("s_mul_i32 %s, %s, 86" % (s(ST[0]), s(ST[0])))
        e("s_lshr_b32 %s, %s, 1" % (s(ST[2]), s(self.sLW)))
        e("s_mul_i32 %s, %s, 43" % (s(ST[3]), s(ST[2])))
        e("s_add_u32 %s, %s, %s" % (s(ST[0]), s(ST[0]), s(ST[3])))
        e("s_lshl_b32 %s, %s, 10" % (s(sAg), s(ST[0])))
        e("s_add_u32 %s, %s, %d" % (s(sAg), s(sAg), WS_A))
        e("s_lshl_b32 %s, %s, 12" % (s(sAl), s(self.sLW)))

        def a_issue(c):
            p.dma(S_WS, p.vL16, (sAg, c * 4096), (sAl, DN_ASLOT[c % DN_NA]), ("da", c), flags="sc1", n=4)
        a_issue(0)
        a_issue(1)
        for c in range(self.opts.get("dpre", 5), DN_NW):
            self.dn_w_issue(c)
        for c in range(11):
            p.fine(5)
            vm.wait([("dw", c), ("da", c)])
            p.fine(5)
            p.barrier("Dc%d" % c)
            if c + 2 <= 10:
                a_issue(c + 2)
            if c >= 1 and c + DN_NW - 1 <= 10:
                self.dn_w_issue(c + DN_NW - 1)
            if c == 8:
                self.early_writeback(4)
        vm.wait_all()
        p.barrier("X2")

    def down_compute(self):
        p = self.c
        e, va, vm, lg = p.e, p.va, p.vm, p.lg
        aa = va.alloc("dn_aa")
        wa = [va.alloc("dn_wa0"), va.alloc("dn_wa1")]
        e("s_lshr_b32 %s, %s, 2" % (s(ST[0]), s(SW)))
        e("s_lshl_b32 %s, %s, 13" % (s(ST[0]), s(ST[0])))
        e("s_and_b32 %s, %s, 1" % (s(ST[1]), s(SW)))
        e("s_lshl_b32 %s, %s, 12" % (s(ST[1]), s(ST[1])))
        e("s_add_u32 %s, %s, %s" % (s(ST[1]), s(ST[1]), s(ST[0])))
        e("s_add_u32 %s, %s, %d" % (s(ST[1]), s(ST[1]), DN_ASLOT[0]))
        e("v_add_u32 %s, %s, %s" % (v(aa), s(ST[1]), v(p.vL16)))
        e("v_add_u32 %s, %s, %s" % (v(wa[0]), s(ST[0]), v(self.vTrP)))
        e("v_add_u32 %s, 65536, %s" % (v(wa[1]), v(wa[0])))
        acc = va.alloc("dn_acc", 16, 4)
        af = [va.alloc("dn_af%d" % i, 4, 4) for i in range(3)]
        wf = [va.alloc("dn_wf%d" % i, 4, 4) for i in range(3)]
        NS = 43

        def xoffs(w, dst):
            e("s_lshl_b32 %s, %s, 11" % (s(dst), s(w)))
            e("s_add_u32 %s, %s, %d" % (s(dst), s(dst), XCH_DN))
        xadr = self.exchange_setup("dn", xoffs)

        def reads(st):
            c, i, b = st // 4, st % 4, st % 3
            e("ds_read_b128 %s, %s offset:%d" % (v(af[b], 4), v(aa), (c % DN_NA) * 16384 + i * 1024))
            off = DN_WSLOT[c % DN_NW] + i * 2048
            base = off // 65536
            off -= base * 65536
            e("ds_read_b64_tr_b16 %s, %s offset:%d" % (v(wf[b], 2), v(wa[base]), off))
            e("ds_read_b64_tr_b16 %s, %s offset:%d" % (v(wf[b] + 2, 2), v(wa[base]), off + 1024))
            for _ in range(3):
                lg.issue(("r", st))

        if self.opts.get("delay"):
            lab = p.lab("delay")
            e("s_mov_b32 %s, %d" % (s(ST[0]), self.opts["delay"]))
            e.label(lab)
            e("s_sub_u32 %s, %s, 1" % (s(ST[0]), s(ST[0])))
            e("s_cmp_lg_u32 %s, 0" % s(ST[0]))
            e("s_cbranch_scc1 %s" % lab)
        p.barrier("Dc0")
        reads(0)
        reads(1)
        for st in range(NS):
            b = st % 3
            if st + 2 < NS and (st + 2) % 4 == 0:
                lg.wait_all()
                p.barrier("Dc%d" % ((st + 2) // 4))
            else:
                lg.wait(("r", st))
            e("v_mfma_f32_32x32x16_bf16 %s, %s, %s, %s" % (v(acc, 16), v(wf[b], 4), v(af[b], 4), "0" if st == 0 else v(acc, 16)))
            if st + 2 < NS:
                reads(st + 2)
        e("s_nop 11")
        self.exchange_halves(acc, xadr, "X2")
        self.add_packed(acc, self.vHF)
        pk = va.alloc("dn_pk", 4, 4)
        for i in range(4):
            e("v_cvt_pk_bf16_f32 %s, %s, %s" % (v(pk + i), v(acc + 2 * i), v(acc + 2 * i + 1)))
        e("s_nop 1")
        e("v_permlane32_swap_b32 %s, %s" % (v(pk), v(pk + 2)))
        e("v_permlane32_swap_b32 %s, %s" % (v(pk + 1), v(pk + 3)))
        e("buffer_store_dwordx4 %s, %s, %s, %s offen %s" % (v(pk, 4), v(self.vRow), s(S_OUT, 4), s(self.sRow), ["", "sc1", "nt", "sc0 sc1"][self.opts.get("ost", 0)]))
        p.stamp(10)
        p.stamp_rt(12)
        va.free_prefix("dn_")

    def finish(self):
        p = self.c
        e = p.e
        if self.ts:
            for q, wave, off in ((self.c, TS_WAVE, 0), (self.l, CTRL_WAVE, 65536)):
                if q is self.l and not self.opts.get("fine"):
                    continue
                ee = q.e
                sk = q.lab("ts_out")
                ee("s_cmp_lg_u32 %s, %d" % (s(SW), wave))
                ee("s_cbranch_scc1 %s" % sk)
                ee("s_lshl_b32 %s, s2, 8" % s(ST[0]))
                ee("s_add_u32 %s, %s, %d" % (s(ST[0]), s(ST[0]), WS_TS + off))
                ee("v_lshlrev_b32 %s, 2, %s" % (v(q.vL), v(q.vL)))
                ee("s_nop 1")
                ee("buffer_store_dword %s, %s, %s, %s offen" % (v(q.vTS), v(q.vL), s(S_WS, 4), s(ST[0])))
                if q is self.c and self.opts.get("dbg_ts"):
                    ee("s_cmp_lg_u32 s2, %d" % self.opts.get("dbg_wg", 0))
                    ee("s_cbranch_scc1 %s" % sk)
                    ee("s_load_dwordx2 %s, s[0:1], 64" % s(S_X, 2))
                    ee("s_mov_b32 %s, 256" % s(S_X + 2))
                    ee("s_waitcnt lgkmcnt(0)")
                    ee("buffer_store_dword %s, %s, %s, 0 offen" % (v(q.vTS), v(q.vL), s(S_X, 4)))
                ee.label(sk)
        e("s_waitcnt vmcnt(0)")
        e("s_endpgm")
        self.l.e("s_waitcnt vmcnt(0)")

    def build(self):
        self.prologue()
        self.c.stamp(0)
        self.c.stamp_rt(11)
        phases = [("p1", self.p1_compute, self.p1_loader), ("attn", self.attn_compute, self.attn_loader),
                  ("oproj", self.oproj_compute, self.oproj_loader), ("gateup", self.gateup_compute, self.gateup_loader),
                  ("down", self.down_compute, self.down_loader)]
        for name, fc, fl in phases:
            self.c.e.comment("==================== compute: " + name)
            self.l.e.comment("==================== loader: " + name)
            fc()
            fl()
            assert self.c.bars == self.l.bars, (name, self.c.bars, self.l.bars)
            if self.stop == name:
                break
        self.finish()
        hdr = open(os.path.join(os.path.dirname(os.path.abspath(__file__)), "header.txt")).read()
        body = self.pre.text() + self.c.e.text() + "L_loader:\n" + self.l.e.text() + "L_end:\n  s_endpgm\n"
        nv = max(self.c.va.high, self.l.va.high)
        assert nv <= 168
        tail = """.section .rodata,"a"
.p2align 6
.amdhsa_kernel %s
  .amdhsa_next_free_vgpr 168
  .amdhsa_next_free_sgpr 102
  .amdhsa_accum_offset 168
  .amdhsa_group_segment_fixed_size 0
  .amdhsa_kernarg_size 80
  .amdhsa_user_sgpr_count 2
  .amdhsa_user_sgpr_kernarg_segment_ptr 1
  .amdhsa_system_sgpr_workgroup_id_x 1
.end_amdhsa_kernel
""" % KNAME
        return hdr + (".amdgcn_target \"amdgcn-amd-amdhsa--gfx950\"\n.text\n.globl %s\n.p2align 8\n.type %s,@function\n%s:\n" % (KNAME, KNAME, KNAME)) + body + tail


def generate(stop=None, ts=False, **opts):
    g = Gen(stop=stop, ts=ts, opts=opts)
    text = g.build()
    return text, g


if __name__ == "__main__":
    import hazcheck
    text, g = generate()
    n = hazcheck.check(text)
    print("hazards:", n, "vgpr high:", g.c.va.high, g.l.va.high, "lines:", text.count("\n"))
    out = sys.argv[1] if len(sys.argv) > 1 else "cdna_kernels/%s.s" % NAME
    open(out, "w").write(text)
```

```python
import os
import sys
from asmlib import Emit, VAlloc, Counter, v, s

NAME = "sequential_preLN__softmax_full_mha__swiglu_ffn__prompt"
KNAME = NAME + "_kernel"

WS_Z = 0
WS_XT = 4096
WS_FL = WS_XT + 32768
WS_K = 262144
WS_V = WS_K + (2 << 20)
WS_O = WS_V + (2 << 20)
WS_H = WS_O + (2 << 20)
WS_A = WS_H + (2 << 20)
WS_ST = WS_A + 16 * 4 * 86 * 1024 + 4096
WS_END = WS_ST + 64 * 8 * 256
WS_TS = WS_END + 4096
WS_SIZE = WS_TS + 2 * 256 * 256

LDS_SIZE = 163840
MISC = 155776
M_CTRL = 1024
P1M = 143360
P_STAT, P_CSA, P_CSF, P_CSB, P_RSB, P_QB = 0, 2048, 3072, 4096, 4608, 5632
P1_SLOT = 28672
KV_SLOT = 16384
WO_LDS = 65536
GU_WSLOT = [131072, 0, 24608, 49216]
GU_UP = 12320
GU_HSLOT = [73856, 73856 + 16384, 73856 + 32768]
GU_T = 73856 + 32768
GU_CSP, GU_STP, GU_CSF = 0, 3072, 5120
XCH_OP = 73856
OP_STP = 73856 + 16384
DN_NW, DN_NA = 6, 3
DN_WSLOT = [16384 * i for i in range(DN_NW)]
DN_ASLOT = [16384 * DN_NW + 16384 * i for i in range(DN_NA)]
XCH_DN = 0

S_X, S_WQKV, S_WO, S_WG, S_WD, S_OUT, S_WS = 4, 8, 12, 16, 20, 24, 28
S_WU = 92
S_PG, S_PU = 32, 34
SW, SG, SM, SFAST, SN, SREDO = 36, 37, 38, 39, 40, 42
ST = [44, 45, 46, 47, 48, 49, 50, 51, 52, 53]
SHALF = 54
SSAVE = 56
SA = list(range(58, 90))
S_PF = 96

LOG2E = 1.4426950408889634
ONES = 0x3F803F80
TS_WAVE = 7
CTRL_WAVE = 8
NWAVES = 12
POLL_LIMIT = 1 << 17


def fbits(x):
    import struct
    return struct.unpack("<I", struct.pack("<f", x))[0]


class Prog:
    def __init__(self, gen, name):
        self.g = gen
        self.name = name
        self.e = Emit()
        self.va = VAlloc(168)
        self.vm = Counter(self.e, "vmcnt", 63)
        self.lg = Counter(self.e, "lgkmcnt", 15)
        self.bars = []

    def barrier(self, tag):
        self.e("s_barrier")
        self.bars.append(tag)

    def lab(self, base):
        self.g.nlab += 1
        return "L_%s_%d" % (base, self.g.nlab)

    def _stamp(self, instr, idx, wave):
        e = self.e
        skip = self.lab("ts")
        e("s_cmp_lg_u32 %s, %d" % (s(SW), wave))
        e("s_cbranch_scc1 %s" % skip)
        e("%s %s" % (instr, s(90, 2)))
        e("s_waitcnt lgkmcnt(0)")
        e("v_writelane_b32 %s, %s, %d" % (v(self.vTS), s(90), idx))
        e.label(skip)

    def stamp(self, idx):
        if self.g.ts:
            self._stamp("s_memrealtime" if self.g.opts.get("rt") else "s_memtime", idx, TS_WAVE)

    def stamp_rt(self, idx):
        if self.g.ts:
            self._stamp("s_memrealtime", idx, TS_WAVE)

    def fine(self, phase):
        if not self.g.ts or self.g.opts.get("fine") != phase:
            return
        self.nfine = getattr(self, "nfine", 16)
        if self.nfine > 63:
            return
        self._stamp("s_memtime", self.nfine, TS_WAVE if self.name == "c" else CTRL_WAVE)
        self.nfine += 1

    def dma(self, srd, voff, soff_expr, m0_expr, tag, flags="", n=1):
        e = self.e
        sb, c = m0_expr
        if c == 0:
            e("s_mov_b32 m0, %s" % s(sb))
        else:
            e("s_add_u32 m0, %s, %d" % (s(sb), c))
        sb, c = soff_expr
        if c == 0:
            e("s_nop 0")
            so = s(sb)
        else:
            e("s_add_u32 %s, %s, %d" % (s(ST[9]), s(sb), c))
            so = s(ST[9])
        for i in range(n):
            e("buffer_load_dwordx4 %s, %s, %s offen %s%s lds" % (v(voff), s(srd, 4), so, ("offset:%d " % (i * 1024)) if i else "", flags))
            self.vm.issue(tag)

    def xhalf_sum(self, reg, tmp):
        e = self.e
        e("v_mov_b32 %s, %s" % (v(tmp), v(reg)))
        e("s_nop 1")
        e("v_permlane32_swap_b32 %s, %s" % (v(reg), v(tmp)))
        e("v_add_f32 %s, %s, %s" % (v(reg), v(reg), v(tmp)))

    def pair_total(self, pair, tmp):
        self.e("v_add_f32 %s, %s, %s" % (v(pair), v(pair), v(pair + 1)))
        self.xhalf_sum(pair, tmp)

    def ln_stats(self, s1, s2, tmp, rstd, mr):
        e = self.e
        e("v_mul_f32 %s, 0x%x, %s" % (v(s1), fbits(1.0 / 512), v(s1)))
        e("v_mul_f32 %s, %s, %s" % (v(tmp), v(s1), v(s1)))
        e("v_mov_b32 %s, 0x%x" % (v(rstd), fbits(1.0 / 512)))
        e("v_fma_f32 %s, %s, %s, -%s" % (v(s2), v(s2), v(rstd), v(tmp)))
        e("v_max_f32 %s, 0, %s" % (v(s2), v(s2)))
        e("v_add_f32 %s, 0x%x, %s" % (v(s2), fbits(1e-5), v(s2)))
        e("v_rsq_f32 %s, %s" % (v(rstd), v(s2)))
        e("s_nop 0")
        e("v_mul_f32 %s, %s, %s" % (v(mr), v(s1), v(rstd)))

    def frag_ops(self, kind, frag, tmps, accs, mask):
        out = []
        if self.g.opts.get("noops"):
            return out
        for i in range(4):
            t = tmps[i % 2]
            out.append("v_lshlrev_b32 %s, 16, %s" % (v(t), v(frag + i)))
            out.append("v_and_b32 %s, %s, %s" % (v(t + 1), v(mask), v(frag + i)))
            if not self.g.opts.get("pk"):
                out.append("v_add_f32 %s, %s, %s" % (v(accs[0]), v(accs[0]), v(t)))
                out.append("v_add_f32 %s, %s, %s" % (v(accs[0] + 1), v(accs[0] + 1), v(t + 1)))
                if kind == "st":
                    out.append("v_fmac_f32 %s, %s, %s" % (v(accs[1]), v(t), v(t)))
                    out.append("v_fmac_f32 %s, %s, %s" % (v(accs[1] + 1), v(t + 1), v(t + 1)))
                continue
            out.append("v_pk_add_f32 %s, %s, %s" % (v(accs[0], 2), v(accs[0], 2), v(t, 2)))
            if kind == "st":
                out.append("v_pk_fma_f32 %s, %s, %s, %s" % (v(accs[1], 2), v(t, 2), v(t, 2), v(accs[1], 2)))
        return out

    def make_selector(self, sel, tmp):
        e = self.e
        e("v_and_b32 %s, 15, %s" % (v(sel), v(self.vL)))
        e("v_bfe_u32 %s, %s, 4, 1" % (v(tmp), v(self.vL)))
        e("v_cmp_eq_u32 vcc, %s, %s" % (v(sel), v(tmp)))
        e("v_mov_b32 %s, 0x%x" % (v(tmp), ONES))
        e("s_nop 0")
        e("v_cndmask_b32 %s, 0, %s, vcc" % (v(sel), v(tmp)))
        for i in range(1, 4):
            e("v_mov_b32 %s, %s" % (v(sel + i), v(sel)))

    def colsum_mfma(self, acc, frag, sel, first):
        return "v_mfma_f32_16x16x32_bf16 %s, %s, %s, %s" % (v(acc, 4), v(frag, 4), v(sel, 4), "0" if first else v(acc, 4))

    def colsum_addr(self, adr, tmp):
        e = self.e
        e("v_and_b32 %s, 1, %s" % (v(adr), v(self.vL)))
        e("v_lshlrev_b32 %s, 6, %s" % (v(adr), v(adr)))
        e("v_lshrrev_b32 %s, 4, %s" % (v(tmp), v(self.vL)))
        e("v_lshl_add_u32 %s, %s, 4, %s" % (v(adr), v(tmp), v(adr)))

    def colsum_exec(self):
        self.e("s_mov_b32 exec_lo, 0x00030003")
        self.e("s_mov_b32 exec_hi, 0x00030003")

    def stores_fast_slow(self, fn):
        e = self.e
        slow = self.lab("st_slow")
        done = self.lab("st_done")
        e("s_cmp_eq_u32 %s, 0" % s(SFAST))
        e("s_cbranch_scc1 %s" % slow)
        fn("")
        e("s_branch %s" % done)
        e.label(slow)
        fn("sc1")
        e.label(done)

    def flag_off(self, sync, grp_sgpr, mem_sgpr, dst):
        e = self.e
        e("s_lshl_b32 %s, %s, 11" % (s(dst), s(grp_sgpr)))
        if mem_sgpr is not None:
            e("s_lshl_b32 %s, %s, 7" % (s(ST[8]), s(mem_sgpr)))
            e("s_add_u32 %s, %s, %s" % (s(dst), s(dst), s(ST[8])))
        e("s_add_u32 %s, %s, %d" % (s(dst), s(dst), WS_FL + sync * 32768))

    def sync_prep(self, idx, post_grp, post_mem, poll_grp):
        e, va = self.e, self.va
        self.sy = (va.alloc("sy_a", 2, 2), va.alloc("sy_b", 2, 2), va.alloc("sy_o"))
        a, b, o = self.sy
        self.flag_off(idx, post_grp, post_mem, SA[24])
        self.flag_off(idx, poll_grp, None, SA[25])
        e("v_mov_b32 %s, %s" % (v(a), s(SN)))
        e("v_mov_b32 %s, %s" % (v(a + 1), s(SN + 1)))
        e("v_lshlrev_b32 %s, 3, %s" % (v(o), v(self.vL16)))

    def sync(self, idx, fast_ok, after_poll=None):
        e, va = self.e, self.va
        skip = self.lab("sync_skip")
        poll = self.lab("poll")
        done = self.lab("poll_done")
        a, b, o = self.sy
        e("s_cmp_lg_u32 %s, %d" % (s(SW), CTRL_WAVE))
        e("s_cbranch_scc1 %s" % skip)
        self.fine(20 + idx)
        e("s_mov_b64 exec, 1")
        if fast_ok:
            slow = self.lab("flag_slow")
            posted = self.lab("flag_posted")
            e("s_cmp_eq_u32 %s, 0" % s(SFAST))
            e("s_cbranch_scc1 %s" % slow)
            e("buffer_store_dwordx2 %s, off, %s, %s" % (v(a, 2), s(S_WS, 4), s(SA[24])))
            e("s_branch %s" % posted)
            e.label(slow)
            e("buffer_store_dwordx2 %s, off, %s, %s sc1" % (v(a, 2), s(S_WS, 4), s(SA[24])))
            e.label(posted)
        else:
            e("buffer_store_dwordx2 %s, off, %s, %s sc1" % (v(a, 2), s(S_WS, 4), s(SA[24])))
        e("s_mov_b64 exec, -1")
        self.fine(20 + idx)
        e("s_mov_b64 exec, 0xffff")
        e("s_mov_b32 %s, 0" % s(ST[2]))
        e.label(poll)
        e("buffer_load_dwordx2 %s, %s, %s, %s offen sc1" % (v(b, 2), v(o), s(S_WS, 4), s(SA[25])))
        e("s_add_u32 %s, %s, 1" % (s(ST[2]), s(ST[2])))
        e("s_cmp_ge_u32 %s, %d" % (s(ST[2]), POLL_LIMIT))
        e("s_waitcnt vmcnt(0)")
        e("s_cbranch_scc1 %s" % done)
        e("v_cmp_ne_u32 vcc, %s, %s" % (s(SN), v(b)))
        e("v_cmp_ne_u32 %s, %s, %s" % (s(SSAVE, 2), s(SN + 1), v(b + 1)))
        e("s_nop 1")
        e("s_or_b64 vcc, vcc, %s" % s(SSAVE, 2))
        e("s_cbranch_vccnz %s" % poll)
        e.label(done)
        if after_poll:
            after_poll(a)
        e("s_mov_b64 exec, -1")
        self.fine(20 + idx)
        if self.g.ts and self.g.opts.get("fine") == 20 + idx:
            e("v_writelane_b32 %s, %s, 40" % (v(self.vTS), s(ST[2])))
        e.label(skip)
        va.free("sy_a", "sy_b", "sy_o")


class Gen:
    def __init__(self, stop=None, ts=False, opts=None):
        self.stop = stop
        self.ts = ts
        self.opts = opts or {}
        self.nlab = 0
        self.pre = Emit()
        self.c = Prog(self, "c")
        self.l = Prog(self, "l")

    def prologue(self):
        e = self.pre
        e("s_cmp_ge_u32 s2, 256")
        e("s_cbranch_scc1 L_end")
        e("s_load_dwordx2 %s, s[0:1], 0" % s(S_X, 2))
        e("s_load_dwordx2 %s, s[0:1], 8" % s(S_WQKV, 2))
        e("s_load_dwordx2 %s, s[0:1], 72" % s(S_WS, 2))
        e("s_load_dwordx2 %s, s[0:1], 16" % s(S_WO, 2))
        e("s_load_dwordx4 %s, s[0:1], 32" % s(S_PG, 4))
        e("s_load_dwordx2 %s, s[0:1], 48" % s(S_WD, 2))
        e("s_load_dwordx2 %s, s[0:1], 56" % s(S_OUT, 2))
        for p in (self.c, self.l):
            p.va.alloc("v0", 1)
            p.vL = p.va.alloc("L")
            p.vL16 = p.va.alloc("L16")
            p.vTS = p.va.alloc("TS")
        p = self.c
        t = 4
        e("v_lshrrev_b32 %s, 6, v0" % v(t))
        e("v_and_b32 %s, 63, v0" % v(p.vL))
        e("v_lshlrev_b32 %s, 4, %s" % (v(p.vL16), v(p.vL)))
        e("v_readfirstlane_b32 %s, %s" % (s(SW), v(t)))
        if self.ts:
            e("v_mov_b32 %s, 0" % v(p.vTS))
        e("s_and_b32 %s, s2, 7" % s(SG))
        e("s_lshl_b32 %s, %s, 1" % (s(SG), s(SG)))
        e("s_lshr_b32 %s, s2, 7" % s(SM))
        e("s_add_u32 %s, %s, %s" % (s(SG), s(SG), s(SM)))
        e("s_lshr_b32 %s, s2, 3" % s(SM))
        e("s_and_b32 %s, %s, 15" % (s(SM), s(SM)))
        e("s_mov_b32 %s, 0" % s(SREDO))
        e("s_mov_b32 %s, 0" % s(SFAST))
        for dst, nbytes in ((S_X, 2048 * 512 * 2), (S_WQKV, 512 * 1536 * 2), (S_WS, WS_SIZE if self.ts else WS_END),
                            (S_WO, 512 * 512 * 2), (S_WD, 1376 * 512 * 2), (S_OUT, 2048 * 512 * 2)):
            e("s_mov_b32 %s, %d" % (s(dst + 2), nbytes))
            e("s_mov_b32 %s, 0x20000" % s(dst + 3))
        if self.opts.get("codepf", 1) == 2:
            self.code_prefetch(e, 4, 164)
        if self.opts.get("ldfirst", 1):
            e("s_cmp_lt_u32 %s, 8" % s(SW))
            e("s_cbranch_scc1 L_compute")
        else:
            e("s_cmp_ge_u32 %s, 8" % s(SW))
            e("s_cbranch_scc1 L_loader")

    def code_prefetch(self, e, t1, t2):
        sk = "L_codepf"
        e("s_cmp_lg_u32 %s, 0" % s(SW))
        e("s_cbranch_scc1 %s" % sk)
        e("s_getpc_b64 %s" % s(ST[2], 2))
        e.label("L_pc_here")
        e("s_sub_u32 %s, %s, L_pc_here-%s" % (s(ST[2]), s(ST[2]), KNAME))
        e("s_subb_u32 %s, %s, 0" % (s(ST[3]), s(ST[3])))
        e("s_lshr_b32 %s, s2, 3" % s(ST[0]))
        e("s_lshl_b32 %s, %s, 11" % (s(ST[0]), s(ST[0])))
        e("v_lshlrev_b32 %s, 7, %s" % (v(t1), v(self.c.vL)))
        e("v_add_u32 %s, %s, %s" % (v(t1), s(ST[0]), v(t1)))
        e("s_mov_b32 %s, L_end-%s" % (s(ST[1]), KNAME))
        e("v_cmp_gt_u32 vcc, %s, %s" % (s(ST[1]), v(t1)))
        e("s_nop 0")
        e("s_and_b32 vcc_lo, vcc_lo, 0xffff")
        e("s_mov_b32 vcc_hi, 0")
        e("s_and_saveexec_b64 %s, vcc" % s(SSAVE, 2))
        e("s_cbranch_execz %s" % (sk + "_r"))
        e("global_load_dword %s, %s, %s" % (v(t2), v(t1), s(ST[2], 2)))
        e.label(sk + "_r")
        e("s_mov_b64 exec, %s" % s(SSAVE, 2))
        e.label(sk)

    def p1_loader(self):
        p = self.l
        e, va, vm = p.e, p.va, p.vm
        L = p.vL
        sLW = SA[20]
        self.sLW = sLW
        e("s_setprio 3")
        e("s_sub_u32 %s, %s, 8" % (s(sLW), s(SW)))
        t0, t1, t2 = va.alloc("p1_t0"), va.alloc("p1_t1"), va.alloc("p1_t2")
        xd = [va.alloc("p1_xd0"), va.alloc("p1_xd1")]
        e("v_lshrrev_b32 %s, 3, %s" % (v(t0), v(L)))
        e("v_lshlrev_b32 %s, 10, %s" % (v(t0), v(t0)))
        e("v_lshrrev_b32 %s, 4, %s" % (v(t1), v(L)))
        e("v_and_b32 %s, 7, %s" % (v(t2), v(L)))
        e("v_xor_b32 %s, %s, %s" % (v(xd[0]), v(t1), v(t2)))
        e("v_xor_b32 %s, 4, %s" % (v(xd[1]), v(xd[0])))
        e("v_lshl_add_u32 %s, %s, 4, %s" % (v(xd[0]), v(xd[0]), v(t0)))
        e("v_lshl_add_u32 %s, %s, 4, %s" % (v(xd[1]), v(xd[1]), v(t0)))
        wd = va.alloc("p1_wd")
        e("v_lshrrev_b32 %s, 2, %s" % (v(t0), v(L)))
        e("v_mul_u32_u24 %s, 3072, %s" % (v(t0), v(t0)))
        e("v_and_b32 %s, 3, %s" % (v(t1), v(L)))
        e("v_lshl_add_u32 %s, %s, 4, %s" % (v(wd), v(t1), v(t0)))
        sXg, sXl, sWg, sWl, sRot = SA[0], SA[1], SA[2], SA[3], SA[7]
        e("s_lshl_b32 %s, %s, 17" % (s(sXg), s(SM)))
        e("s_lshl_b32 %s, %s, 15" % (s(ST[0]), s(sLW)))
        e("s_add_u32 %s, %s, %s" % (s(sXg), s(sXg), s(ST[0])))
        e("s_lshl_b32 %s, %s, 12" % (s(sXl), s(sLW)))
        e("s_lshl_b32 %s, %s, 6" % (s(sWg), s(SG)))
        e("s_mul_i32 %s, %s, 49152" % (s(ST[0]), s(sLW)))
        e("s_add_u32 %s, %s, %s" % (s(sWg), s(sWg), s(ST[0])))
        e("s_lshl_b32 %s, %s, 10" % (s(sWl), s(sLW)))
        e("s_add_u32 %s, %s, 16384" % (s(sWl), s(sWl)))
        e("s_lshr_b32 %s, %s, 1" % (s(sRot), s(SG)))
        e("s_and_b32 %s, %s, 1" % (s(ST[0]), s(SG)))
        e("s_lshl_b32 %s, %s, 2" % (s(ST[0]), s(ST[0])))
        e("s_add_u32 %s, %s, %s" % (s(sRot), s(sRot), s(ST[0])))
        e("s_add_u32 %s, %s, %s" % (s(sRot), s(sRot), s(SM)))
        if self.opts.get("norot"):
            e("s_mov_b32 %s, 0" % s(sRot))
        zz = va.alloc("p1_z", 2, 2)
        xt = va.alloc("p1_xt", 2, 2)
        xr2 = va.alloc("p1_xr2", 2, 2)
        xo = va.alloc("p1_xo")
        p.fine(1)
        e("s_waitcnt lgkmcnt(0)")
        p.fine(1)

        def issue(c):
            slot = (c % 5) * P1_SLOT
            e("s_add_u32 %s, %s, %d" % (s(ST[0]), s(sRot), c))
            e("s_and_b32 %s, %s, 7" % (s(ST[0]), s(ST[0])))
            e("s_lshl_b32 %s, %s, 7" % (s(ST[1]), s(ST[0])))
            e("s_add_u32 %s, %s, %s" % (s(ST[1]), s(ST[1]), s(sXg)))
            e("s_mul_i32 %s, %s, 196608" % (s(ST[2]), s(ST[0])))
            e("s_add_u32 %s, %s, %s" % (s(ST[2]), s(ST[2]), s(sWg)))
            for i in range(4):
                p.dma(S_X, xd[i & 1], (ST[1], i * 8192), (sXl, slot + i * 1024), ("c", c))
            for nt in range(3):
                p.dma(S_WQKV, wd, (ST[2], nt * 1024), (sWl, slot + nt * 4096), ("c", c))

        if self.opts.get("pretouch", 0):
            e("v_lshrrev_b32 %s, 3, %s" % (v(t0), v(L)))
            e("v_lshlrev_b32 %s, 10, %s" % (v(t0), v(t0)))
            e("v_and_b32 %s, 7, %s" % (v(t1), v(L)))
            e("v_lshl_add_u32 %s, %s, 7, %s" % (v(t0), v(t1), v(t0)))
            e("s_lshl_b32 %s, %s, 2" % (s(ST[0]), s(SG)))
            e("s_add_u32 %s, %s, %s" % (s(ST[0]), s(ST[0]), s(sLW)))
            e("s_lshl_b32 %s, %s, 11" % (s(ST[0]), s(ST[0])))
            e("s_lshl_b32 %s, %s, 17" % (s(ST[1]), s(SM)))
            e("s_add_u32 %s, %s, %s" % (s(ST[0]), s(ST[0]), s(ST[1])))
            e("s_mov_b64 exec, 0xffff")
            e("buffer_load_dword %s, %s, %s, %s offen" % (v(t2), v(t0), s(S_X, 4), s(ST[0])))
            vm.issue("pt")
            e("s_mov_b64 exec, -1")
            e("v_mul_u32_u24 %s, 86, %s" % (v(t0), v(L)))
            e("v_lshrrev_b32 %s, 8, %s" % (v(t0), v(t0)))
            e("v_mul_u32_u24 %s, 3, %s" % (v(t1), v(t0)))
            e("v_sub_u32 %s, %s, %s" % (v(t1), v(L), v(t1)))
            e("v_mul_u32_u24 %s, 3072, %s" % (v(t0), v(t0)))
            e("v_lshl_add_u32 %s, %s, 10, %s" % (v(t0), v(t1), v(t0)))
            e("s_and_b32 %s, %s, 1" % (s(ST[0]), s(SG)))
            e("s_lshl_b32 %s, %s, 4" % (s(ST[0]), s(ST[0])))
            e("s_add_u32 %s, %s, %s" % (s(ST[0]), s(ST[0]), s(SM)))
            e("s_lshl_b32 %s, %s, 2" % (s(ST[0]), s(ST[0])))
            e("s_add_u32 %s, %s, %s" % (s(ST[0]), s(ST[0]), s(sLW)))
            e("s_mul_i32 %s, %s, %d" % (s(ST[0]), s(ST[0]), 4 * 3072))
            e("s_lshr_b32 %s, %s, 1" % (s(ST[1]), s(SG)))
            e("s_lshl_b32 %s, %s, 7" % (s(ST[1]), s(ST[1])))
            e("s_add_u32 %s, %s, %s" % (s(ST[0]), s(ST[0]), s(ST[1])))
            e("s_mov_b64 exec, 0xfff")
            e("buffer_load_dword %s, %s, %s, %s offen" % (v(xo), v(t0), s(S_WQKV, 4), s(ST[0])))
            vm.issue("pt")
            e("s_mov_b64 exec, -1")
        issue(0)
        e("buffer_load_dwordx2 %s, off, %s, 0 sc1" % (v(zz, 2), s(S_WS, 4)))
        vm.issue("z")
        issue(1)

        def kv_touch():
            e("v_lshlrev_b32 %s, 7, %s" % (v(t0), v(L)))
            e("s_lshl_b32 %s, %s, 1" % (s(ST[0]), s(SG)))
            e("s_lshr_b32 %s, %s, 1" % (s(ST[1]), s(sLW)))
            e("s_add_u32 %s, %s, %s" % (s(ST[0]), s(ST[0]), s(ST[1])))
            e("s_lshl_b32 %s, %s, 16" % (s(ST[0]), s(ST[0])))
            e("s_lshl_b32 %s, %s, 12" % (s(ST[1]), s(SM)))
            e("s_add_u32 %s, %s, %s" % (s(ST[0]), s(ST[0]), s(ST[1])))
            e("s_and_b32 %s, %s, 1" % (s(ST[1]), s(sLW)))
            e("s_mul_i32 %s, %s, %d" % (s(ST[1]), s(ST[1]), WS_V - WS_K))
            e("s_add_u32 %s, %s, %s" % (s(ST[0]), s(ST[0]), s(ST[1])))
            e("s_add_u32 %s, %s, %d" % (s(ST[0]), s(ST[0]), WS_K))
            e("s_mov_b32 exec_hi, 0")
            e("buffer_load_dword %s, %s, %s, %s offen" % (v(t2), v(t0), s(S_WS, 4), s(ST[0])))
            e("s_mov_b32 exec_hi, -1")
            vm.issue("kvt")

        sched = {0: [2, 3], 1: [4], 2: [5], 3: [6], 4: [7]} if self.opts.get("p1lead", 2) == 3 else {c: [c + 2] for c in range(6)}
        for dst, ptr in ((S_WG, S_PG), (S_WU, S_PU)):
            e("s_mov_b32 %s, %s" % (s(dst), s(ptr)))
            e("s_mov_b32 %s, %s" % (s(dst + 1), s(ptr + 1)))
            e("s_mov_b32 %s, %d" % (s(dst + 2), 512 * 1376 * 2))
            e("s_mov_b32 %s, 0x20000" % s(dst + 3))
        xcc_at = max(c for c in sched if 7 in sched[c])
        for c in range(8):
            p.fine(1)
            vm.wait(("c", c))
            p.fine(1)
            p.barrier("p1c%d" % c)
            if c == 1:
                vm.wait("z")
                sk = p.lab("xcc_post")
                e("s_cmp_lg_u32 %s, %d" % (s(SW), CTRL_WAVE))
                e("s_cbranch_scc1 %s" % sk)
                e("v_readfirstlane_b32 %s, %s" % (s(SN), v(zz)))
                e("v_readfirstlane_b32 %s, %s" % (s(SN + 1), v(zz + 1)))
                e("s_getreg_b32 %s, hwreg(HW_REG_XCC_ID, 0, 4)" % s(ST[0]))
                e("s_add_u32 %s, %s, 1" % (s(SN), s(SN)))
                e("s_addc_u32 %s, %s, 0" % (s(SN + 1), s(SN + 1)))
                e("s_lshl_b32 %s, %s, 28" % (s(ST[0]), s(ST[0])))
                e("s_add_u32 %s, %s, %s" % (s(SA[4]), s(SN + 1), s(ST[0])))
                e("s_lshl_b32 %s, %s, 11" % (s(ST[1]), s(SG)))
                e("s_add_u32 %s, %s, %d" % (s(SA[5]), s(ST[1]), WS_XT))
                e("s_lshl_b32 %s, %s, 7" % (s(ST[1]), s(SM)))
                e("s_add_u32 %s, %s, %s" % (s(ST[1]), s(ST[1]), s(SA[5])))
                e("v_mov_b32 %s, %s" % (v(xt), s(SN)))
                e("v_mov_b32 %s, %s" % (v(xt + 1), s(SA[4])))
                e("s_mov_b64 exec, 1")
                e("buffer_store_dwordx2 %s, off, %s, %s sc1" % (v(xt, 2), s(S_WS, 4), s(ST[1])))
                e("s_mov_b64 exec, -1")
                e.label(sk)
            if c == xcc_at:
                e("s_lshl_b32 %s, %s, 11" % (s(ST[1]), s(SG)))
                e("s_add_u32 %s, %s, %d" % (s(ST[1]), s(ST[1]), WS_XT))
                e("v_and_b32 %s, 15, %s" % (v(xo), v(L)))
                e("v_lshlrev_b32 %s, 7, %s" % (v(xo), v(xo)))
                e("buffer_load_dwordx2 %s, %s, %s, %s offen sc1" % (v(xr2, 2), v(xo), s(S_WS, 4), s(ST[1])))
                vm.issue("xcc")
            if c == 2 and not self.opts.get("noftouch"):
                e("v_lshrrev_b32 %s, 0, %s" % (v(t0), v(L)))
                e("v_min_u32 %s, 1, %s" % (v(t1), v(L)))
                e("v_add_u32 %s, %s, %s" % (v(t0), v(t0), v(t1)))
                e("v_lshlrev_b32 %s, 15, %s" % (v(t0), v(t0)))
                e("s_lshl_b32 %s, %s, 11" % (s(ST[0]), s(SG)))
                e("s_lshl_b32 %s, %s, 7" % (s(ST[1]), s(SM)))
                e("s_add_u32 %s, %s, %s" % (s(ST[0]), s(ST[0]), s(ST[1])))
                e("s_add_u32 %s, %s, %d" % (s(ST[0]), s(ST[0]), WS_FL))
                e("s_mov_b64 exec, 7")
                e("buffer_load_dword %s, %s, %s, %s offen" % (v(t2), v(t0), s(S_WS, 4), s(ST[0])))
                e("s_mov_b64 exec, -1")
                vm.issue("ft")
            for cc in sched.get(c, []):
                issue(cc)
                if cc == 7 and not self.opts.get("notouch"):
                    kv_touch()
        sk = p.lab("fast_decide")
        e("s_cmp_lg_u32 %s, %d" % (s(SW), CTRL_WAVE))
        e("s_cbranch_scc1 %s" % sk)
        e("v_cmp_ne_u32 vcc, %s, %s" % (s(SN), v(xr2)))
        e("v_cmp_ne_u32 %s, %s, %s" % (s(SSAVE, 2), s(SA[4]), v(xr2 + 1)))
        e("s_nop 1")
        e("s_or_b64 vcc, vcc, %s" % s(SSAVE, 2))
        e("s_cmp_eq_u64 vcc, 0")
        e("s_cselect_b32 %s, 1, 0" % s(SFAST))
        if self.opts.get("force_slow"):
            e("s_mov_b32 %s, 0" % s(SFAST))
        e("v_mov_b32 %s, %s" % (v(xt), s(SFAST)))
        e("v_mov_b32 %s, 0" % v(xt + 1))
        e("v_mov_b32 %s, %d" % (v(t0), MISC + M_CTRL))
        e("ds_write_b64 %s, %s" % (v(t0), v(xt, 2)))
        e("s_waitcnt lgkmcnt(0)")
        e.label(sk)
        p.barrier("E1")
        self.loader_patterns()
        p.sync_prep(0, SG, SM, SG)
        p.barrier("E2")
        va.free_prefix("p1_")

    def loader_patterns(self):
        p = self.l
        e, va = p.e, p.va
        L, sLW = p.vL, self.sLW
        a, b = va.alloc("lp_a"), va.alloc("lp_b")
        p.vWF = va.alloc("WF")
        e("v_lshrrev_b32 %s, 3, %s" % (v(a), v(L)))
        e("v_lshlrev_b32 %s, 10, %s" % (v(a), v(a)))
        e("v_bfe_u32 %s, %s, 4, 1" % (v(b), v(L)))
        e("v_lshlrev_b32 %s, 2, %s" % (v(b), v(b)))
        e("v_and_b32 %s, 7, %s" % (v(p.vWF), v(L)))
        e("v_xor_b32 %s, %s, %s" % (v(p.vWF), v(p.vWF), v(b)))
        e("v_lshl_add_u32 %s, %s, 4, %s" % (v(p.vWF), v(p.vWF), v(a)))
        self.sGUg, self.sGUl, self.sFs = SA[8], SA[9], SA[10]
        e("s_mul_i32 %s, %s, 6" % (s(self.sFs), s(SM)))
        e("s_lshl_b32 %s, %s, 2" % (s(ST[0]), s(SM)))
        e("s_add_u32 %s, %s, 22" % (s(ST[0]), s(ST[0])))
        e("s_min_u32 %s, %s, %s" % (s(self.sFs), s(self.sFs), s(ST[0])))
        e("s_mul_i32 %s, %s, %d" % (s(self.sGUg), s(sLW), 16 * 2752))
        e("s_lshl_b32 %s, %s, 5" % (s(ST[1]), s(self.sFs)))
        e("s_add_u32 %s, %s, %s" % (s(self.sGUg), s(self.sGUg), s(ST[1])))
        e("s_mul_i32 %s, %s, 3072" % (s(self.sGUl), s(sLW)))
        p.gud = [va.alloc("gud%d" % q) for q in range(3)]
        for q in range(3):
            e("v_add_u32 %s, %d, %s" % (v(a), 64 * q, v(L)))
            e("v_mul_u32_u24 %s, 171, %s" % (v(b), v(a)))
            e("v_lshrrev_b32 %s, 11, %s" % (v(b), v(b)))
            e("v_mul_u32_u24 %s, 12, %s" % (v(p.gud[q]), v(b)))
            e("v_sub_u32 %s, %s, %s" % (v(a), v(a), v(p.gud[q])))
            e("v_mul_u32_u24 %s, 2752, %s" % (v(b), v(b)))
            e("v_lshl_add_u32 %s, %s, 4, %s" % (v(p.gud[q]), v(a), v(b)))
        p.pfo, p.pfd, p.pfr = va.alloc("pfo"), va.alloc("pfd"), va.alloc("pfr")
        e("v_lshlrev_b32 %s, 10, %s" % (v(p.pfr), v(L)))
        e("v_lshrrev_b32 %s, 1, %s" % (v(p.pfo), v(L)))
        e("v_mul_u32_u24 %s, 2752, %s" % (v(p.pfo), v(p.pfo)))
        e("v_and_b32 %s, 1, %s" % (v(a), v(L)))
        e("v_lshl_add_u32 %s, %s, 7, %s" % (v(p.pfo), v(a), v(p.pfo)))
        e("s_and_b32 %s, %s, 1" % (s(ST[1]), s(SG)))
        e("s_cmp_eq_u32 %s, 1" % s(ST[1]))
        e("s_cselect_b32 %s, %s, %s" % (s(S_PF), s(S_PU), s(S_PG)))
        e("s_cselect_b32 %s, %s, %s" % (s(S_PF + 1), s(S_PU + 1), s(S_PG + 1)))
        e("s_mov_b32 %s, %d" % (s(S_PF + 2), 512 * 1376 * 2))
        e("s_mov_b32 %s, 0x20000" % s(S_PF + 3))
        self.sKVg, self.sKVl = SA[0], SA[1]
        e("s_lshr_b32 %s, %s, 1" % (s(ST[0]), s(sLW)))
        e("s_lshl_b32 %s, %s, 1" % (s(ST[1]), s(SG)))
        e("s_add_u32 %s, %s, %s" % (s(ST[1]), s(ST[1]), s(ST[0])))
        e("s_lshl_b32 %s, %s, 16" % (s(self.sKVg), s(ST[1])))
        e("s_and_b32 %s, %s, 1" % (s(ST[1]), s(sLW)))
        e("s_mul_i32 %s, %s, %d" % (s(ST[2]), s(ST[1]), WS_V - WS_K))
        e("s_add_u32 %s, %s, %s" % (s(self.sKVg), s(self.sKVg), s(ST[2])))
        e("s_add_u32 %s, %s, %d" % (s(self.sKVg), s(self.sKVg), WS_K))
        e("s_lshl_b32 %s, %s, 12" % (s(self.sKVl), s(sLW)))
        self.sWOg, self.sWOl, self.sWOs, self.sRotO = SA[2], SA[3], SA[15], SA[19]
        e("s_and_b32 %s, %s, 7" % (s(ST[2]), s(SM)))
        e("s_lshl_b32 %s, %s, 1" % (s(self.sRotO), s(ST[2])))
        if self.opts.get("norot"):
            e("s_mov_b32 %s, 0" % s(self.sRotO))
        e("s_lshl_b32 %s, %s, 7" % (s(self.sWOg), s(ST[2])))
        e("s_lshl_b32 %s, %s, 18" % (s(ST[2]), s(ST[0])))
        e("s_add_u32 %s, %s, %s" % (s(self.sWOg), s(self.sWOg), s(ST[2])))
        e("s_lshl_b32 %s, %s, 3" % (s(self.sWOs), s(ST[1])))
        e("s_add_u32 %s, %s, %s" % (s(self.sWOs), s(self.sWOs), s(self.sRotO)))
        e("s_lshl_b32 %s, %s, 14" % (s(self.sWOl), s(sLW)))
        e("s_add_u32 %s, %s, %d" % (s(self.sWOl), s(self.sWOl), WO_LDS))
        self.sDg, self.sDl = SA[16], SA[17]
        e("s_mul_i32 %s, %s, 43" % (s(self.sDg), s(ST[0])))
        e("s_lshl_b32 %s, %s, 1" % (s(ST[2]), s(ST[1])))
        e("s_add_u32 %s, %s, %s" % (s(self.sDg), s(self.sDg), s(ST[2])))
        e("s_lshl_b32 %s, %s, 14" % (s(self.sDg), s(self.sDg)))
        e("s_and_b32 %s, %s, 7" % (s(ST[2]), s(SM)))
        e("s_lshl_b32 %s, %s, 7" % (s(ST[2]), s(ST[2])))
        e("s_add_u32 %s, %s, %s" % (s(self.sDg), s(self.sDg), s(ST[2])))
        e("s_lshl_b32 %s, %s, 12" % (s(self.sDl), s(sLW)))
        va.free("lp_a", "lp_b")

    def early_writeback(self, bit):
        if not (self.opts.get("wb", 0) & bit):
            return
        p = self.l
        e = p.e
        sk = p.lab("wb")
        e("s_cmp_lg_u32 %s, %d" % (s(SW), CTRL_WAVE))
        e("s_cbranch_scc1 %s" % sk)
        e("s_cmp_ge_u32 s2, 8")
        e("s_cbranch_scc1 %s" % sk)
        e("buffer_wbl2 sc1")
        e.label(sk)

    def gu_w_half(self, c, which):
        p = self.l
        for q in range(3):
            p.dma(S_WU if which else S_WG, p.gud[q], (self.sGUg, c * 64 * 2752),
                  (self.sGUl, GU_WSLOT[c % 4] + which * GU_UP + q * 1024), ("gw", c))

    def gu_w_issue(self, c):
        self.gu_w_half(c, 0)
        self.gu_w_half(c, 1)

    def dn_pf_issue(self, k):
        p = self.l
        e = p.e
        e("s_and_b32 %s, %s, 1" % (s(ST[0]), s(SG)))
        e("s_lshl_b32 %s, %s, 1" % (s(ST[0]), s(ST[0])))
        e("s_lshr_b32 %s, %s, 3" % (s(ST[1]), s(SM)))
        e("s_add_u32 %s, %s, %s" % (s(ST[0]), s(ST[0]), s(ST[1])))
        e("s_lshl_b32 %s, %s, 2" % (s(ST[0]), s(ST[0])))
        e("s_add_u32 %s, %s, %s" % (s(ST[0]), s(ST[0]), s(self.sLW)))
        e("s_mul_i32 %s, %s, 86" % (s(ST[0]), s(ST[0])))
        e("s_add_u32 %s, %s, %d" % (s(ST[0]), s(ST[0]), 64 * k))
        e("s_lshl_b32 %s, %s, 10" % (s(ST[0]), s(ST[0])))
        e("s_and_b32 %s, %s, 7" % (s(ST[1]), s(SM)))
        e("s_lshl_b32 %s, %s, 7" % (s(ST[1]), s(ST[1])))
        e("s_add_u32 %s, %s, %s" % (s(ST[0]), s(ST[0]), s(ST[1])))
        if k == 1:
            e("s_mov_b64 exec, 0x3fffff")
        e("buffer_load_dword %s, %s, %s, %s offen" % (v(p.pfd), v(p.pfr), s(S_WD, 4), s(ST[0])))
        if k == 1:
            e("s_mov_b64 exec, -1")
        p.vm.issue("pf")

    def dn_pf_late(self, first=320, per=46):
        p = self.l
        e = p.e
        e("s_and_b32 %s, %s, 1" % (s(ST[0]), s(SG)))
        e("s_lshl_b32 %s, %s, 1" % (s(ST[0]), s(ST[0])))
        e("s_lshr_b32 %s, %s, 3" % (s(ST[1]), s(SM)))
        e("s_add_u32 %s, %s, %s" % (s(ST[0]), s(ST[0]), s(ST[1])))
        e("s_lshl_b32 %s, %s, 2" % (s(ST[0]), s(ST[0])))
        e("s_add_u32 %s, %s, %s" % (s(ST[0]), s(ST[0]), s(self.sLW)))
        e("s_lshr_b32 %s, %s, 3" % (s(ST[1]), s(ST[0])))
        e("s_mul_i32 %s, %s, 688" % (s(ST[1]), s(ST[1])))
        e("s_and_b32 %s, %s, 7" % (s(ST[0]), s(ST[0])))
        e("s_mul_i32 %s, %s, %d" % (s(ST[0]), s(ST[0]), per))
        e("s_add_u32 %s, %s, %s" % (s(ST[0]), s(ST[0]), s(ST[1])))
        e("s_add_u32 %s, %s, %d" % (s(ST[0]), s(ST[0]), first))
        e("s_lshl_b32 %s, %s, 10" % (s(ST[0]), s(ST[0])))
        e("s_and_b32 %s, %s, 7" % (s(ST[1]), s(SM)))
        e("s_lshl_b32 %s, %s, 7" % (s(ST[1]), s(ST[1])))
        e("s_add_u32 %s, %s, %s" % (s(ST[0]), s(ST[0]), s(ST[1])))
        e("s_mov_b32 exec_lo, -1")
        e("s_mov_b32 exec_hi, 0x%x" % ((1 << (per - 32)) - 1))
        e("buffer_load_dword %s, %s, %s, %s offen" % (v(p.pfd), v(p.pfr), s(S_WD, 4), s(ST[0])))
        e("s_mov_b64 exec, -1")
        p.vm.issue("pf")

    def dest_touch(self, part):
        p = self.l
        e, va = p.e, p.va
        a = va.alloc("dt_a")
        e("v_lshlrev_b32 %s, 3, %s" % (v(a), v(p.vL16)))
        if part == 0:
            e("s_lshl_b32 %s, %s, 2" % (s(ST[0]), s(SG)))
            e("s_add_u32 %s, %s, %s" % (s(ST[0]), s(ST[0]), s(self.sLW)))
            e("s_mul_i32 %s, %s, 86" % (s(ST[0]), s(ST[0])))
            e("s_add_u32 %s, %s, %s" % (s(ST[0]), s(ST[0]), s(self.sFs)))
            e("s_lshl_b32 %s, %s, 10" % (s(ST[0]), s(ST[0])))
            e("s_add_u32 %s, %s, %d" % (s(ST[0]), s(ST[0]), WS_A))
            e("s_mov_b32 exec_lo, -1")
            e("s_mov_b32 exec_hi, 0xffff")
        else:
            e("s_lshl_b32 %s, %s, 2" % (s(ST[0]), s(SG)))
            e("s_lshr_b32 %s, %s, 3" % (s(ST[1]), s(SM)))
            e("s_lshl_b32 %s, %s, 1" % (s(ST[1]), s(ST[1])))
            e("s_add_u32 %s, %s, %s" % (s(ST[0]), s(ST[0]), s(ST[1])))
            e("s_and_b32 %s, %s, 1" % (s(ST[1]), s(self.sLW)))
            e("s_add_u32 %s, %s, %s" % (s(ST[0]), s(ST[0]), s(ST[1])))
            e("s_and_b32 %s, %s, 7" % (s(ST[1]), s(SM)))
            e("s_lshl_b32 %s, %s, 15" % (s(ST[2]), s(ST[0])))
            e("s_lshl_b32 %s, %s, 12" % (s(ST[3]), s(ST[1])))
            e("s_add_u32 %s, %s, %s" % (s(ST[2]), s(ST[2]), s(ST[3])))
            e("s_add_u32 %s, %s, %d" % (s(ST[2]), s(ST[2]), WS_H))
            e("s_lshl_b32 %s, %s, 3" % (s(ST[0]), s(ST[0])))
            e("s_add_u32 %s, %s, %s" % (s(ST[0]), s(ST[0]), s(ST[1])))
            e("s_lshl_b32 %s, %s, 8" % (s(ST[0]), s(ST[0])))
            e("s_add_u32 %s, %s, %d" % (s(ST[0]), s(ST[0]), WS_ST))
            e("s_cmp_ge_u32 %s, 2" % s(self.sLW))
            e("s_cselect_b32 %s, %s, %s" % (s(ST[0]), s(ST[0]), s(ST[2])))
            e("s_cselect_b32 %s, 3, -1" % s(ST[1]))
            e("s_mov_b32 exec_lo, %s" % s(ST[1]))
            e("s_mov_b32 exec_hi, 0")
        e("buffer_load_dword %s, %s, %s, %s offen" % (v(p.pfd), v(a), s(S_WS, 4), s(ST[0])))
        p.vm.issue("pf")
        e("s_mov_b64 exec, -1")
        va.free("dt_a")

    def out_touch(self):
        p = self.l
        e = p.e
        e("s_lshl_b32 %s, %s, 1" % (s(ST[0]), s(SG)))
        e("s_lshr_b32 %s, %s, 3" % (s(ST[1]), s(SM)))
        e("s_add_u32 %s, %s, %s" % (s(ST[0]), s(ST[0]), s(ST[1])))
        e("s_lshl_b32 %s, %s, 2" % (s(ST[0]), s(ST[0])))
        e("s_add_u32 %s, %s, %s" % (s(ST[0]), s(ST[0]), s(self.sLW)))
        e("s_lshl_b32 %s, %s, 14" % (s(ST[0]), s(ST[0])))
        e("s_and_b32 %s, %s, 7" % (s(ST[1]), s(SM)))
        e("s_lshl_b32 %s, %s, 7" % (s(ST[1]), s(ST[1])))
        e("s_add_u32 %s, %s, %s" % (s(ST[0]), s(ST[0]), s(ST[1])))
        e("s_mov_b64 exec, 0xffff")
        e("buffer_load_dword %s, %s, %s, %s offen" % (v(p.pfd), v(p.pfr), s(S_OUT, 4), s(ST[0])))
        e("s_mov_b64 exec, -1")
        p.vm.issue("pf")

    def dn_mall_touch(self):
        p = self.l
        e = p.e
        e("s_lshl_b32 %s, %s, 1" % (s(ST[0]), s(SG)))
        e("s_lshr_b32 %s, %s, 3" % (s(ST[1]), s(SM)))
        e("s_add_u32 %s, %s, %s" % (s(ST[0]), s(ST[0]), s(ST[1])))
        e("s_mul_i32 %s, %s, 43" % (s(ST[0]), s(ST[0])))
        e("s_mul_i32 %s, %s, 11" % (s(ST[1]), s(self.sLW)))
        e("s_add_u32 %s, %s, %s" % (s(ST[0]), s(ST[0]), s(ST[1])))
        e("s_lshl_b32 %s, %s, 10" % (s(ST[0]), s(ST[0])))
        e("s_and_b32 %s, %s, 7" % (s(ST[1]), s(SM)))
        e("s_lshl_b32 %s, %s, 7" % (s(ST[1]), s(ST[1])))
        e("s_add_u32 %s, %s, %s" % (s(ST[0]), s(ST[0]), s(ST[1])))
        e("s_mov_b64 exec, 0x7ff")
        e("buffer_load_dword %s, %s, %s, %s offen" % (v(p.pfd), v(p.pfr), s(S_WD, 4), s(ST[0])))
        e("s_mov_b64 exec, -1")
        p.vm.issue("pf")

    def dn_w_issue(self, c):
        p = self.l
        for q in range(4):
            p.dma(S_WD, p.vWF, (self.sDg, c * 65536 + q * 8192), (self.sDl, DN_WSLOT[c % DN_NW] + q * 1024), ("dw", c))

    def p1_compute(self):
        p = self.c
        e, va = p.e, p.va
        L = p.vL
        t0, t1, t2 = va.alloc("p1_t0"), va.alloc("p1_t1"), va.alloc("p1_t2")
        sR = SA[11]
        e("s_lshr_b32 %s, %s, 2" % (s(sR), s(SW)))
        e("s_lshl_b32 %s, %s, 1" % (s(sR), s(sR)))
        e("s_add_u32 %s, %s, %s" % (s(sR), s(sR), s(SW)))
        xr = [va.alloc("p1_xr%d" % k) for k in range(4)]
        tr = [va.alloc("p1_tr%d" % k) for k in range(4)]
        e("v_and_b32 %s, 31, %s" % (v(t0), v(L)))
        e("v_lshlrev_b32 %s, 7, %s" % (v(t0), v(t0)))
        e("v_bfe_u32 %s, %s, 1, 3" % (v(t1), v(L)))
        e("v_lshrrev_b32 %s, 5, %s" % (v(t2), v(L)))
        e("v_xor_b32 %s, %s, %s" % (v(t1), v(t1), v(t2)))
        e("v_lshl_add_u32 %s, %s, 4, %s" % (v(t0), v(t1), v(t0)))
        e("s_and_b32 %s, %s, 3" % (s(ST[0]), s(SW)))
        e("s_lshl_b32 %s, %s, 12" % (s(ST[0]), s(ST[0])))
        e("v_add_u32 %s, %s, %s" % (v(t0), s(ST[0]), v(t0)))
        e("v_lshlrev_b32 %s, 3, %s" % (v(t2), v(t2)))
        e("v_bfe_u32 %s, %s, 2, 2" % (v(t1), v(L)))
        e("v_add_u32 %s, %s, %s" % (v(t2), v(t2), v(t1)))
        e("v_lshlrev_b32 %s, 6, %s" % (v(t2), v(t2)))
        e("v_bfe_u32 %s, %s, 4, 1" % (v(t1), v(L)))
        e("v_lshl_add_u32 %s, %s, 5, %s" % (v(t2), v(t1), v(t2)))
        e("v_and_b32 %s, 3, %s" % (v(t1), v(L)))
        e("v_lshl_add_u32 %s, %s, 3, %s" % (v(t1), v(t1), v(t2)))
        for k in range(4):
            e("s_add_u32 %s, %s, %d" % (s(ST[0]), s(sR), k))
            e("s_and_b32 %s, %s, 3" % (s(ST[0]), s(ST[0])))
            e("s_lshl_b32 %s, %s, 5" % (s(ST[1]), s(ST[0])))
            e("s_lshl_b32 %s, %s, 10" % (s(ST[0]), s(ST[0])))
            e("v_xor_b32 %s, %s, %s" % (v(xr[k]), s(ST[1]), v(t0)))
            e("v_add_u32 %s, %s, %s" % (v(tr[k]), s(ST[0]), v(t1)))
        if self.opts.get("codepf", 1) == 1:
            self.code_prefetch(e, t1, t2)
        mask = va.alloc("p1_mask")
        sel = va.alloc("p1_sel", 4, 4)
        p.make_selector(sel, t1)
        tmps = [va.alloc("p1_tp0", 2, 2), va.alloc("p1_tp1", 2, 2)]
        s1, s2 = va.alloc("p1_s1", 2, 2), va.alloc("p1_s2", 2, 2)
        self.vQ = va.alloc("Q", 4, 4)
        e("v_mov_b32 %s, 0xffff0000" % v(mask))
        for r in (s1, s1 + 1, s2, s2 + 1):
            e("v_mov_b32 %s, 0" % v(r))
        e("s_mov_b32 %s, 0x0000ffff" % s(SHALF))
        e("s_mov_b32 %s, 0x0000ffff" % s(SHALF + 1))
        e("s_waitcnt lgkmcnt(0)")
        e("s_cmp_ge_u32 %s, 4" % s(SW))
        e("s_cbranch_scc1 L_p1_roleB")

        state = {"base": 0}

        def rebase(slot):
            want = (slot // 2) * 57344
            d = want - state["base"]
            if d:
                for r in xr + tr:
                    if d > 0:
                        e("v_add_u32 %s, %d, %s" % (v(r), d, v(r)))
                    else:
                        e("v_subrev_u32 %s, %d, %s" % (v(r), -d, v(r)))
                state["base"] = want

        def xread(dst, c, j):
            e("ds_read_b128 %s, %s offset:%d" % (v(dst, 4), v(xr[j]), ((c % 5) % 2) * P1_SLOT))

        def wread(dst, c, j, nt):
            off = ((c % 5) % 2) * P1_SLOT + 16384 + nt * 4096
            e("ds_read_b64_tr_b16 %s, %s offset:%d" % (v(dst, 2), v(tr[j]), off))
            e("ds_read_b64_tr_b16 %s, %s offset:%d" % (v(dst + 2, 2), v(tr[j]), off + 256))

        def loop(lg, reads, compute, bars, prio):
            S = 32
            mode = self.opts.get("p1mode", 1)
            state["base"] = 0
            if prio:
                e("s_setprio %d" % prio)
            e("s_barrier")
            bars.append("p1c0")
            reads(0)
            for st in range(S):
                nxt = st + 1
                if mode == 0:
                    if nxt < S:
                        if nxt % 4 == 0:
                            c = nxt // 4
                            lg.wait_all()
                            rebase(c % 5)
                            e("s_barrier")
                            bars.append("p1c%d" % c)
                        reads(nxt)
                        lg.wait(("r", st))
                    else:
                        lg.wait_all()
                    compute(st)
                else:
                    lg.wait_all()
                    if nxt < S and nxt % 4 == 0:
                        c = nxt // 4
                        rebase(c % 5)
                        e("s_barrier")
                        bars.append("p1c%d" % c)
                    compute(st, (lambda n=nxt: reads(n)) if nxt < S else None)
            if prio:
                e("s_setprio 0")

        def stat_addr(adr):
            e("v_and_b32 %s, 31, %s" % (v(adr), v(L)))
            e("s_and_b32 %s, %s, 3" % (s(ST[0]), s(SW)))
            e("s_lshl_b32 %s, %s, 7" % (s(ST[0]), s(ST[0])))
            e("s_add_u32 %s, %s, %d" % (s(ST[0]), s(ST[0]), P1M + P_STAT))
            e("v_lshlrev_b32 %s, 2, %s" % (v(adr), v(adr)))
            e("v_add_u32 %s, %s, %s" % (v(adr), s(ST[0]), v(adr)))

        lgA = p.lg.clone()
        barsA = []
        accQ = va.alloc("p1a_accQ", 16, 4)
        accK = va.alloc("p1a_accK", 16, 4)
        xf = [va.alloc("p1a_xf%d" % i, 4, 4) for i in range(2)]
        wq = [va.alloc("p1a_wq%d" % i, 4, 4) for i in range(2)]
        wk = [va.alloc("p1a_wk%d" % i, 4, 4) for i in range(2)]
        csq, csk = va.alloc("p1a_csq", 4, 4), va.alloc("p1a_csk", 4, 4)

        def readsA(st):
            c, j, b = st // 4, st % 4, st % 2
            xread(xf[b], c, j)
            wread(wq[b], c, j, 0)
            wread(wk[b], c, j, 1)
            for _ in range(5):
                lgA.issue(("r", st))

        def computeA(st, mid=None):
            b, j = st % 2, st % 4
            cq = "0" if st == 0 else v(accQ, 16)
            ck = "0" if st == 0 else v(accK, 16)
            ops = []
            h = 0
            e("v_mfma_f32_32x32x16_bf16 %s, %s, %s, %s" % (v(accQ, 16), v(wq[b], 4), v(xf[b], 4), cq))
            if mid:
                mid()
            e("v_mfma_f32_32x32x16_bf16 %s, %s, %s, %s" % (v(accK, 16), v(wk[b], 4), v(xf[b], 4), ck))
            for o in ops[h:]:
                e(o)
            if j == 0:
                e(p.colsum_mfma(csq, wq[b], sel, st == 0))
            elif j == 1:
                e(p.colsum_mfma(csk, wk[b], sel, st == 1))

        ta = va.alloc("p1a_t")
        adr = va.alloc("p1a_adr")
        sadr = va.alloc("p1a_sadr")
        pw = va.alloc("p1a_pw")
        padr = va.alloc("p1a_padr")
        cadr = va.alloc("p1a_cadr")
        stat_addr(sadr)
        p.colsum_addr(pw, ta)
        e("s_lshl_b32 %s, %s, 8" % (s(ST[0]), s(SW)))
        e("s_add_u32 %s, %s, %d" % (s(ST[1]), s(ST[0]), P1M + P_CSA))
        e("v_add_u32 %s, %s, %s" % (v(pw), s(ST[1]), v(pw)))
        e("v_and_b32 %s, 31, %s" % (v(adr), v(L)))
        e("v_lshlrev_b32 %s, 2, %s" % (v(adr), v(adr)))
        e("v_add_u32 %s, %d, %s" % (v(adr), P1M + P_CSA, v(adr)))
        e("v_add_u32 %s, %s, %s" % (v(padr), s(ST[0]), v(adr)))
        e("v_lshrrev_b32 %s, 5, %s" % (v(cadr), v(L)))
        e("v_lshlrev_b32 %s, 4, %s" % (v(cadr), v(cadr)))
        e("s_add_u32 %s, %s, %d" % (s(ST[0]), s(ST[0]), P1M + P_CSF))
        e("v_add_u32 %s, %s, %s" % (v(cadr), s(ST[0]), v(cadr)))
        sKo = SA[4]
        e("s_lshl_b32 %s, %s, 17" % (s(sKo), s(SG)))
        e("s_lshl_b32 %s, %s, 12" % (s(ST[1]), s(SM)))
        e("s_add_u32 %s, %s, %s" % (s(sKo), s(sKo), s(ST[1])))
        e("s_lshl_b32 %s, %s, 10" % (s(ST[1]), s(SW)))
        e("s_add_u32 %s, %s, %s" % (s(sKo), s(sKo), s(ST[1])))
        e("s_add_u32 %s, %s, %d" % (s(sKo), s(sKo), WS_K))
        e("s_add_u32 %s, %s, 65536" % (s(sKo + 1), s(sKo)))
        kl = va.alloc("p1a_kl")
        e("s_lshl_b32 %s, %s, 10" % (s(ST[0]), s(SW)))
        e("v_add_u32 %s, %s, %s" % (v(kl), s(ST[0]), v(p.vL16)))
        loop(lgA, readsA, computeA, barsA, self.opts.get("p1pa", 0))
        va.free("p1a_xf0", "p1a_xf1", "p1a_wq0", "p1a_wq1", "p1a_wk0", "p1a_wk1")
        p.colsum_exec()
        e("ds_write_b128 %s, %s" % (v(pw), v(csq, 4)))
        e("ds_write_b128 %s, %s offset:128" % (v(pw), v(csk, 4)))
        e("s_mov_b64 exec, -1")
        e("v_mov_b32 %s, %d" % (v(ta), MISC + M_CTRL))
        e("s_waitcnt lgkmcnt(0)")
        e("s_barrier")
        barsA.append("E1")
        part = va.alloc("p1a_part", 8, 4)
        fa = va.alloc("p1a_fa")
        rs, mr = va.alloc("p1a_rs", 2, 2), va.alloc("p1a_mr", 2, 2)
        rq = va.alloc("p1a_rq", 2, 2)
        for wv_ in range(4):
            e("ds_read_b32 %s, %s offset:%d" % (v(part + wv_), v(adr), wv_ * 256))
            e("ds_read_b32 %s, %s offset:%d" % (v(part + 4 + wv_), v(adr), wv_ * 256 + 128))
        e("ds_read_b32 %s, %s" % (v(rs), v(sadr)))
        e("ds_read_b32 %s, %s offset:1024" % (v(mr), v(sadr)))
        e("ds_read_b32 %s, %s" % (v(fa), v(ta)))
        e("s_waitcnt lgkmcnt(3)")
        for base in (part, part + 4):
            e("v_add_f32 %s, %s, %s" % (v(base), v(base), v(base + 1)))
            e("v_add_f32 %s, %s, %s" % (v(base + 2), v(base + 2), v(base + 3)))
            e("v_add_f32 %s, %s, %s" % (v(base), v(base), v(base + 2)))
        e("ds_write_b32 %s, %s offset:%d" % (v(padr), v(part), P_CSF - P_CSA))
        e("ds_write_b32 %s, %s offset:%d" % (v(padr), v(part + 4), P_CSF - P_CSA + 128))
        e("s_waitcnt lgkmcnt(0)")
        csQ = va.alloc("p1a_csQ", 16, 4)
        csK = va.alloc("p1a_csK", 16, 4)
        for i in range(4):
            e("ds_read_b128 %s, %s offset:%d" % (v(csK + 4 * i, 4), v(cadr), 128 + 32 * i))
        for i in range(4):
            e("ds_read_b128 %s, %s offset:%d" % (v(csQ + 4 * i, 4), v(cadr), 32 * i))
        e("v_readfirstlane_b32 %s, %s" % (s(SFAST), v(fa)))
        e("v_mul_f32 %s, 0x%x, %s" % (v(rq), fbits(0.25 * LOG2E), v(rs)))
        e("s_waitcnt lgkmcnt(4)")
        for r in range(0, 16, 2):
            e("v_pk_fma_f32 %s, %s, %s, %s op_sel_hi:[0,1,1]" % (v(accK + r, 2), v(mr, 2), v(csK + r, 2), v(accK + r, 2)))
        for r in range(0, 16, 2):
            e("v_pk_mul_f32 %s, %s, %s op_sel_hi:[1,0]" % (v(accK + r, 2), v(accK + r, 2), v(rs, 2)))
        ka, kb = va.alloc("p1a_ka", 4, 4), va.alloc("p1a_kb", 4, 4)
        for i in range(4):
            e("v_cvt_pk_bf16_f32 %s, %s, %s" % (v(ka + i), v(accK + 2 * i), v(accK + 2 * i + 1)))
        for i in range(4):
            e("v_cvt_pk_bf16_f32 %s, %s, %s" % (v(kb + i), v(accK + 8 + 2 * i), v(accK + 9 + 2 * i)))

        def kst(fl):
            e("buffer_store_dwordx4 %s, %s, %s, %s offen %s" % (v(ka, 4), v(p.vL16), s(S_WS, 4), s(sKo), fl))
            e("buffer_store_dwordx4 %s, %s, %s, %s offen %s" % (v(kb, 4), v(p.vL16), s(S_WS, 4), s(sKo + 1), fl))
        p.stores_fast_slow(kst)
        e("ds_write_b128 %s, %s" % (v(kl), v(ka, 4)))
        e("ds_write_b128 %s, %s offset:8192" % (v(kl), v(kb, 4)))
        e("s_waitcnt lgkmcnt(2)")
        for r in range(0, 16, 2):
            e("v_pk_fma_f32 %s, %s, %s, %s op_sel_hi:[0,1,1]" % (v(accQ + r, 2), v(mr, 2), v(csQ + r, 2), v(accQ + r, 2)))
        for r in range(0, 16, 2):
            e("v_pk_mul_f32 %s, %s, %s op_sel_hi:[1,0]" % (v(accQ + r, 2), v(accQ + r, 2), v(rq, 2)))
        qb = va.alloc("p1a_qb", 4, 4)
        for i in range(4):
            e("v_cvt_pk_bf16_f32 %s, %s, %s" % (v(qb + i), v(accQ + 8 + 2 * i), v(accQ + 9 + 2 * i)))
        for i in range(4):
            e("v_cvt_pk_bf16_f32 %s, %s, %s" % (v(self.vQ + i), v(accQ + 2 * i), v(accQ + 2 * i + 1)))
        e("v_add_u32 %s, %d, %s" % (v(adr), P1M + P_QB, v(kl)))
        e("ds_write_b128 %s, %s" % (v(adr), v(qb, 4)))
        e("s_waitcnt vmcnt(0) lgkmcnt(0)")
        e("s_barrier")
        barsA.append("E2")
        e("s_branch L_p1_join")
        va.free_prefix("p1a_")

        e.label("L_p1_roleB")
        lgB = p.lg.clone()
        barsB = []
        accV = va.alloc("p1b_accV", 16, 4)
        xfb = [va.alloc("p1b_xf%d" % i, 4, 4) for i in range(2)]
        wv = [va.alloc("p1b_wv%d" % i, 4, 4) for i in range(2)]
        csv = va.alloc("p1b_csv", 4, 4)

        def readsB(st):
            c, j, b = st // 4, st % 4, st % 2
            xread(xfb[b], c, j)
            wread(wv[b], c, j, 2)
            for _ in range(3):
                lgB.issue(("r", st))

        def computeB(st, mid=None):
            b, j = st % 2, st % 4
            cv = "0" if st == 0 else v(accV, 16)
            e("v_mfma_f32_32x32x16_bf16 %s, %s, %s, %s" % (v(accV, 16), v(xfb[b], 4), v(wv[b], 4), cv))
            if mid:
                mid()
            ops = p.frag_ops("st", xfb[b], tmps, (s1, s2), mask)
            for o in ops:
                e(o)
            if j == 0:
                e(p.colsum_mfma(csv, wv[b], sel, st == 0))

        tb = va.alloc("p1b_t")
        adr = va.alloc("p1b_adr")
        sadr = va.alloc("p1b_sadr")
        padr = va.alloc("p1b_padr")
        cadr = va.alloc("p1b_cadr")
        vo = va.alloc("p1b_vo")
        vl = va.alloc("p1b_vl")
        stat_addr(sadr)
        p.colsum_addr(padr, tb)
        e("s_and_b32 %s, %s, 3" % (s(ST[0]), s(SW)))
        e("s_lshl_b32 %s, %s, 7" % (s(ST[0]), s(ST[0])))
        e("s_add_u32 %s, %s, %d" % (s(ST[0]), s(ST[0]), P1M + P_CSB))
        e("v_add_u32 %s, %s, %s" % (v(padr), s(ST[0]), v(padr)))
        e("v_and_b32 %s, 31, %s" % (v(adr), v(L)))
        e("v_lshlrev_b32 %s, 2, %s" % (v(adr), v(adr)))
        e("v_add_u32 %s, %d, %s" % (v(adr), P1M + P_CSB, v(adr)))
        e("s_and_b32 %s, %s, 3" % (s(ST[0]), s(SW)))
        e("s_lshl_b32 %s, %s, 7" % (s(ST[0]), s(ST[0])))
        e("s_add_u32 %s, %s, %d" % (s(ST[0]), s(ST[0]), P1M + P_STAT))
        e("v_lshrrev_b32 %s, 5, %s" % (v(cadr), v(L)))
        e("v_lshlrev_b32 %s, 4, %s" % (v(cadr), v(cadr)))
        e("v_add_u32 %s, %s, %s" % (v(cadr), s(ST[0]), v(cadr)))
        e("v_bfe_u32 %s, %s, 4, 1" % (v(tb), v(L)))
        e("v_lshlrev_b32 %s, 13, %s" % (v(vl), v(tb)))
        e("v_lshlrev_b32 %s, 16, %s" % (v(tb), v(tb)))
        e("v_lshrrev_b32 %s, 5, %s" % (v(vo), v(L)))
        e("v_lshlrev_b32 %s, 8, %s" % (v(vo), v(vo)))
        e("v_and_b32 %s, 15, %s" % (v(t0), v(L)))
        e("v_lshl_add_u32 %s, %s, 4, %s" % (v(vo), v(t0), v(vo)))
        e("v_add_u32 %s, %s, %s" % (v(vl), v(vl), v(vo)))
        e("v_add_u32 %s, %s, %s" % (v(vo), v(vo), v(tb)))
        sVo = SA[4]
        e("s_lshl_b32 %s, %s, 17" % (s(sVo), s(SG)))
        e("s_lshl_b32 %s, %s, 12" % (s(ST[1]), s(SM)))
        e("s_add_u32 %s, %s, %s" % (s(sVo), s(sVo), s(ST[1])))
        e("s_and_b32 %s, %s, 3" % (s(ST[1]), s(SW)))
        e("s_lshl_b32 %s, %s, 10" % (s(ST[1]), s(ST[1])))
        e("s_add_u32 %s, %s, %s" % (s(sVo), s(sVo), s(ST[1])))
        e("s_add_u32 %s, %s, %d" % (s(sVo), s(sVo), WS_V))
        e("s_add_u32 %s, %s, 4096" % (s(ST[1]), s(ST[1])))
        e("v_add_u32 %s, %s, %s" % (v(vl), s(ST[1]), v(vl)))
        p.fine(11)
        loop(lgB, readsB, computeB, barsB, self.opts.get("p1pb", 1))
        p.fine(11)
        p.colsum_exec()
        e("ds_write_b128 %s, %s" % (v(padr), v(csv, 4)))
        e("s_mov_b64 exec, -1")
        rs, mr = va.alloc("p1b_rs"), va.alloc("p1b_mr")
        p.pair_total(s1, tb)
        p.pair_total(s2, tb)
        p.ln_stats(s1, s2, tb, rs, mr)
        e("v_sub_f32 %s, 0, %s" % (v(s1), v(s1)))
        e("ds_write_b32 %s, %s" % (v(sadr), v(rs)))
        e("ds_write_b32 %s, %s offset:512" % (v(sadr), v(mr)))
        e("ds_write_b32 %s, %s offset:1024" % (v(sadr), v(s1)))
        e("v_mov_b32 %s, %d" % (v(tb), MISC + M_CTRL))
        e("s_waitcnt lgkmcnt(0)")
        p.fine(11)
        e("s_barrier")
        barsB.append("E1")
        p.fine(11)
        part = va.alloc("p1b_part", 4, 4)
        fa = va.alloc("p1b_fa")
        rsT = va.alloc("p1b_rsT", 16, 4)
        mrT = va.alloc("p1b_mrT", 16, 4)
        e("ds_read_b32 %s, %s" % (v(fa), v(tb)))
        for wv_ in range(4):
            e("ds_read_b32 %s, %s offset:%d" % (v(part + wv_), v(adr), wv_ * 128))
        for i in range(4):
            e("ds_read_b128 %s, %s offset:%d" % (v(rsT + 4 * i, 4), v(cadr), 32 * i))
        for i in range(4):
            e("ds_read_b128 %s, %s offset:%d" % (v(mrT + 4 * i, 4), v(cadr), 512 + 32 * i))
        e("s_waitcnt lgkmcnt(8)")
        e("v_readfirstlane_b32 %s, %s" % (s(SFAST), v(fa)))
        e("v_add_f32 %s, %s, %s" % (v(part), v(part), v(part + 1)))
        e("v_add_f32 %s, %s, %s" % (v(part + 2), v(part + 2), v(part + 3)))
        e("v_add_f32 %s, %s, %s" % (v(csv), v(part), v(part + 2)))
        e("s_waitcnt lgkmcnt(4)")
        for r in range(0, 16, 2):
            e("v_pk_mul_f32 %s, %s, %s" % (v(accV + r, 2), v(accV + r, 2), v(rsT + r, 2)))
        e("v_sub_f32 %s, 0, %s" % (v(csv), v(csv)))
        e("s_waitcnt lgkmcnt(0)")
        for r in range(0, 16, 2):
            e("v_pk_fma_f32 %s, %s, %s, %s op_sel_hi:[1,0,1]" % (v(accV + r, 2), v(mrT + r, 2), v(csv, 2), v(accV + r, 2)))
        vf = va.alloc("p1b_vf", 8, 4)
        for i in range(8):
            e("v_cvt_pk_bf16_f32 %s, %s, %s" % (v(vf + i), v(accV + 2 * i), v(accV + 2 * i + 1)))

        def vst(fl):
            e("buffer_store_dwordx4 %s, %s, %s, %s offen %s" % (v(vf, 4), v(vo), s(S_WS, 4), s(sVo), fl))
            e("buffer_store_dwordx4 %s, %s, %s, %s offen offset:512 %s" % (v(vf + 4, 4), v(vo), s(S_WS, 4), s(sVo), fl))
        p.fine(11)
        p.stores_fast_slow(vst)
        e("ds_write_b128 %s, %s" % (v(vl), v(vf, 4)))
        e("ds_write_b128 %s, %s offset:512" % (v(vl), v(vf + 4, 4)))
        p.fine(11)
        e("s_waitcnt vmcnt(0) lgkmcnt(0)")
        p.fine(11)
        e("s_barrier")
        barsB.append("E2")
        p.fine(11)
        e("s_and_b32 %s, %s, 3" % (s(ST[0]), s(SW)))
        e("s_lshl_b32 %s, %s, 10" % (s(ST[0]), s(ST[0])))
        e("s_add_u32 %s, %s, %d" % (s(ST[0]), s(ST[0]), P1M + P_QB))
        e("v_add_u32 %s, %s, %s" % (v(adr), s(ST[0]), v(p.vL16)))
        e("ds_read_b128 %s, %s" % (v(self.vQ, 4), v(adr)))
        e("s_waitcnt lgkmcnt(0)")
        va.free_prefix("p1b_")
        e.label("L_p1_join")
        va.free_prefix("p1_")
        assert barsA == barsB
        p.bars += barsA
        p.stamp(1)
        p.stamp(2)

    def attn_loader(self):
        p = self.l
        e, va, vm = p.e, p.va, p.vm
        sX = SA[21]
        e("s_lshr_b32 %s, %s, 1" % (s(sX), s(SG)))

        def kv_src(c):
            e("s_add_u32 %s, %s, %d" % (s(ST[0]), s(SM), c))
            e("s_and_b32 %s, %s, 15" % (s(ST[0]), s(ST[0])))
            e("s_lshl_b32 %s, %s, 12" % (s(ST[0]), s(ST[0])))
            e("s_add_u32 %s, %s, %s" % (s(ST[0]), s(ST[0]), s(self.sKVg)))

        def kv_issue(c):
            kv_src(c)
            p.dma(S_WS, p.vL16, (ST[0], 0), (self.sKVl, (c % 4) * KV_SLOT), ("kv", c), flags="sc1", n=4)

        def kv_issue_all(c):
            kv_src(c)
            for q in range(4):
                p.dma(S_WS, p.vL16, (ST[0], (q >> 1) * 65536 + (q & 1) * (WS_V - WS_K)), (self.sKVl, (c % 4) * KV_SLOT + q * 4096), ("kv", c), flags="sc1", n=4)

        def wo_issue(c):
            e("s_add_u32 %s, %s, %d" % (s(ST[1]), s(sX), c))
            e("s_and_b32 %s, %s, 7" % (s(ST[1]), s(ST[1])))
            e("s_add_u32 %s, %s, %s" % (s(ST[0]), s(self.sWOs), s(ST[1])))
            e("s_and_b32 %s, %s, 15" % (s(ST[0]), s(ST[0])))
            e("s_lshl_b32 %s, %s, 14" % (s(ST[0]), s(ST[0])))
            e("s_add_u32 %s, %s, %s" % (s(ST[0]), s(ST[0]), s(self.sWOg)))
            e("s_lshl_b32 %s, %s, 11" % (s(ST[1]), s(ST[1])))
            e("s_add_u32 %s, %s, %s" % (s(ST[1]), s(ST[1]), s(self.sWOl)))
            for i in range(2):
                p.dma(S_WO, p.vWF, (ST[0], i * 8192), (ST[1], i * 1024), "wo")

        def pf_issue(k):
            e("s_lshl_b32 %s, %s, 2" % (s(ST[0]), s(sX)))
            e("s_add_u32 %s, %s, %s" % (s(ST[0]), s(ST[0]), s(self.sLW)))
            e("s_add_u32 %s, %s, %d" % (s(ST[0]), s(ST[0]), 4 * k))
            e("s_and_b32 %s, %s, 31" % (s(ST[0]), s(ST[0])))
            e("s_mul_i32 %s, %s, %d" % (s(ST[0]), s(ST[0]), 16 * 2752))
            e("s_lshl_b32 %s, %s, 5" % (s(ST[1]), s(self.sFs)))
            e("s_add_u32 %s, %s, %s" % (s(ST[0]), s(ST[0]), s(ST[1])))
            e("s_mov_b32 exec_hi, 0")
            e("buffer_load_dword %s, %s, %s, %s offen" % (v(p.pfd), v(p.pfo), s(S_PF, 4), s(ST[0])))
            e("s_mov_b32 exec_hi, -1")
            vm.issue("pf")

        def extras(c):
            if c <= 7:
                wo_issue(c)
                if not self.opts.get("nopf"):
                    pf_issue(c)
            if 8 <= c <= 9:
                self.gu_w_half(0, c - 8)
            if not self.opts.get("notouch"):
                if c == 10:
                    self.dest_touch(0)
                if c == 11:
                    self.dest_touch(1)
            if c == 12 and self.opts.get("dmall", 1):
                self.dn_mall_touch()
            if c == 13 and not self.opts.get("noout"):
                self.out_touch()
            if c == 12 and self.opts.get("otouch"):
                e("s_and_b32 %s, %s, 1" % (s(ST[1]), s(self.sLW)))
                e("s_cmp_eq_u32 %s, 0" % s(ST[1]))
                e("s_cselect_b32 %s, %s, %s" % (s(ST[0]), s(SM), s(SG)))
                e("s_lshl_b32 %s, %s, 17" % (s(ST[0]), s(ST[0])))
                e("s_add_u32 %s, %s, %d" % (s(ST[0]), s(ST[0]), WS_O))
                e("s_lshl_b32 %s, %s, 15" % (s(ST[1]), s(self.sLW)))
                e("s_add_u32 %s, %s, %s" % (s(ST[0]), s(ST[0]), s(ST[1])))
                e("buffer_load_dword %s, off, %s, %s sc1" % (v(p.pfd), s(S_WS, 4), s(ST[0])))
                vm.issue("pf")
            if c == 14:
                self.early_writeback(1)
            if c == 3:
                self.early_writeback(8)
            if c == 8:
                self.early_writeback(16)
            if self.opts.get("dpf", 4) == 1 and c in (13, 14):
                self.dn_pf_issue(c - 13)
            if self.opts.get("dpf", 4) == 3 and c == 14:
                self.dn_pf_late()

        def boundary(c, bars):
            p.fine(2)
            vm.wait(("kv", c + 1))
            p.fine(2)
            e("s_barrier")
            bars.append("A%d" % (c + 1))
            if c >= 1 and c + 3 <= 15:
                kv_issue(c + 3)
            extras(c)

        e("s_cmp_lg_u32 %s, %d" % (s(SW), CTRL_WAVE))
        e("s_cbranch_scc1 L_attn_others_ld")
        p.sync(0, True)
        q0 = list(vm.q)
        for c in range(1, 4):
            kv_issue_all(c)
        bars1 = []
        for c in range(3):
            boundary(c, bars1)
        q1 = list(vm.q)
        e("s_branch L_attn_merge_ld")
        e.label("L_attn_others_ld")
        vm.q = list(q0)
        bars2 = []
        for c in range(3):
            boundary(c, bars2)
        assert bars1 == bars2
        n1 = len([t for t in q1]); n2 = len(vm.q)
        assert vm.q[-n1:] == q1 or q1[-n2:] == vm.q, (q1, vm.q)
        if n1 < n2:
            pass
        else:
            vm.q = q1
        e.label("L_attn_merge_ld")
        p.bars += bars1
        bars3 = []
        for c in range(3, 15):
            boundary(c, bars3)
            if c == 13:
                self.oproj_loader_setup()
                p.sync_prep(1, SM, SG, SG)
        p.bars += bars3
        if self.opts.get("roll", 1):
            p.barrier("A16")
        vm.wait_all()
        p.fine(21)
        p.barrier("F1")
        p.fine(21)
        t0, t1 = va.alloc("al_t0"), va.alloc("al_t1")
        e("v_mov_b32 %s, %d" % (v(t0), MISC + M_CTRL + 4))
        e("ds_read_b32 %s, %s" % (v(t1), v(t0)))
        e("s_waitcnt lgkmcnt(0)")
        e("v_readfirstlane_b32 %s, %s" % (s(ST[0]), v(t1)))
        e("s_nop 1")
        e("s_cmp_eq_u32 %s, 0" % s(ST[0]))
        e("s_cbranch_scc1 L_attn_ok_ld")
        e("s_cmp_lg_u32 %s, 0" % s(SREDO))
        e("s_cbranch_scc1 L_attn_ok_ld")
        e("s_mov_b32 %s, 1" % s(SREDO))
        qs = list(vm.q)
        for c in range(4):
            kv_issue(c)
        e("s_waitcnt vmcnt(0)")
        vm.q = qs
        e("s_barrier")
        e("s_branch L_attn_others_ld")
        e.label("L_attn_ok_ld")
        va.free("al_t0", "al_t1")

    def attn_compute(self):
        p = self.c
        e, va, vm, lg = p.e, p.va, p.vm, p.lg
        L = p.vL
        Q = self.vQ
        S = [va.alloc("at_S0", 16, 4), va.alloc("at_S1", 16, 4)]
        negM = va.alloc("at_negM", 16, 4)
        O = va.alloc("at_O", 16, 4)
        P = va.alloc("at_P", 8, 4)
        Kf = [va.alloc("at_K%d" % i, 4, 4) for i in range(2)]
        Vf = [va.alloc("at_V%d" % i, 8, 4) for i in range(2)]
        ka, vaa = va.alloc("at_ka"), va.alloc("at_va")
        t0, t1 = va.alloc("at_t0"), va.alloc("at_t1")
        sHead = SA[6]
        e("s_lshr_b32 %s, %s, 2" % (s(ST[0]), s(SW)))
        e("s_lshl_b32 %s, %s, 1" % (s(sHead), s(SG)))
        e("s_add_u32 %s, %s, %s" % (s(sHead), s(sHead), s(ST[0])))
        e("s_lshl_b32 %s, %s, 13" % (s(ST[0]), s(ST[0])))
        e("v_add_u32 %s, %s, %s" % (v(ka), s(ST[0]), v(p.vL16)))
        e("v_lshrrev_b32 %s, 5, %s" % (v(t0), v(L)))
        e("v_lshlrev_b32 %s, 8, %s" % (v(t0), v(t0)))
        e("v_and_b32 %s, 15, %s" % (v(t1), v(L)))
        e("v_lshl_add_u32 %s, %s, 4, %s" % (v(t0), v(t1), v(t0)))
        e("s_add_u32 %s, %s, 4096" % (s(ST[0]), s(ST[0])))
        e("v_add_u32 %s, %s, %s" % (v(vaa), s(ST[0]), v(t0)))

        e.label("L_attn_begin")
        if self.opts.get("vzero", 1):
            e("v_and_b32 %s, 31, %s" % (v(t0), v(L)))
            e("v_cmp_eq_u32 vcc, 16, %s" % v(t0))
            e("v_mov_b32 %s, 0x%x" % (v(t1), ONES))
            e("s_nop 0")
            e("v_cndmask_b32 %s, 0, %s, vcc" % (v(t0), v(t1)))
            for b in range(2):
                for i in range(8):
                    e("v_mov_b32 %s, %s" % (v(Vf[b] + i), v(t0)))
        else:
            for b in range(2):
                for i in range(8):
                    e("v_mov_b32 %s, 0x%x" % (v(Vf[b] + i), ONES))

        if self.opts.get("roll", 1):
            for i in range(16):
                e("v_mov_b32 %s, 0" % v(O + i))
            for i in range(4, 8):
                e("v_mov_b32 %s, 0" % v(P + i))

        def kread(t):
            c, i = t // 4, t % 4
            e("ds_read_b128 %s, %s offset:%d" % (v(Kf[t % 2], 4), v(ka), (c % 4) * KV_SLOT + i * 1024))
            lg.issue(("k", t))

        def vread(t):
            c, i = t // 4, t % 4
            e("s_mov_b64 exec, %s" % s(SHALF, 2))
            for f in range(2):
                e("ds_read_b128 %s, %s offset:%d" % (v(Vf[t % 2] + 4 * f, 4), v(vaa), (c % 4) * KV_SLOT + i * 1024 + f * 512))
                lg.issue(("v", t))
            e("s_mov_b64 exec, -1")

        kread(0)
        kread(1)
        vread(0)
        lg.wait(("k", 0))
        skipm = p.lab("skip_max")
        e("s_cmp_lg_u32 %s, 0" % s(SREDO))
        e("s_cbranch_scc1 %s" % skipm)
        e("v_mfma_f32_32x32x16_bf16 %s, %s, %s, 0" % (v(S[0], 16), v(Kf[0], 4), v(Q, 4)))
        e("s_nop 11")
        e("v_max3_f32 %s, %s, %s, %s" % (v(t0), v(S[0]), v(S[0] + 1), v(S[0] + 2)))
        for i in range(3, 15, 2):
            e("v_max3_f32 %s, %s, %s, %s" % (v(t0), v(t0), v(S[0] + i), v(S[0] + i + 1)))
        e("v_max_f32 %s, %s, %s" % (v(t0), v(t0), v(S[0] + 15)))
        e("v_mov_b32 %s, %s" % (v(t1), v(t0)))
        e("s_nop 1")
        e("v_permlane32_swap_b32 %s, %s" % (v(t0), v(t1)))
        e("v_max_f32 %s, %s, %s" % (v(t0), v(t0), v(t1)))
        for i in range(16):
            e("v_sub_f32 %s, 0, %s" % (v(negM + i), v(t0)))
        e.label(skipm)
        e("s_nop 1")
        e("v_mfma_f32_32x32x16_bf16 %s, %s, %s, %s" % (v(S[0], 16), v(Kf[0], 4), v(Q, 4), v(negM, 16)))
        e("s_nop 8")

        roll = self.opts.get("roll", 1)

        def pv(t, f):
            first = (t == 0 and f == 0 and not roll)
            e("v_mfma_f32_32x32x16_bf16 %s, %s, %s, %s" % (v(O, 16), v(Vf[t % 2] + 4 * f, 4), v(P + 4 * f, 4), "0" if first else v(O, 16)))

        NT = 64
        prio = self.opts.get("prio", 1)
        kpos = self.opts.get("kpos", 1)
        vpos = self.opts.get("vpos", 0)
        sIt = SA[8]
        if roll:
            e("s_mov_b32 %s, 4" % s(sIt))
            e.label("L_attn_loop")
        for t in range(16 if roll else NT):
            cur = S[t % 2]
            ex = lambda i: e("v_exp_f32 %s, %s" % (v(cur + i), v(cur + i)))
            cv = lambda i: e("v_cvt_pk_bf16_f32 %s, %s, %s" % (v(P + i), v(cur + 2 * i), v(cur + 2 * i + 1)))
            if prio == 1:
                e("s_setprio %d" % (3 - (t - 2) % 4))
            elif prio == 2:
                e("s_setprio %d" % (2 - min(2, (t - 2) % 4)))
            elif prio == 3 and t % 2 == 0:
                e("s_setprio %d" % (1 - ((t - 2) % 4) // 2))
            elif t == 0:
                e("s_nop 0")
            lg.wait_all(force=bool(roll))
            if roll or t + 1 < NT:
                e("v_mfma_f32_32x32x16_bf16 %s, %s, %s, %s" % (v(S[(t + 1) % 2], 16), v(Kf[(t + 1) % 2], 4), v(Q, 4), v(negM, 16)))

            def next_k():
                if t % 4 == 2 and (roll or t // 4 + 1 <= 15):
                    p.fine(12)
                    if roll:
                        e("s_barrier")
                    else:
                        p.barrier("A%d" % (t // 4 + 1))
                    p.fine(12)
                if roll:
                    kread((t + 2) % 16)
                elif t + 2 < NT:
                    kread(t + 2)

            def next_v():
                if roll:
                    vread((t + 1) % 16)
                elif t + 1 < NT:
                    vread(t + 1)
            if kpos == 0:
                next_k()
            for i in range(4):
                ex(i)
            if roll or t > 0:
                pv(t + 1 if roll else t - 1, 1)
            if vpos == 0:
                next_v()
            cv(0); ex(4); ex(5); cv(1)
            if vpos == 3:
                next_v()
            if kpos == 2:
                next_k()
            ex(6); ex(7); cv(2); ex(8); cv(3); ex(9); ex(10)
            pv(t, 0)
            if vpos == 1:
                next_v()
            if kpos == 1:
                next_k()
            if vpos == 2:
                next_v()
            ex(11); cv(4); ex(12); ex(13); cv(5)
            if kpos == 3:
                next_k()
            ex(14); ex(15); cv(6)
            cv(7)
        if roll:
            e("s_sub_u32 %s, %s, 1" % (s(sIt), s(sIt)))
            e("s_cmp_lg_u32 %s, 0" % s(sIt))
            e("s_cbranch_scc1 L_attn_loop")
            for c in range(16):
                p.bars.append("A%d" % (c + 1))
        e("s_setprio 0")
        e("s_nop 0")
        pv(NT - 1, 1)
        p.stamp(3)
        e("s_nop 11")
        chk = p.lab("chk_done")
        if self.opts.get("vzero", 1):
            e("v_mov_b32 %s, %s" % (v(t1), v(O + 8)))
            e("s_nop 1")
            e("v_permlane32_swap_b32 %s, %s" % (v(O + 8), v(t1)))
            e("s_nop 1")
        e("v_rcp_f32 %s, %s" % (v(t1), v(O + 8)))
        e("s_cmp_lg_u32 %s, 0" % s(SREDO))
        e("s_cbranch_scc1 %s" % chk)
        e("s_mov_b32 %s, 0x%x" % (s(ST[0]), fbits(2.0 ** 64)))
        e("v_cmp_nge_f32 vcc, %s, %s" % (s(ST[0]), v(O + 8)))
        e("s_nop 1")
        e("s_cbranch_vccz %s" % chk)
        e("v_mov_b32 %s, %d" % (v(t0), MISC + M_CTRL + 4))
        e("v_mov_b32 %s, 1" % v(S[0]))
        e("ds_write_b32 %s, %s" % (v(t0), v(S[0])))
        e.label(chk)
        for i in range(8):
            e("v_mul_f32 %s, %s, %s" % (v(O + i), v(O + i), v(t1)))
        for i in range(4):
            e("v_cvt_pk_bf16_f32 %s, %s, %s" % (v(P + i), v(O + 2 * i), v(O + 2 * i + 1)))
        e("s_lshl_b32 %s, %s, 2" % (s(ST[0]), s(SM)))
        e("s_and_b32 %s, %s, 3" % (s(ST[1]), s(SW)))
        e("s_add_u32 %s, %s, %s" % (s(ST[0]), s(ST[0]), s(ST[1])))
        e("s_lshl_b32 %s, %s, 5" % (s(ST[0]), s(ST[0])))
        e("s_add_u32 %s, %s, %s" % (s(ST[0]), s(ST[0]), s(sHead)))
        e("s_lshl_b32 %s, %s, 10" % (s(ST[0]), s(ST[0])))
        e("s_add_u32 %s, %s, %d" % (s(ST[0]), s(ST[0]), WS_O))
        e("buffer_store_dwordx4 %s, %s, %s, %s offen sc1" % (v(P, 4), v(p.vL16), s(S_WS, 4), s(ST[0])))
        p.fine(31)
        e("s_waitcnt vmcnt(0) lgkmcnt(0)")
        p.fine(31)
        vm.q, lg.q = [], []
        p.barrier("F1")
        e("v_mov_b32 %s, %d" % (v(t0), MISC + M_CTRL + 4))
        e("ds_read_b32 %s, %s" % (v(t1), v(t0)))
        e("s_waitcnt lgkmcnt(0)")
        e("v_readfirstlane_b32 %s, %s" % (s(ST[0]), v(t1)))
        e("s_nop 1")
        e("s_cmp_eq_u32 %s, 0" % s(ST[0]))
        e("s_cbranch_scc1 L_attn_ok")
        e("s_cmp_lg_u32 %s, 0" % s(SREDO))
        e("s_cbranch_scc1 L_attn_ok")
        e("s_mov_b32 %s, 1" % s(SREDO))
        e("s_lshl_b32 %s, %s, 16" % (s(ST[0]), s(sHead)))
        e("s_add_u32 %s, %s, %d" % (s(ST[0]), s(ST[0]), WS_K))
        e("s_mov_b32 %s, 64" % s(ST[1]))
        e("v_mov_b32 %s, 0xff800000" % v(t0))
        e.label("L_exact_max")
        e("buffer_load_dwordx4 %s, %s, %s, %s offen sc1" % (v(Kf[0], 4), v(p.vL16), s(S_WS, 4), s(ST[0])))
        e("s_add_u32 %s, %s, 1024" % (s(ST[0]), s(ST[0])))
        e("s_waitcnt vmcnt(0)")
        e("v_mfma_f32_32x32x16_bf16 %s, %s, %s, 0" % (v(S[0], 16), v(Kf[0], 4), v(Q, 4)))
        e("s_nop 11")
        for i in range(0, 16, 2):
            e("v_max3_f32 %s, %s, %s, %s" % (v(t0), v(t0), v(S[0] + i), v(S[0] + i + 1)))
        e("s_sub_u32 %s, %s, 1" % (s(ST[1]), s(ST[1])))
        e("s_cmp_lg_u32 %s, 0" % s(ST[1]))
        e("s_cbranch_scc1 L_exact_max")
        e("v_mov_b32 %s, %s" % (v(t1), v(t0)))
        e("s_nop 1")
        e("v_permlane32_swap_b32 %s, %s" % (v(t0), v(t1)))
        e("v_max_f32 %s, %s, %s" % (v(t0), v(t0), v(t1)))
        for i in range(16):
            e("v_sub_f32 %s, 0, %s" % (v(negM + i), v(t0)))
        e("s_barrier")
        e("s_branch L_attn_begin")
        e.label("L_attn_ok")
        va.free_prefix("at_")
        va.free("Q")

    def oproj_loader_setup(self):
        p = self.l
        e = p.e
        sOg, sOl = SA[22], SA[23]
        self.sOg, self.sOl = sOg, sOl
        e("s_lshl_b32 %s, %s, 2" % (s(ST[0]), s(SG)))
        e("s_lshr_b32 %s, %s, 3" % (s(ST[1]), s(SM)))
        e("s_lshl_b32 %s, %s, 1" % (s(ST[1]), s(ST[1])))
        e("s_add_u32 %s, %s, %s" % (s(ST[0]), s(ST[0]), s(ST[1])))
        e("s_and_b32 %s, %s, 1" % (s(ST[1]), s(self.sLW)))
        e("s_add_u32 %s, %s, %s" % (s(ST[0]), s(ST[0]), s(ST[1])))
        e("s_lshl_b32 %s, %s, 15" % (s(sOg), s(ST[0])))
        e("s_lshl_b32 %s, %s, 15" % (s(sOl), s(ST[1])))
        e("s_lshr_b32 %s, %s, 1" % (s(ST[1]), s(self.sLW)))
        e("s_lshl_b32 %s, %s, 14" % (s(ST[1]), s(ST[1])))
        e("s_add_u32 %s, %s, %s" % (s(sOl), s(sOl), s(ST[1])))
        e("s_add_u32 %s, %s, %s" % (s(sOg), s(sOg), s(ST[1])))
        e("s_add_u32 %s, %s, %d" % (s(sOg), s(sOg), WS_O))

    def oproj_loader(self):
        p = self.l
        e, va, vm = p.e, p.va, p.vm

        def zupdate(a):
            sk = p.lab("zupd")
            e("s_cmp_lg_u32 s2, 0")
            e("s_cbranch_scc1 %s" % sk)
            e("s_mov_b64 exec, 1")
            e("buffer_store_dwordx2 %s, off, %s, 0 sc1" % (v(a, 2), s(S_WS, 4)))
            e.label(sk)
        sOg, sOl = self.sOg, self.sOl
        p.sync(1, False, after_poll=zupdate)
        p.barrier("F2")

        def o_issue(cc):
            for pr in range(2):
                e("s_add_u32 %s, %s, %d" % (s(ST[0]), s(self.sRotO), 4 * cc + 2 * pr))
                e("s_and_b32 %s, %s, 15" % (s(ST[0]), s(ST[0])))
                e("s_lshl_b32 %s, %s, 10" % (s(ST[0]), s(ST[0])))
                e("s_add_u32 %s, %s, %s" % (s(ST[0]), s(ST[0]), s(sOg)))
                p.dma(S_WS, p.vL16, (ST[0], 0), (sOl, cc * 4096 + pr * 2048), ("o", cc), flags="sc1", n=2)
        o_issue(0)
        o_issue(1)
        for cc in range(4):
            vm.wait(("o", cc))
            p.barrier("Oc%d" % cc)
            if cc + 2 <= 3:
                o_issue(cc + 2)
        p.barrier("X1")
        self.gu_w_issue(1)
        p.sync_prep(2, SG, SM, SG)
        p.barrier("Y1")
        p.barrier("H1")
        if self.opts.get("gw2pre", 0):
            oth = p.lab("s3_others")
            join = p.lab("s3_join")
            e("s_cmp_lg_u32 %s, %d" % (s(SW), CTRL_WAVE))
            e("s_cbranch_scc1 %s" % oth)
            p.sync(2, True)
            e("s_barrier")
            q0 = list(vm.q)
            self.gu_w_issue(2)
            e("s_branch %s" % join)
            e.label(oth)
            vm.q = q0
            self.gu_w_issue(2)
            e("s_barrier")
            e.label(join)
            p.bars.append("H2")
        else:
            p.sync(2, True)
            p.barrier("H2")

    def tile64_roles(self):
        p = self.c
        e, va = p.e, p.va
        L = p.vL
        self.sTT, self.sCB = SA[12], SA[13]
        e("s_lshl_b32 %s, %s, 2" % (s(self.sTT), s(SG)))
        e("s_lshr_b32 %s, %s, 3" % (s(ST[0]), s(SM)))
        e("s_lshl_b32 %s, %s, 1" % (s(ST[0]), s(ST[0])))
        e("s_add_u32 %s, %s, %s" % (s(self.sTT), s(self.sTT), s(ST[0])))
        e("s_and_b32 %s, %s, 1" % (s(ST[0]), s(SW)))
        e("s_add_u32 %s, %s, %s" % (s(self.sTT), s(self.sTT), s(ST[0])))
        e("s_and_b32 %s, %s, 7" % (s(self.sCB), s(SM)))
        e("s_lshl_b32 %s, %s, 6" % (s(self.sCB), s(self.sCB)))
        e("s_bfe_u32 %s, %s, 0x10001" % (s(ST[0]), s(SW)))
        e("s_lshl_b32 %s, %s, 5" % (s(ST[0]), s(ST[0])))
        e("s_add_u32 %s, %s, %s" % (s(self.sCB), s(self.sCB), s(ST[0])))
        e("s_lshr_b32 %s, %s, 2" % (s(ST[0]), s(SW)))
        e("s_lshl_b32 %s, %s, 4" % (s(ST[0]), s(ST[0])))
        e("s_add_u32 %s, %s, %s" % (s(self.sCB), s(self.sCB), s(ST[0])))
        self.vTrP = va.alloc("TrP")
        a = va.alloc("t64_a")
        b_ = va.alloc("t64_b")
        e("v_lshrrev_b32 %s, 5, %s" % (v(a), v(L)))
        e("v_lshlrev_b32 %s, 2, %s" % (v(a), v(a)))
        e("v_bfe_u32 %s, %s, 2, 2" % (v(b_), v(L)))
        e("v_add_u32 %s, %s, %s" % (v(a), v(a), v(b_)))
        e("v_lshlrev_b32 %s, 7, %s" % (v(self.vTrP), v(a)))
        e("v_lshrrev_b32 %s, 1, %s" % (v(b_), v(b_)))
        e("s_bfe_u32 %s, %s, 0x10001" % (s(ST[0]), s(SW)))
        e("v_xor_b32 %s, %s, %s" % (v(b_), s(ST[0]), v(b_)))
        e("v_lshl_add_u32 %s, %s, 6, %s" % (v(self.vTrP), v(b_), v(self.vTrP)))
        e("s_lshr_b32 %s, %s, 2" % (s(ST[0]), s(SW)))
        e("v_bfe_u32 %s, %s, 4, 1" % (v(a), v(L)))
        e("v_xor_b32 %s, %s, %s" % (v(a), s(ST[0]), v(a)))
        e("v_lshl_add_u32 %s, %s, 5, %s" % (v(self.vTrP), v(a), v(self.vTrP)))
        e("v_and_b32 %s, 3, %s" % (v(a), v(L)))
        e("v_lshl_add_u32 %s, %s, 3, %s" % (v(self.vTrP), v(a), v(self.vTrP)))
        self.vRow = va.alloc("Row")
        e("v_and_b32 %s, 31, %s" % (v(a), v(L)))
        e("v_lshlrev_b32 %s, 10, %s" % (v(self.vRow), v(a)))
        e("v_lshrrev_b32 %s, 5, %s" % (v(a), v(L)))
        e("v_lshl_add_u32 %s, %s, 4, %s" % (v(self.vRow), v(a), v(self.vRow)))
        self.sRow = SA[14]
        e("s_lshl_b32 %s, %s, 15" % (s(self.sRow), s(self.sTT)))
        e("s_lshl_b32 %s, %s, 1" % (s(ST[0]), s(self.sCB)))
        e("s_add_u32 %s, %s, %s" % (s(self.sRow), s(self.sRow), s(ST[0])))
        va.free("t64_a", "t64_b")

    def exchange_setup(self, name, offs):
        p = self.c
        e, va = p.e, p.va
        a, b = va.alloc(name + "_xa"), va.alloc(name + "_xb")
        offs(SW, ST[1])
        e("s_xor_b32 %s, %s, 4" % (s(ST[2]), s(SW)))
        offs(ST[2], ST[0])
        e("v_add_u32 %s, %s, %s" % (v(a), s(ST[1]), v(p.vL16)))
        e("v_add_u32 %s, %s, %s" % (v(b), s(ST[0]), v(p.vL16)))
        return a, b

    def exchange_halves(self, acc, adr, tag):
        p = self.c
        e, va = p.e, p.va
        a, b = adr
        r = va.alloc("xc_r", 8, 4)
        e("ds_write_b128 %s, %s" % (v(a), v(acc + 8, 4)))
        e("ds_write_b128 %s, %s offset:1024" % (v(a), v(acc + 12, 4)))
        e("s_waitcnt lgkmcnt(0)")
        p.barrier(tag)
        e("ds_read_b128 %s, %s" % (v(r, 4), v(b)))
        e("ds_read_b128 %s, %s offset:1024" % (v(r + 4, 4), v(b)))
        e("s_waitcnt lgkmcnt(0)")
        for i in range(8):
            e("v_add_f32 %s, %s, %s" % (v(acc + i), v(acc + i), v(r + i)))
        va.free("xc_r")

    def add_packed(self, acc, pk):
        p = self.c
        e, va = p.e, p.va
        a = va.alloc("ap_a")
        for i in range(4):
            e("v_lshlrev_b32 %s, 16, %s" % (v(a), v(pk + i)))
            e("v_add_f32 %s, %s, %s" % (v(acc + 2 * i), v(acc + 2 * i), v(a)))
            e("v_and_b32 %s, 0xffff0000, %s" % (v(a), v(pk + i)))
            e("v_add_f32 %s, %s, %s" % (v(acc + 2 * i + 1), v(acc + 2 * i + 1), v(a)))
        va.free("ap_a")

    def oproj_compute(self):
        p = self.c
        e, va, vm, lg = p.e, p.va, p.vm, p.lg
        self.tile64_roles()
        xres = va.alloc("op_x", 4, 4)
        e("buffer_load_dwordx4 %s, %s, %s, %s offen" % (v(xres, 4), v(self.vRow), s(S_X, 4), s(self.sRow)))
        vm.issue("xres")
        oa, wa = va.alloc("op_oa"), va.alloc("op_wa")
        e("s_and_b32 %s, %s, 1" % (s(ST[0]), s(SW)))
        e("s_lshl_b32 %s, %s, 15" % (s(ST[0]), s(ST[0])))
        e("s_lshr_b32 %s, %s, 2" % (s(ST[1]), s(SW)))
        e("s_lshl_b32 %s, %s, 14" % (s(ST[1]), s(ST[1])))
        e("s_add_u32 %s, %s, %s" % (s(ST[0]), s(ST[0]), s(ST[1])))
        e("v_add_u32 %s, %s, %s" % (v(oa), s(ST[0]), v(p.vL16)))
        e("s_lshl_b32 %s, %s, 1" % (s(ST[0]), s(ST[1])))
        e("s_add_u32 %s, %s, %d" % (s(ST[0]), s(ST[0]), WO_LDS))
        e("v_add_u32 %s, %s, %s" % (v(wa), s(ST[0]), v(self.vTrP)))
        acc = va.alloc("op_acc", 16, 4)
        of = [va.alloc("op_of%d" % i, 4, 4) for i in range(3)]
        wf = [va.alloc("op_wf%d" % i, 4, 4) for i in range(3)]

        def reads(st):
            b = st % 3
            e("ds_read_b128 %s, %s offset:%d" % (v(of[b], 4), v(oa), st * 1024))
            e("ds_read_b64_tr_b16 %s, %s offset:%d" % (v(wf[b], 2), v(wa), st * 2048))
            e("ds_read_b64_tr_b16 %s, %s offset:%d" % (v(wf[b] + 2, 2), v(wa), st * 2048 + 1024))
            for _ in range(3):
                lg.issue(("r", st))

        def xoffs(w, dst):
            e("s_lshr_b32 %s, %s, 2" % (s(dst), s(w)))
            e("s_lshl_b32 %s, %s, 14" % (s(dst), s(dst)))
            e("s_and_b32 %s, %s, 3" % (s(ST[3]), s(w)))
            e("s_lshl_b32 %s, %s, 11" % (s(ST[3]), s(ST[3])))
            e("s_add_u32 %s, %s, %s" % (s(dst), s(dst), s(ST[3])))
            e("s_add_u32 %s, %s, 32768" % (s(dst), s(dst)))
        xadr = self.exchange_setup("op", xoffs)
        sHo, sSo = SA[4], SA[5]
        e("s_lshl_b32 %s, %s, 15" % (s(sHo), s(self.sTT)))
        e("s_lshl_b32 %s, %s, 6" % (s(ST[1]), s(self.sCB)))
        e("s_add_u32 %s, %s, %s" % (s(sHo), s(sHo), s(ST[1])))
        e("s_add_u32 %s, %s, %d" % (s(sHo), s(sHo), WS_H))
        sad, swr, sgo = va.alloc("op_sad"), va.alloc("op_swr"), va.alloc("op_sgo")
        e("v_and_b32 %s, 31, %s" % (v(sgo), v(p.vL)))
        e("v_lshlrev_b32 %s, 3, %s" % (v(sgo), v(sgo)))
        e("s_and_b32 %s, %s, 1" % (s(ST[0]), s(SW)))
        e("s_lshl_b32 %s, %s, 10" % (s(ST[0]), s(ST[0])))
        e("s_add_u32 %s, %s, %d" % (s(ST[0]), s(ST[0]), OP_STP))
        e("v_add_u32 %s, %s, %s" % (v(sad), s(ST[0]), v(sgo)))
        e("s_bfe_u32 %s, %s, 0x10001" % (s(ST[0]), s(SW)))
        e("s_lshl_b32 %s, %s, 1" % (s(ST[0]), s(ST[0])))
        e("s_lshr_b32 %s, %s, 2" % (s(ST[1]), s(SW)))
        e("s_add_u32 %s, %s, %s" % (s(ST[0]), s(ST[0]), s(ST[1])))
        e("s_lshl_b32 %s, %s, 8" % (s(ST[0]), s(ST[0])))
        e("v_add_u32 %s, %s, %s" % (v(swr), s(ST[0]), v(sad)))
        e("s_lshl_b32 %s, %s, 3" % (s(sSo), s(self.sTT)))
        e("s_and_b32 %s, %s, 7" % (s(ST[1]), s(SM)))
        e("s_add_u32 %s, %s, %s" % (s(sSo), s(sSo), s(ST[1])))
        e("s_lshl_b32 %s, %s, 8" % (s(sSo), s(sSo)))
        e("s_add_u32 %s, %s, %d" % (s(sSo), s(sSo), WS_ST))
        vm.wait("xres")
        e("v_permlane32_swap_b32 %s, %s" % (v(xres), v(xres + 2)))
        e("v_permlane32_swap_b32 %s, %s" % (v(xres + 1), v(xres + 3)))
        p.barrier("F2")
        p.stamp(4)
        p.barrier("Oc0")
        reads(0)
        reads(1)
        for st in range(16):
            b = st % 3
            lg.wait(("r", st))
            if st + 2 < 16 and (st + 2) % 4 == 0:
                p.barrier("Oc%d" % ((st + 2) // 4))
            e("v_mfma_f32_32x32x16_bf16 %s, %s, %s, %s" % (v(acc, 16), v(wf[b], 4), v(of[b], 4), "0" if st == 0 else v(acc, 16)))
            if st + 2 < 16:
                reads(st + 2)
        e("s_nop 11")
        self.exchange_halves(acc, xadr, "X1")
        self.add_packed(acc, xres)
        self.vHF = va.alloc("HF", 4, 4)
        for i in range(4):
            e("v_cvt_pk_bf16_f32 %s, %s, %s" % (v(self.vHF + i), v(acc + 2 * i), v(acc + 2 * i + 1)))
        def hst(fl):
            e("buffer_store_dwordx4 %s, %s, %s, %s offen %s" % (v(self.vHF, 4), v(p.vL16), s(S_WS, 4), s(sHo), fl))
        p.stores_fast_slow(hst)
        st = va.alloc("op_st", 2, 2)
        ta, tb = va.alloc("op_ta"), va.alloc("op_tb")
        for i in range(4):
            e("v_lshlrev_b32 %s, 16, %s" % (v(ta), v(self.vHF + i)))
            e("v_and_b32 %s, 0xffff0000, %s" % (v(tb), v(self.vHF + i)))
            if i == 0:
                e("v_add_f32 %s, %s, %s" % (v(st), v(ta), v(tb)))
                e("v_mul_f32 %s, %s, %s" % (v(st + 1), v(ta), v(ta)))
            else:
                e("v_add_f32 %s, %s, %s" % (v(st), v(st), v(ta)))
                e("v_fmac_f32 %s, %s, %s" % (v(st + 1), v(ta), v(ta)))
                e("v_add_f32 %s, %s, %s" % (v(st), v(st), v(tb)))
            e("v_fmac_f32 %s, %s, %s" % (v(st + 1), v(tb), v(tb)))
        p.xhalf_sum(st, ta)
        p.xhalf_sum(st + 1, ta)
        e("ds_write_b64 %s, %s" % (v(swr), v(st, 2)))
        e("s_waitcnt lgkmcnt(0)")
        p.barrier("Y1")
        sk = p.lab("st_skip")
        e("s_cmp_ge_u32 %s, 2" % s(SW))
        e("s_cbranch_scc1 %s" % sk)
        pr_ = va.alloc("op_pr", 8, 4)
        for q in range(4):
            e("ds_read_b64 %s, %s offset:%d" % (v(pr_ + 2 * q, 2), v(sad), q * 256))
        e("s_waitcnt lgkmcnt(0)")
        for k in range(2):
            e("v_add_f32 %s, %s, %s" % (v(pr_ + k), v(pr_ + k), v(pr_ + 2 + k)))
            e("v_add_f32 %s, %s, %s" % (v(pr_ + 4 + k), v(pr_ + 4 + k), v(pr_ + 6 + k)))
            e("v_add_f32 %s, %s, %s" % (v(pr_ + k), v(pr_ + k), v(pr_ + 4 + k)))

        def sst(fl):
            e("buffer_store_dwordx2 %s, %s, %s, %s offen %s" % (v(pr_, 2), v(sgo), s(S_WS, 4), s(sSo), fl))
        p.stores_fast_slow(sst)
        e.label(sk)
        e("s_waitcnt vmcnt(0)")
        vm.q = []
        p.barrier("H1")
        va.free_prefix("op_")
        p.stamp(5)
        p.barrier("H2")
        p.stamp(6)

    def gateup_loader(self):
        p = self.l
        e, vm = p.e, p.vm
        sHg, sHl = SA[0], SA[1]
        e("s_lshl_b32 %s, %s, 2" % (s(ST[0]), s(SG)))
        e("s_add_u32 %s, %s, %s" % (s(ST[0]), s(ST[0]), s(self.sLW)))
        e("s_lshl_b32 %s, %s, 15" % (s(sHg), s(ST[0])))
        e("s_add_u32 %s, %s, %d" % (s(sHg), s(sHg), WS_H))
        e("s_lshl_b32 %s, %s, 12" % (s(sHl), s(self.sLW)))

        def h_issue(c):
            p.dma(S_WS, p.vL16, (sHg, c * 4096), (sHl, GU_HSLOT[c % 3]), ("gh", c), flags="sc1", n=4)
        h_issue(0)
        h_issue(1)
        gsp = self.opts.get("gsp", 0)
        if self.opts.get("gw2pre", 0):
            plan = {c: [(c + 3, 0), (c + 3, 1)] for c in range(5)}
        elif gsp == 0:
            plan = {c: [(c + 2, 0), (c + 2, 1)] for c in range(6)}
        else:
            plan = {0: [(3, 0), (3, 1)], 1: [(4, 0), (4, 1)], 2: [(5, 0)], 3: [(5, 1), (6, 0)], 4: [(6, 1), (7, 0)], 5: [(7, 1)]}
        for c in range(8):
            p.fine(4)
            vm.wait([("gw", c), ("gh", c)])
            p.fine(4)
            p.barrier("Gc%d" % c)
            if c + 2 <= 7:
                h_issue(c + 2)
            for cc, wh in plan.get(c, []):
                self.gu_w_half(cc, wh)
            dpf = self.opts.get("dpf", 4)
            if dpf in (4, 5) and c == 6:
                self.dn_pf_late()
            if dpf == 5 and c == 7:
                self.dn_pf_late(0, 40)
            if dpf == 6 and c == 6:
                self.dn_pf_late(0, 40)
            if dpf == 6 and c == 7:
                self.dn_pf_late()
        self.early_writeback(2)
        p.barrier("J1")
        for c in range(self.opts.get("dpre", 5)):
            self.dn_w_issue(c)
        p.sync_prep(3, SG, SM, SG)
        p.barrier("J2")
        p.sync(3, True)
        p.barrier("J3")

    def gateup_compute(self):
        p = self.c
        e, va, vm, lg = p.e, p.va, p.vm, p.lg
        L = p.vL
        sF0, sR, sFs = SA[2], SA[3], SA[10]
        e("s_mul_i32 %s, %s, 6" % (s(sFs), s(SM)))
        e("s_lshl_b32 %s, %s, 2" % (s(ST[0]), s(SM)))
        e("s_add_u32 %s, %s, 22" % (s(ST[0]), s(ST[0])))
        e("s_min_u32 %s, %s, %s" % (s(sFs), s(sFs), s(ST[0])))
        e("s_lshr_b32 %s, %s, 2" % (s(ST[1]), s(SW)))
        e("s_mul_i32 %s, %s, 3" % (s(sF0), s(ST[1])))
        e("s_lshl_b32 %s, %s, 1" % (s(sR), s(ST[1])))
        e("s_add_u32 %s, %s, %s" % (s(sR), s(sR), s(SW)))
        t0, t1 = va.alloc("gu_t0"), va.alloc("gu_t1")
        wa = [[va.alloc("gu_wa%d%d" % (b, k)) for k in range(4)] for b in range(2)]
        ha = [va.alloc("gu_ha%d" % k) for k in range(4)]
        e("v_lshrrev_b32 %s, 5, %s" % (v(t0), v(L)))
        e("v_lshlrev_b32 %s, 2, %s" % (v(t0), v(t0)))
        e("v_bfe_u32 %s, %s, 2, 2" % (v(t1), v(L)))
        e("v_add_u32 %s, %s, %s" % (v(t0), v(t0), v(t1)))
        e("v_mul_u32_u24 %s, 192, %s" % (v(t0), v(t0)))
        e("v_and_b32 %s, 3, %s" % (v(t1), v(L)))
        e("v_lshl_add_u32 %s, %s, 3, %s" % (v(t0), v(t1), v(t0)))
        e("v_bfe_u32 %s, %s, 4, 1" % (v(t1), v(L)))
        e("v_mul_u32_u24 %s, %d, %s" % (v(t1), GU_UP, v(t1)))
        e("v_add_u32 %s, %s, %s" % (v(t0), v(t0), v(t1)))
        e("s_lshl_b32 %s, %s, 5" % (s(ST[2]), s(sF0)))
        e("v_add_u32 %s, %s, %s" % (v(t0), s(ST[2]), v(t0)))
        e("s_and_b32 %s, %s, 3" % (s(ST[0]), s(SW)))
        e("s_lshl_b32 %s, %s, 12" % (s(ST[0]), s(ST[0])))
        e("s_add_u32 %s, %s, %d" % (s(ST[0]), s(ST[0]), GU_HSLOT[0]))
        e("v_add_u32 %s, %s, %s" % (v(t1), s(ST[0]), v(p.vL16)))
        for k in range(4):
            e("s_add_u32 %s, %s, %d" % (s(ST[0]), s(sR), k))
            e("s_and_b32 %s, %s, 3" % (s(ST[0]), s(ST[0])))
            e("s_mul_i32 %s, %s, 3072" % (s(ST[1]), s(ST[0])))
            e("s_lshl_b32 %s, %s, 10" % (s(ST[0]), s(ST[0])))
            e("v_add_u32 %s, %s, %s" % (v(wa[0][k]), s(ST[1]), v(t0)))
            e("v_add_u32 %s, %s, %s" % (v(ha[k]), s(ST[0]), v(t1)))
            e("v_add_u32 %s, %d, %s" % (v(wa[1][k]), GU_WSLOT[0], v(wa[0][k])))
        acc = [va.alloc("gu_acc%d" % j, 16, 4) for j in range(3)]
        hf = [va.alloc("gu_hf%d" % i, 4, 4) for i in range(2)]
        wf = [[va.alloc("gu_wf%d%d" % (i, j), 4, 4) for j in range(3)] for i in range(2)]
        cs = [va.alloc("gu_cs%d" % j, 4, 4) for j in range(3)]
        sel = va.alloc("gu_sel", 4, 4)
        p.make_selector(sel, t0)
        stp = va.alloc("gu_stp", 8, 4)
        e("v_and_b32 %s, 31, %s" % (v(t0), v(L)))
        e("v_lshlrev_b32 %s, 3, %s" % (v(t0), v(t0)))
        e("v_lshrrev_b32 %s, 5, %s" % (v(t1), v(L)))
        e("v_lshl_add_u32 %s, %s, 10, %s" % (v(t0), v(t1), v(t0)))
        e("s_lshl_b32 %s, %s, 2" % (s(ST[0]), s(SG)))
        e("s_and_b32 %s, %s, 3" % (s(ST[1]), s(SW)))
        e("s_add_u32 %s, %s, %s" % (s(ST[0]), s(ST[0]), s(ST[1])))
        e("s_lshl_b32 %s, %s, 11" % (s(ST[0]), s(ST[0])))
        e("s_add_u32 %s, %s, %d" % (s(ST[0]), s(ST[0]), WS_ST))
        for q in range(4):
            e("buffer_load_dwordx2 %s, %s, %s, %s offen offset:%d sc1" % (v(stp + 2 * q, 2), v(t0), s(S_WS, 4), s(ST[0]), q * 256))
            vm.issue("stp")

        def read_h(st):
            c, k, b = st // 4, st % 4, st % 2
            e("ds_read_b128 %s, %s offset:%d" % (v(hf[b], 4), v(ha[k]), (c % 3) * 16384))
            lg.issue(("h", st))

        def read_w(st, j):
            c, k, b = st // 4, st % 4, st % 2
            slot = c % 4
            base, off = (1, 0) if slot == 0 else (0, GU_WSLOT[slot])
            o = off + j * 32
            e("ds_read_b64_tr_b16 %s, %s offset:%d" % (v(wf[b][j], 2), v(wa[base][k]), o))
            e("ds_read_b64_tr_b16 %s, %s offset:%d" % (v(wf[b][j] + 2, 2), v(wa[base][k]), o + 1536))
            lg.issue(("w", st, j))
            lg.issue(("w", st, j))

        pa, pb, ra, ca = va.alloc("gu_pa"), va.alloc("gu_pb"), va.alloc("gu_ra"), va.alloc("gu_ca")
        p.colsum_addr(pa, t0)
        e("s_mul_i32 %s, %s, 384" % (s(ST[0]), s(SW)))
        e("s_add_u32 %s, %s, %d" % (s(ST[1]), s(ST[0]), GU_T + GU_CSP))
        e("v_add_u32 %s, %s, %s" % (v(pa), s(ST[1]), v(pa)))
        e("v_and_b32 %s, 31, %s" % (v(t1), v(L)))
        e("v_lshlrev_b32 %s, 2, %s" % (v(t1), v(t1)))
        e("s_add_u32 %s, %s, %d" % (s(ST[0]), s(ST[0]), GU_T + GU_CSF))
        e("v_add_u32 %s, %s, %s" % (v(pb), s(ST[0]), v(t1)))
        e("v_lshrrev_b32 %s, 5, %s" % (v(ca), v(L)))
        e("v_lshlrev_b32 %s, 4, %s" % (v(ca), v(ca)))
        e("v_add_u32 %s, %s, %s" % (v(ca), s(ST[0]), v(ca)))
        e("s_lshr_b32 %s, %s, 2" % (s(ST[1]), s(SW)))
        e("s_mul_i32 %s, %s, 1536" % (s(ST[1]), s(ST[1])))
        e("s_add_u32 %s, %s, %d" % (s(ST[1]), s(ST[1]), GU_T + GU_CSP))
        e("v_add_u32 %s, %s, %s" % (v(ra), s(ST[1]), v(t1)))
        sAo, sCnt = SA[5], SA[7]
        e("s_lshl_b32 %s, %s, 2" % (s(ST[0]), s(SG)))
        e("s_and_b32 %s, %s, 3" % (s(ST[1]), s(SW)))
        e("s_add_u32 %s, %s, %s" % (s(ST[0]), s(ST[0]), s(ST[1])))
        e("s_mul_i32 %s, %s, 86" % (s(ST[0]), s(ST[0])))
        e("s_add_u32 %s, %s, %s" % (s(ST[0]), s(ST[0]), s(sFs)))
        e("s_add_u32 %s, %s, %s" % (s(ST[0]), s(ST[0]), s(sF0)))
        e("s_lshl_b32 %s, %s, 10" % (s(sAo), s(ST[0])))
        e("s_add_u32 %s, %s, %d" % (s(sAo), s(sAo), WS_A))
        e("s_cmp_lt_u32 %s, 11" % s(SM))
        e("s_cselect_b32 %s, 6, 4" % s(sCnt))
        nm, c2, ve = va.alloc("gu_nm", 2, 2), va.alloc("gu_c2", 2, 2), va.alloc("gu_ve", 2, 2)

        def row_stats():
            vm.wait("stp")
            for k in range(2):
                e("v_add_f32 %s, %s, %s" % (v(stp + k), v(stp + k), v(stp + 2 + k)))
                e("v_add_f32 %s, %s, %s" % (v(stp + 4 + k), v(stp + 4 + k), v(stp + 6 + k)))
                e("v_add_f32 %s, %s, %s" % (v(stp + k), v(stp + k), v(stp + 4 + k)))
            p.xhalf_sum(stp, t0)
            p.xhalf_sum(stp + 1, t0)
            e("v_mul_f32 %s, 0x%x, %s" % (v(nm), fbits(-1.0 / 512), v(stp)))
            e("v_mul_f32 %s, %s, %s" % (v(t0), v(nm), v(nm)))
            e("v_mov_b32 %s, 0x%x" % (v(ve), fbits(1.0 / 512)))
            e("v_fma_f32 %s, %s, %s, -%s" % (v(ve), v(stp + 1), v(ve), v(t0)))
            e("v_max_f32 %s, 0, %s" % (v(ve), v(ve)))
            e("v_add_f32 %s, 0x%x, %s" % (v(ve), fbits(1e-5), v(ve)))
            e("v_rsq_f32 %s, %s" % (v(c2), v(ve)))
            e("s_nop 0")
            e("v_mul_f32 %s, 0x%x, %s" % (v(c2), fbits(-LOG2E), v(c2)))

        p.barrier("Gc0")
        read_h(0)
        for j in range(3):
            read_w(0, j)
        gprio = self.opts.get("gprio", 1)
        for st in range(32):
            b, k = st % 2, st % 4
            nxt = st + 1
            if gprio:
                e("s_setprio %d" % (2 - min(2, (st + 1) % 4)))
            lg.wait_all()
            if nxt < 32 and nxt % 4 == 0:
                p.fine(14)
                p.barrier("Gc%d" % (nxt // 4))
                p.fine(14)
            for j in range(3):
                e("v_mfma_f32_32x32x16_bf16 %s, %s, %s, %s" % (v(acc[j], 16), v(wf[b][j], 4), v(hf[b], 4), "0" if st == 0 else v(acc[j], 16)))
                if j == k:
                    e(p.colsum_mfma(cs[j], wf[b][j], sel, st == k))
                if nxt < 32:
                    if j == 0:
                        read_h(nxt)
                        read_w(nxt, 0)
                    elif j == 1:
                        read_w(nxt, 1)
                        read_w(nxt, 2)
            if st == 9:
                row_stats()
        if gprio:
            e("s_setprio 0")
        for i in range(2):
            va.free("gu_hf%d" % i, "gu_wf%d0" % i, "gu_wf%d1" % i, "gu_wf%d2" % i)
        for k in range(4):
            va.free("gu_wa0%d" % k, "gu_wa1%d" % k, "gu_ha%d" % k)
        va.free("gu_stp", "gu_sel")
        e("s_nop 4")
        p.colsum_exec()
        for j in range(3):
            e("ds_write_b128 %s, %s offset:%d" % (v(pa), v(cs[j], 4), j * 128))
        e("s_mov_b64 exec, -1")
        e("s_waitcnt lgkmcnt(0)")
        p.barrier("J1")
        p.stamp(7)
        part = va.alloc("gu_part", 12, 4)
        for j in range(3):
            for t in range(4):
                e("ds_read_b32 %s, %s offset:%d" % (v(part + 4 * j + t), v(ra), t * 384 + j * 128))
        for j in range(3):
            b = part + 4 * j
            e("s_waitcnt lgkmcnt(%d)" % (8 - 4 * j + j))
            e("v_add_f32 %s, %s, %s" % (v(b), v(b), v(b + 1)))
            e("v_add_f32 %s, %s, %s" % (v(b + 2), v(b + 2), v(b + 3)))
            e("v_add_f32 %s, %s, %s" % (v(b), v(b), v(b + 2)))
            e("ds_write_b32 %s, %s offset:%d" % (v(pb), v(b), j * 128))
        e("s_waitcnt lgkmcnt(0)")
        va.free("gu_part")
        csb = [va.alloc("gu_csr0", 16, 4), va.alloc("gu_csr1", 16, 4)]
        tg, tu, te = va.alloc("gu_tg", 8, 4), va.alloc("gu_tu", 8, 4), va.alloc("gu_te", 8, 4)
        pk = va.alloc("gu_pk", 4, 4)

        def cs_read(j):
            for i in range(4):
                e("ds_read_b128 %s, %s offset:%d" % (v(csb[j % 2] + 4 * i, 4), v(ca), j * 128 + 32 * i))
        cs_read(0)
        cs_read(1)
        for j in range(3):
            csr = csb[j % 2]
            e("s_waitcnt lgkmcnt(%d)" % (4 if j < 2 else 0))
            for r in range(0, 8, 2):
                e("v_pk_fma_f32 %s, %s, %s, %s op_sel_hi:[0,1,1]" % (v(tg + r, 2), v(nm, 2), v(csr + r, 2), v(acc[j] + r, 2)))
            for r in range(0, 8, 2):
                e("v_pk_fma_f32 %s, %s, %s, %s op_sel_hi:[0,1,1]" % (v(tu + r, 2), v(nm, 2), v(csr + 8 + r, 2), v(acc[j] + 8 + r, 2)))
            if j == 0:
                cs_read(2)
            for r in range(0, 8, 2):
                e("v_pk_mul_f32 %s, %s, %s op_sel_hi:[0,1]" % (v(te + r, 2), v(c2, 2), v(tg + r, 2)))
            for r in range(8):
                e("v_exp_f32 %s, %s" % (v(te + r), v(te + r)))
            for r in range(0, 8, 2):
                e("v_pk_mul_f32 %s, %s, %s" % (v(tg + r, 2), v(tg + r, 2), v(tu + r, 2)))
            for r in range(0, 8, 2):
                e("v_pk_fma_f32 %s, %s, %s, %s op_sel_hi:[1,0,0]" % (v(te + r, 2), v(te + r, 2), v(ve, 2), v(ve, 2)))
            for r in range(8):
                e("v_rcp_f32 %s, %s" % (v(te + r), v(te + r)))
            for r in range(0, 8, 2):
                e("v_pk_mul_f32 %s, %s, %s" % (v(tg + r, 2), v(tg + r, 2), v(te + r, 2)))
            for i in range(4):
                e("v_cvt_pk_bf16_f32 %s, %s, %s" % (v(pk + i), v(tg + 2 * i), v(tg + 2 * i + 1)))
            sk = p.lab("act_skip")
            e("s_add_u32 %s, %s, %d" % (s(ST[0]), s(sF0), j))
            e("s_cmp_ge_u32 %s, %s" % (s(ST[0]), s(sCnt)))
            e("s_cbranch_scc1 %s" % sk)
            e("s_add_u32 %s, %s, %d" % (s(ST[0]), s(sAo), j * 1024))

            def ast(fl):
                e("buffer_store_dwordx4 %s, %s, %s, %s offen %s" % (v(pk, 4), v(p.vL16), s(S_WS, 4), s(ST[0]), fl))
            p.stores_fast_slow(ast)
            e.label(sk)
            e("s_nop 1")
        e("s_waitcnt vmcnt(0)")
        vm.q = []
        p.barrier("J2")
        va.free_prefix("gu_")
        p.stamp(8)
        p.barrier("J3")
        p.stamp(9)

    def down_loader(self):
        p = self.l
        e, vm = p.e, p.vm
        sAg, sAl = SA[0], SA[1]
        e("s_lshl_b32 %s, %s, 2" % (s(ST[0]), s(SG)))
        e("s_lshr_b32 %s, %s, 3" % (s(ST[1]), s(SM)))
        e("s_lshl_b32 %s, %s, 1" % (s(ST[1]), s(ST[1])))
        e("s_add_u32 %s, %s, %s" % (s(ST[0]), s(ST[0]), s(ST[1])))
        e("s_and_b32 %s, %s, 1" % (s(ST[1]), s(self.sLW)))
        e("s_add_u32 %s, %s, %s" % (s(ST[0]), s(ST[0]), s(ST[1])))
        e("s_mul_i32 %s, %s, 86" % (s(ST[0]), s(ST[0])))
        e("s_lshr_b32 %s, %s, 1" % (s(ST[2]), s(self.sLW)))
        e("s_mul_i32 %s, %s, 43" % (s(ST[3]), s(ST[2])))
        e("s_add_u32 %s, %s, %s" % (s(ST[0]), s(ST[0]), s(ST[3])))
        e("s_lshl_b32 %s, %s, 10" % (s(sAg), s(ST[0])))
        e("s_add_u32 %s, %s, %d" % (s(sAg), s(sAg), WS_A))
        e("s_lshl_b32 %s, %s, 12" % (s(sAl), s(self.sLW)))

        def a_issue(c):
            p.dma(S_WS, p.vL16, (sAg, c * 4096), (sAl, DN_ASLOT[c % DN_NA]), ("da", c), flags="sc1", n=4)
        a_issue(0)
        a_issue(1)
        for c in range(self.opts.get("dpre", 5), DN_NW):
            self.dn_w_issue(c)
        for c in range(11):
            p.fine(5)
            vm.wait([("dw", c), ("da", c)])
            p.fine(5)
            p.barrier("Dc%d" % c)
            if c + 2 <= 10:
                a_issue(c + 2)
            if c >= 1 and c + DN_NW - 1 <= 10:
                self.dn_w_issue(c + DN_NW - 1)
            if c == 8:
                self.early_writeback(4)
        vm.wait_all()
        p.barrier("X2")

    def down_compute(self):
        p = self.c
        e, va, vm, lg = p.e, p.va, p.vm, p.lg
        aa = va.alloc("dn_aa")
        wa = [va.alloc("dn_wa0"), va.alloc("dn_wa1")]
        e("s_lshr_b32 %s, %s, 2" % (s(ST[0]), s(SW)))
        e("s_lshl_b32 %s, %s, 13" % (s(ST[0]), s(ST[0])))
        e("s_and_b32 %s, %s, 1" % (s(ST[1]), s(SW)))
        e("s_lshl_b32 %s, %s, 12" % (s(ST[1]), s(ST[1])))
        e("s_add_u32 %s, %s, %s" % (s(ST[1]), s(ST[1]), s(ST[0])))
        e("s_add_u32 %s, %s, %d" % (s(ST[1]), s(ST[1]), DN_ASLOT[0]))
        e("v_add_u32 %s, %s, %s" % (v(aa), s(ST[1]), v(p.vL16)))
        e("v_add_u32 %s, %s, %s" % (v(wa[0]), s(ST[0]), v(self.vTrP)))
        e("v_add_u32 %s, 65536, %s" % (v(wa[1]), v(wa[0])))
        acc = va.alloc("dn_acc", 16, 4)
        af = [va.alloc("dn_af%d" % i, 4, 4) for i in range(3)]
        wf = [va.alloc("dn_wf%d" % i, 4, 4) for i in range(3)]
        NS = 43

        def xoffs(w, dst):
            e("s_lshl_b32 %s, %s, 11" % (s(dst), s(w)))
            e("s_add_u32 %s, %s, %d" % (s(dst), s(dst), XCH_DN))
        xadr = self.exchange_setup("dn", xoffs)

        def reads(st):
            c, i, b = st // 4, st % 4, st % 3
            e("ds_read_b128 %s, %s offset:%d" % (v(af[b], 4), v(aa), (c % DN_NA) * 16384 + i * 1024))
            off = DN_WSLOT[c % DN_NW] + i * 2048
            base = off // 65536
            off -= base * 65536
            e("ds_read_b64_tr_b16 %s, %s offset:%d" % (v(wf[b], 2), v(wa[base]), off))
            e("ds_read_b64_tr_b16 %s, %s offset:%d" % (v(wf[b] + 2, 2), v(wa[base]), off + 1024))
            for _ in range(3):
                lg.issue(("r", st))

        if self.opts.get("delay"):
            lab = p.lab("delay")
            e("s_mov_b32 %s, %d" % (s(ST[0]), self.opts["delay"]))
            e.label(lab)
            e("s_sub_u32 %s, %s, 1" % (s(ST[0]), s(ST[0])))
            e("s_cmp_lg_u32 %s, 0" % s(ST[0]))
            e("s_cbranch_scc1 %s" % lab)
        p.barrier("Dc0")
        reads(0)
        reads(1)
        for st in range(NS):
            b = st % 3
            if st + 2 < NS and (st + 2) % 4 == 0:
                lg.wait_all()
                p.barrier("Dc%d" % ((st + 2) // 4))
            else:
                lg.wait(("r", st))
            e("v_mfma_f32_32x32x16_bf16 %s, %s, %s, %s" % (v(acc, 16), v(wf[b], 4), v(af[b], 4), "0" if st == 0 else v(acc, 16)))
            if st + 2 < NS:
                reads(st + 2)
        e("s_nop 11")
        self.exchange_halves(acc, xadr, "X2")
        self.add_packed(acc, self.vHF)
        pk = va.alloc("dn_pk", 4, 4)
        for i in range(4):
            e("v_cvt_pk_bf16_f32 %s, %s, %s" % (v(pk + i), v(acc + 2 * i), v(acc + 2 * i + 1)))
        e("s_nop 1")
        e("v_permlane32_swap_b32 %s, %s" % (v(pk), v(pk + 2)))
        e("v_permlane32_swap_b32 %s, %s" % (v(pk + 1), v(pk + 3)))
        e("buffer_store_dwordx4 %s, %s, %s, %s offen %s" % (v(pk, 4), v(self.vRow), s(S_OUT, 4), s(self.sRow), ["", "sc1", "nt", "sc0 sc1"][self.opts.get("ost", 0)]))
        p.stamp(10)
        p.stamp_rt(12)
        va.free_prefix("dn_")

    def finish(self):
        p = self.c
        e = p.e
        if self.ts:
            for q, wave, off in ((self.c, TS_WAVE, 0), (self.l, CTRL_WAVE, 65536)):
                if q is self.l and not self.opts.get("fine"):
                    continue
                ee = q.e
                sk = q.lab("ts_out")
                ee("s_cmp_lg_u32 %s, %d" % (s(SW), wave))
                ee("s_cbranch_scc1 %s" % sk)
                ee("s_lshl_b32 %s, s2, 8" % s(ST[0]))
                ee("s_add_u32 %s, %s, %d" % (s(ST[0]), s(ST[0]), WS_TS + off))
                ee("v_lshlrev_b32 %s, 2, %s" % (v(q.vL), v(q.vL)))
                ee("s_nop 1")
                ee("buffer_store_dword %s, %s, %s, %s offen" % (v(q.vTS), v(q.vL), s(S_WS, 4), s(ST[0])))
                if q is self.c and self.opts.get("dbg_ts"):
                    ee("s_cmp_lg_u32 s2, %d" % self.opts.get("dbg_wg", 0))
                    ee("s_cbranch_scc1 %s" % sk)
                    ee("s_load_dwordx2 %s, s[0:1], 64" % s(S_X, 2))
                    ee("s_mov_b32 %s, 256" % s(S_X + 2))
                    ee("s_waitcnt lgkmcnt(0)")
                    ee("buffer_store_dword %s, %s, %s, 0 offen" % (v(q.vTS), v(q.vL), s(S_X, 4)))
                ee.label(sk)
        e("s_waitcnt vmcnt(0)")
        e("s_endpgm")
        self.l.e("s_waitcnt vmcnt(0)")

    def build(self):
        self.prologue()
        self.c.stamp(0)
        self.c.stamp_rt(11)
        phases = [("p1", self.p1_compute, self.p1_loader), ("attn", self.attn_compute, self.attn_loader),
                  ("oproj", self.oproj_compute, self.oproj_loader), ("gateup", self.gateup_compute, self.gateup_loader),
                  ("down", self.down_compute, self.down_loader)]
        for name, fc, fl in phases:
            self.c.e.comment("==================== compute: " + name)
            self.l.e.comment("==================== loader: " + name)
            fc()
            fl()
            assert self.c.bars == self.l.bars, (name, self.c.bars, self.l.bars)
            if self.stop == name:
                break
        self.finish()
        hdr = open(os.path.join(os.path.dirname(os.path.abspath(__file__)), "header.txt")).read()
        if self.opts.get("ldfirst", 1):
            body = self.pre.text() + self.l.e.text() + "  s_endpgm\nL_compute:\n" + self.c.e.text() + "L_end:\n  s_endpgm\n"
        else:
            body = self.pre.text() + self.c.e.text() + "L_loader:\n" + self.l.e.text() + "L_end:\n  s_endpgm\n"
        nv = max(self.c.va.high, self.l.va.high)
        assert nv <= 168
        tail = """.section .rodata,"a"
.p2align 6
.amdhsa_kernel %s
  .amdhsa_next_free_vgpr 168
  .amdhsa_next_free_sgpr 102
  .amdhsa_accum_offset 168
  .amdhsa_group_segment_fixed_size 0
  .amdhsa_kernarg_size 80
  .amdhsa_user_sgpr_count 2
  .amdhsa_user_sgpr_kernarg_segment_ptr 1
  .amdhsa_system_sgpr_workgroup_id_x 1
.end_amdhsa_kernel
""" % KNAME
        return hdr + (".amdgcn_target \"amdgcn-amd-amdhsa--gfx950\"\n.text\n.globl %s\n.p2align 8\n.type %s,@function\n%s:\n" % (KNAME, KNAME, KNAME)) + body + tail


def generate(stop=None, ts=False, **opts):
    g = Gen(stop=stop, ts=ts, opts=opts)
    text = g.build()
    return text, g


if __name__ == "__main__":
    import hazcheck
    text, g = generate()
    n = hazcheck.check(text)
    print("hazards:", n, "vgpr high:", g.c.va.high, g.l.va.high, "lines:", text.count("\n"))
    out = sys.argv[1] if len(sys.argv) > 1 else "cdna_kernels/%s.s" % NAME
    open(out, "w").write(text)
```
